```python
import torch

def _softmax(x, axis=-1):
    return torch.softmax(x, dim=axis)
def _gelu(x):
    return torch.nn.functional.gelu(x, approximate="tanh")
def _silu(x):
    return torch.nn.functional.silu(x)
def _sigmoid(x):
    return torch.sigmoid(x)
def _layernorm(x, axis=-1, eps=1e-5):
    m = x.mean(dim=axis, keepdim=True)
    v = x.var(dim=axis, keepdim=True, unbiased=False)
    return (x - m) / torch.sqrt(v + eps)
def _scatter_add(tgt, idx, src, axis=0):
    return tgt.clone().index_add_(axis, idx, src)
def _segment_sum(src, seg, n):
    out = torch.zeros((n,) + src.shape[1:], dtype=src.dtype)
    return out.index_add_(0, seg, src)
def _pad(x, pw):
    flat = tuple(v for pair in reversed(pw) for v in pair)
    return torch.nn.functional.pad(x, flat)

kernel_name = 'sequential_preLN__linear_kernel_hedgehog__glu_gated_swiglu__prompt'

def setup_inputs():

    _w = (lambda a: (lambda t: t.to(torch.bfloat16) if t.is_floating_point() else t)(torch.as_tensor(a)))
    def _A_setup():
        B, S, D, H = 1, 2048, 576, 32
        Dh = D // H
        return {
            "x": _w((lambda *s: torch.randn(*s, dtype=torch.bfloat16) * 0.05)(B, S, D)),
            "wqkv": _w((lambda *s: torch.randn(*s, dtype=torch.bfloat16) * 0.2)(D, 3 * D)),
            "w_phi": _w((lambda *s: torch.randn(*s, dtype=torch.bfloat16) * 0.2)(H, Dh, Dh) * (Dh ** -0.5)),
            "wo": _w((lambda *s: torch.randn(*s, dtype=torch.bfloat16) * 0.05)(D, D)),
        }
    _A_in = _A_setup()

    def _B_setup():
        B, S, D, F = 1, 2048, 576, 4608
        return {
            "x": _w((lambda *s: torch.randn(*s, dtype=torch.bfloat16) * 0.05)(B, S, D)),
            "w1": _w((lambda *s: torch.randn(*s, dtype=torch.bfloat16) * 0.4)(D, F) * (2.0 / D) ** 0.5),
            "w3": _w((lambda *s: torch.randn(*s, dtype=torch.bfloat16) * 0.4)(D, F) * (2.0 / D) ** 0.5),
            "w2": _w((lambda *s: torch.randn(*s, dtype=torch.bfloat16) * 0.4)(F, D) * (2.0 / F) ** 0.5),
        }
    _B_in = _B_setup()

    return {
        "A_x": _A_in["x"],
        "A_wqkv": _A_in["wqkv"],
        "A_w_phi": _A_in["w_phi"],
        "A_wo": _A_in["wo"],
        "B_x": _B_in["x"],
        "B_w1": _B_in["w1"],
        "B_w3": _B_in["w3"],
        "B_w2": _B_in["w2"],
    }

def reference(A_x, A_wqkv, A_w_phi, A_wo, B_x, B_w1, B_w3, B_w2):
    def _A_ref(x, wqkv, w_phi, wo):
        B, S, D = x.shape
        H = 32; Dh = D // H
        qkv = (lambda x, *d: x.permute(*d))((x @ wqkv).reshape(B, S, 3, H, Dh), 2, 0, 3, 1, 4)
        q, k, v = qkv[0], qkv[1], qkv[2]
        pq = torch.einsum("bhsd,hdf->bhsf", q, w_phi)
        pk = torch.einsum("bhsd,hdf->bhsf", k, w_phi)
        phi_q = torch.concatenate([_softmax(pq, axis=-1), _softmax(-pq, axis=-1)], axis=-1)
        phi_k = torch.concatenate([_softmax(pk, axis=-1), _softmax(-pk, axis=-1)], axis=-1)
        kv = torch.einsum("bhsf,bhsd->bhfd", phi_k, v)
        z  = torch.einsum("bhsf->bhf", phi_k)
        num = torch.einsum("bhqf,bhfd->bhqd", phi_q, kv)
        den = torch.einsum("bhqf,bhf->bhq", phi_q, z)[..., None] + 1e-6
        o = num / den
        return (lambda x, *d: x.permute(*d))(o, 0, 2, 1, 3).reshape(B, S, D) @ wo

    def _B_ref(x, w1, w3, w2):
        gate = torch.einsum("bsd,df->bsf", x, w1)
        up = torch.einsum("bsd,df->bsf", x, w3)
        h = _silu(gate) * up
        out = torch.einsum("bsf,fd->bsd", h, w2)
        return out

    x = A_x
    h = x + _A_ref(_layernorm(x, axis=-1), A_wqkv, A_w_phi, A_wo)
    h2 = h + _B_ref(_layernorm(h, axis=-1), B_w1, B_w3, B_w2)
    return h2
```

```python
import re

REG_RE = re.compile(r'\b([vas])(\d+)\b|\b([vas])\[(\d+):(\d+)\]|\b(vcc|exec|m0|scc)\b|\b(vcc_lo|vcc_hi|exec_lo|exec_hi)\b')

def regs_of(op):
    out = []
    for m in REG_RE.finditer(op):
        if m.group(1): out.append((m.group(1), int(m.group(2))))
        elif m.group(3):
            out += [(m.group(3), i) for i in range(int(m.group(4)), int(m.group(5)) + 1)]
        elif m.group(6): out.append((m.group(6), 0))
        elif m.group(7): out.append((m.group(7)[:-3], 0))
    return out

def split_ops(s):
    ops = []; depth = 0; cur = ''
    for ch in s:
        if ch == '[': depth += 1
        if ch == ']': depth -= 1
        if ch == ',' and depth == 0:
            ops.append(cur.strip()); cur = ''
        else: cur += ch
    if cur.strip(): ops.append(cur.strip())
    return ops

TRANS = ('v_exp_f32', 'v_log_f32', 'v_rcp_f32', 'v_rsq_f32', 'v_sqrt_f32', 'v_sin_f32', 'v_cos_f32', 'v_rcp_iflag_f32')
NODST_S = ('s_cmp', 's_cbranch', 's_branch', 's_waitcnt', 's_barrier', 's_nop', 's_endpgm', 's_setprio', 's_sleep', 's_bitcmp')

class Ins:
    __slots__ = ('text', 'op', 'cls', 'wr', 'rd', 'tag', 'srcc', 'srcab', 'dpp', 'wide_store', 'data', 'cost', 'lds_dma', 'sgpr_rd', 'opt', 'meta')
    def __init__(self, text, tag=None):
        self.text = text; self.tag = tag; self.opt = False; self.meta = None
        t = text.split(';')[0].strip()
        sp = t.split(None, 1)
        self.op = op = sp[0]
        rest = sp[1] if len(sp) > 1 else ''
        ops = split_ops(rest)
        self.wr = []; self.rd = []; self.srcc = []; self.srcab = []; self.dpp = False
        self.wide_store = False; self.data = []; self.lds_dma = False
        R = [regs_of(o) for o in ops]
        allr = [r for x in R for r in x]
        if op.startswith('v_mfma'):
            self.cls = 'mfma'; self.wr = R[0]; self.srcab = R[1] + R[2]; self.srcc = R[3]; self.rd = self.srcab + self.srcc
        elif op.startswith('v_cmp'):
            self.cls = 'valu'; self.wr = R[0]; self.rd = [r for x in R[1:] for r in x]
        elif op.startswith('v_permlane') and 'swap' in op:
            self.cls = 'valu'; self.wr = allr; self.rd = allr
        elif op.startswith('v_'):
            self.cls = 'trans' if op.replace('_e32', '').replace('_e64', '') in TRANS else ('dot' if op.startswith('v_dot') else 'valu')
            self.wr = R[0]; self.rd = [r for x in R[1:] for r in x]
            if re.search(r'row_|quad_perm|wave_|bcast', rest):
                self.dpp = True; self.rd += R[0]
            if re.match(r'v_(fmac|mac|dot2c|dot4c|pk_fmac)', op) or 'op_sel' in rest and 'cvt' in op: self.rd += R[0]
            if op.startswith('v_cndmask') and len(ops) == 3: self.rd.append(('vcc', 0))
            if op.startswith('v_writelane'): self.rd += R[0]
        elif op.startswith('buffer_load') or op.startswith('global_load'):
            self.cls = 'vmem'
            if re.search(r'\blds\b', rest) or '_lds_' in op:
                self.lds_dma = True; self.rd = allr + [('m0', 0)]
            else:
                self.wr = R[0]; self.rd = [r for x in R[1:] for r in x]
                if 'd16' in op: self.rd += R[0]
        elif op.startswith('buffer_store') or op.startswith('global_store') or 'atomic' in op:
            self.cls = 'vmem'; self.rd = allr
            self.data = R[0] if op.startswith('buffer') else R[1]
            self.wide_store = 'x3' in op or 'x4' in op
            if 'atomic' in op and re.search(r'\bsc0\b', rest):
                self.wr = R[0]
        elif op.startswith('ds_'):
            self.cls = 'ds'
            if op.startswith('ds_write') or op.startswith('ds_add') or op.startswith('ds_max') :
                self.rd = allr
            else:
                self.wr = R[0]; self.rd = [r for x in R[1:] for r in x]
                if 'd16' in op: self.rd += R[0]
        elif op.startswith('s_load') or op.startswith('s_memtime') or op.startswith('s_memrealtime') or op.startswith('s_buffer_load'):
            self.cls = 'smem'; self.wr = R[0]; self.rd = [r for x in R[1:] for r in x]
        elif op.startswith('s_'):
            self.cls = 'salu'
            if op.startswith(NODST_S): self.rd = allr
            else:
                self.wr = R[0]; self.rd = [r for x in R[1:] for r in x]
                if 'saveexec' in op: self.wr = self.wr + [('exec', 0)]; self.rd += [('exec', 0)]
        else:
            raise ValueError('unknown op ' + text)

class Kern:
    def __init__(self, name, vgpr=256, agpr=0, lds=0, block=256, grid=256):
        self.name = name; self.items = []; self.vgpr = vgpr; self.agpr = agpr; self.lds = lds; self.block = block; self.grid = grid
    def __call__(self, text, tag=None):
        for line in text.strip().split('\n'):
            line = line.strip()
            if not line or line.startswith(';'): continue
            self.items.append(Ins(line, tag))
    def add(self, ins): self.items.append(ins)
    def label(self, name, reset=True): self.items.append(('label', name, reset))
    def wait_vm(self, tag): self.items.append(('waitvm', tag))
    def wait_lg(self, tag): self.items.append(('waitlg', tag))
    def wait_both(self, vtag, ltag): self.items.append(('waitboth', vtag, ltag))
    def wait_all(self, vm=True, lgkm=True): self.items.append(('waitall', vm, lgkm))
    def skip_begin(self): self.items.append(('skipb',))
    def skip_end(self, label): self.items.append(('skipe', label))
    def raw(self, text): self.items.append(('raw', text))
    prof = None
    def stamp(self, n):
        if self.prof is not None: self.items.append(('raw', f'  s_memrealtime s[{84+2*n}:{85+2*n}]'))

    def finalize(self):
        out = []
        t = 0
        vmq = []; lgq = []; smem = set()
        lastw = {}
        cread = {}
        sdata = {}
        skip_stack = []
        self.nnops = 0; self.nwaits = 0
        def emit(s):
            out.append('  ' + s)
        def do_wait(vm=None, lg=None):
            nonlocal t, vmq, lgq, smem
            parts = []
            if vm is not None:
                n = sum(1 for e in vmq[vm + 1:] if not e[2])
                parts.append(f'vmcnt({min(n, 63)})')
                vmq = vmq[vm + 1:]
            if lg is not None:
                if lg == 'all' or smem:
                    parts.append('lgkmcnt(0)'); lgq = []; smem = set()
                else:
                    n = sum(1 for e in lgq[lg + 1:] if not e[2])
                    parts.append(f'lgkmcnt({min(n, 15)})')
                    lgq = lgq[lg + 1:]
            if parts:
                emit('s_waitcnt ' + ' '.join(parts)); t += 1; self.nwaits += 1
        pend_wait = None
        for it in self.items:
            if isinstance(it, tuple):
                k = it[0]
                if k == 'label':
                    out.append(f'{it[1]}:')
                    if it[2]:
                        vmq = []; lgq = []; smem = set(); lastw = {}; cread = {}; sdata = {}
                elif k == 'waitvm':
                    idx = [i for i, e in enumerate(vmq) if e[1] == it[1]]
                    if idx: do_wait(vm=idx[-1])
                elif k == 'waitlg':
                    idx = [i for i, e in enumerate(lgq) if e[1] == it[1]]
                    if idx: do_wait(lg=idx[-1])
                elif k == 'waitboth':
                    idx = [i for i, e in enumerate(vmq) if e[1] in it[1]]
                    do_wait(vm=(idx[-1] if idx else None), lg=('all' if (lgq or smem) else None))
                elif k == 'waitall':
                    do_wait(vm=(len(vmq) - 1 if (it[1] and vmq) else None), lg=('all' if (it[2] and (lgq or smem)) else None))
                elif k == 'skipb':
                    skip_stack.append((t, list(vmq), list(lgq), set(smem)))
                elif k == 'skipe':
                    t0, sv, sl, ss = skip_stack.pop()
                    d = t - t0
                    for r in list(lastw):
                        if lastw[r][0] < t0: lastw[r] = (lastw[r][0] + d,) + lastw[r][1:]
                    for dd in (cread, sdata):
                        for r in list(dd):
                            if dd[r] < t0: dd[r] += d
                    nv = [e for e in vmq if not any(e is x for x in sv)]
                    nl = [e for e in lgq if not any(e is x for x in sl)]
                    for e in nv + nl: e[2] = True
                    vmq = sv + nv; lgq = sl + nl; smem = smem | ss
                    out.append(f'{it[1]}:')
                elif k == 'raw':
                    out.append(it[1])
                continue
            I = it
            touched = set(I.rd) | set(I.wr)
            vm = None; lg = None
            for i, e in enumerate(vmq):
                if e[0] & touched: vm = i
            for i, e in enumerate(lgq):
                if e[0] & touched: lg = i
            if smem & touched: lg = 'all'
            if vm is not None or lg is not None: do_wait(vm, lg)
            need = 0
            def req(tp, n):
                nonlocal need
                need = max(need, n - (t - tp - 1))
            isvalu = I.cls in ('valu', 'trans', 'dot')
            for r in I.rd:
                if r in lastw:
                    tp, pc, P = lastw[r]
                    pv = pc in ('valu', 'trans', 'dot')
                    if pc == 'mfma':
                        if I.cls == 'mfma':
                            if r in I.srcab: req(tp, 8)
                            elif P.wr == I.srcc: pass
                            else: req(tp, 6)
                        else: req(tp, 8)
                    if pv and r[0] in 'va':
                        if I.cls == 'mfma': req(tp, 2)
                        if I.dpp: req(tp, 2)
                        if I.op.startswith('v_permlane'): req(tp, 2)
                        if I.op.startswith('v_readlane') or I.op.startswith('v_readfirstlane'): req(tp, 1)
                        if pc == 'trans' and (I.cls != 'trans'): req(tp, 1)
                        if pc == 'dot' and P.op != I.op: req(tp, 3)
                        if 'op_sel' in P.text or 'sdwa' in P.text: req(tp, 1)
                    if pv and r[0] in ('s', 'vcc', 'exec'):
                        if I.cls == 'vmem': req(tp, 5)
                        if isvalu or I.cls == 'mfma': req(tp, 5 if (r[0] == 'exec') else 2)
                        if I.cls in ('salu', 'smem', 'ds'): req(tp, 2)
                    if r[0] == 'm0' and pc == 'salu' and I.lds_dma: req(tp, 1)
            for r in I.wr:
                if r in lastw and lastw[r][1] == 'mfma' and not (I.cls == 'mfma' and lastw[r][2].wr == I.wr):
                    req(lastw[r][0], 8)
                if r in lastw and lastw[r][1] == 'dot' and I.op != lastw[r][2].op: req(lastw[r][0], 3)
                if isvalu and r in cread: req(cread[r], 3)
                if r in sdata: req(sdata[r], 2)
            if need > 0:
                while need > 0:
                    n = min(need, 16); emit(f's_nop {n - 1}'); t += n; need -= n; self.nnops += 1
            emit(I.text)
            if I.op == 's_nop': t += int(I.text.split()[1]) + 1
            else: t += 1
            tt = t - 1
            if I.op == 's_waitcnt':
                m = re.search(r'vmcnt\((\d+)\)', I.text)
                if m and int(m.group(1)) == 0: vmq = []
                m = re.search(r'lgkmcnt\((\d+)\)', I.text)
                if m and int(m.group(1)) == 0: lgq = []; smem = set()
            for r in I.wr: lastw[r] = (tt, I.cls, I)
            if I.cls == 'mfma':
                for r in I.srcc: cread[r] = tt
            if I.wide_store:
                for r in I.data: sdata[r] = tt
            if I.cls == 'vmem': vmq.append([set(I.wr), I.tag, False])
            elif I.cls == 'ds': lgq.append([set(I.wr), I.tag, False])
            elif I.cls == 'smem': smem |= set(I.wr)
        return out

    def text(self):
        body = self.finalize()
        if self.prof is not None:
            body = ['  s_mov_b64 s[%d:%d], 0' % (86+2*i, 87+2*i) for i in range(6)] + ['  s_memrealtime s[84:85]'] + [(f'  s_branch {self.name}_prof' if l.strip() == 's_endpgm' else l) for l in body]
            body += [f'{self.name}_prof:', '  s_waitcnt vmcnt(0) lgkmcnt(0)', '  s_memrealtime s[98:99]', '  s_load_dwordx2 s[76:77], s[0:1], 80', '  s_mov_b64 exec, 1',
                     '  v_lshrrev_b32 v1, 6, v0', '  v_lshlrev_b32 v1, 6, v1', '  s_lshl_b32 s80, s2, 10', f'  s_add_u32 s80, s80, {self.prof}', '  s_mov_b32 s78, 0x10000000', '  s_mov_b32 s79, 0x20000', '  s_waitcnt lgkmcnt(0)']
            for i in range(8):
                body += [f'  v_mov_b32 v2, s{84+2*i}', f'  v_mov_b32 v3, s{85+2*i}', f'  buffer_store_dwordx2 v[2:3], v1, s[76:79], s80 offen offset:{8*i}', '  s_nop 1']
            body += ['  s_endpgm']
        hdr = f".globl {self.name}\n.p2align 8\n.type {self.name},@function\n{self.name}:\n"
        nv = self.vgpr + self.agpr
        kd = f""".section .rodata,"a"
.p2align 6
.amdhsa_kernel {self.name}
  .amdhsa_next_free_vgpr {nv}
  .amdhsa_next_free_sgpr 102
  .amdhsa_accum_offset {self.vgpr}
  .amdhsa_group_segment_fixed_size 0
  .amdhsa_kernarg_size 88
  .amdhsa_user_sgpr_count 2
  .amdhsa_user_sgpr_kernarg_segment_ptr 1
  .amdhsa_system_sgpr_workgroup_id_x 1
.end_amdhsa_kernel
.text
"""
        return hdr + '\n'.join(body) + '\n' + kd
    def launch_line(self):
        return f"; @launch kernel={self.name} grid=({self.grid},1,1) block=({self.block},1,1) lds={self.lds}"

def build_file(kerns, path, header=''):
    s = header + '\n'.join(k.launch_line() for k in kerns) + '\n'
    s += '.amdgcn_target "amdgcn-amd-amdhsa--gfx950"\n.text\n'
    seen = set()
    for k in kerns:
        if k.name in seen: continue
        seen.add(k.name); s += k.text()
    open(path, 'w').write(s)
    return s
```

```python
import sys
sys.path.insert(0, 'dev')
from asmlib import *

from wsmap import *
from gen3 import k3, k4

def k0():
    k = Kern("prep_kernel", vgpr=256, lds=57360, block=256, grid=274)
    k("s_cmp_ge_u32 s2, 274\ns_cbranch_scc1 prep_end")
    k("s_load_dwordx8 s[4:11], s[0:1], 0\ns_load_dwordx2 s[12:13], s[0:1], 80")
    k("v_and_b32 v1, 63, v0\nv_lshrrev_b32 v2, 6, v0\nv_readfirstlane_b32 s3, v2")
    k("v_and_b32 v3, 15, v1\nv_lshrrev_b32 v4, 4, v1")
    k("v_lshlrev_b32 v5, 4, v1")
    k("v_mov_b32 v6, 0x40000000")
    srd(k, 16, 12, WSSZ)
    k("s_cmp_ge_u32 s2, 256\ns_cbranch_scc1 prep_wo")
    k("s_cmp_ge_u32 s2, 128\ns_cbranch_scc1 prep_w")
    srd(k, 20, 4, 2359296)
    k("v_lshrrev_b32 v7, 4, v0")
    k("v_mul_u32_u24 v8, 1152, v7\nv_lshl_add_u32 v8, v3, 4, v8")
    k("v_add_u32 v9, 1024, v8\nv_cmp_gt_u32 vcc, 8, v3\nv_cndmask_b32 v9, v6, v9, vcc")
    k("s_mul_i32 s28, s2, 18432")
    for j in range(4): k(f"buffer_load_dwordx4 {V(16+4*j,4)}, v8, s[20:23], s28 offen offset:{256*j}")
    k(f"buffer_load_dwordx4 v[32:35], v9, s[20:23], s28 offen")
    k("v_xor_b32 v10, v7, v3\nv_lshlrev_b32 v10, 4, v10\nv_lshl_add_u32 v10, v3, 8, v10")
    k("s_lshl_b32 s29, s3, 2\nv_add_u32 v11, s29, v4\nv_xor_b32 v12, v3, v11\nv_lshlrev_b32 v12, 4, v12\nv_lshl_add_u32 v11, v11, 8, v12")
    k("s_mov_b32 s30, 0xffff0000")
    for i in range(20):
        k(f"v_lshlrev_b32 v{40+2*i}, 16, v{16+i}\nv_and_b32 v{41+2*i}, s30, v{16+i}")
    k("v_add_f32 v80, v40, v41\nv_mul_f32 v82, v40, v40\nv_mul_f32 v83, v41, v41\nv_add_f32 v81, v42, v43\nv_fmac_f32 v82, v42, v42\nv_fmac_f32 v83, v43, v43")
    for i in range(2, 20):
        a = 80 + (i % 2)
        k(f"v_add_f32 v{a}, v{a}, v{40+2*i}\nv_fmac_f32 v82, v{40+2*i}, v{40+2*i}\nv_add_f32 v{a^1}, v{a^1}, v{41+2*i}\nv_fmac_f32 v83, v{41+2*i}, v{41+2*i}")
    k("v_add_f32 v80, v80, v81\nv_add_f32 v82, v82, v83")
    for r in (8, 4, 2, 1):
        k(f"v_add_f32_dpp v80, v80, v80 row_ror:{r} row_mask:0xf bank_mask:0xf\nv_add_f32_dpp v82, v82, v82 row_ror:{r} row_mask:0xf bank_mask:0xf")
    k("s_mov_b32 s31, 0x3ae38e39")
    k("v_mul_f32 v80, s31, v80\nv_mul_f32 v82, s31, v82\nv_fma_f32 v82, -v80, v80, v82\nv_max_f32 v82, 0, v82")
    k("v_lshlrev_b32 v13, 2, v7\nv_cmp_eq_u32 vcc, 0, v3\nv_cndmask_b32 v13, v6, v13, vcc")
    k(f"s_lshl_b32 s32, s2, 6\ns_add_u32 s32, s32, {MX}\nbuffer_store_dword v80, v13, s[16:19], s32 offen")
    bf16r(k, "v81", "v80"); bf16r(k, "v82", "v82")
    k("v_add_f32 v82, 0x3727c5ac, v82"); bf16r(k, "v82", "v82")
    k("v_sqrt_f32 v82, v82"); bf16r(k, "v82", "v82")
    k("v_rcp_f32 v82, v82\nv_mul_f32 v81, v81, v82")
    for i in range(20):
        k(f"v_fma_f32 v{40+2*i}, v{40+2*i}, v82, -v81\nv_fma_f32 v{41+2*i}, v{41+2*i}, v82, -v81\nv_cvt_pk_bf16_f32 v{16+i}, v{40+2*i}, v{41+2*i}")
        if i % 4 == 3: k(f"ds_write_b128 v10, {V(13+i,4)} offset:{4096*(i//4)}")
    k.wait_all(vm=False); k("s_barrier")
    for i in range(5): k(f"ds_read_b128 {V(16+4*i,4)}, v11 offset:{4096*i}")
    k(f"s_lshl_b32 s33, s3, 10\ns_add_u32 s33, s33, s28\ns_add_u32 s34, s33, 16384\ns_cmp_lt_u32 s3, 2\ns_cselect_b32 s34, s34, {INV}")
    for i in range(4):
        k(f"buffer_store_dwordx4 {V(16+4*i,4)}, v5, s[16:19], s33 offen")
        k("s_add_u32 s33, s33, 4096")
    k("buffer_store_dwordx4 v[32:35], v5, s[16:19], s34 offen")
    k("s_endpgm")
    k.label("prep_w")
    k("s_sub_u32 s28, s2, 128\ns_and_b32 s29, s28, 7\ns_lshr_b32 s28, s28, 3")
    k("s_cmp_ge_u32 s29, 6\ns_cbranch_scc1 prep_end")
    srd(k, 20, 6, 1990656); srd(k, 24, 8, 20736)
    k("v_mul_u32_u24 v7, 13108, v1\nv_lshrrev_b32 v7, 16, v7")
    k("v_mul_u32_u24 v8, 5, v7\nv_sub_u32 v8, v1, v8")
    k("v_mul_u32_u24 v9, 21846, v7\nv_lshrrev_b32 v9, 16, v9")
    k("v_mul_u32_u24 v10, 3, v9\nv_sub_u32 v10, v7, v10")
    k("v_mul_u32_u24 v9, 3456, v9\nv_mul_u32_u24 v10, 1152, v10\nv_lshlrev_b32 v8, 4, v8\nv_add3_u32 v7, v9, v10, v8")
    k("s_mul_i32 s30, s28, 72\ns_and_b32 s30, s30, 0xfffffff0\ns_mul_i32 s31, s29, 331776\ns_add_u32 s30, s30, s31\ns_mul_i32 s31, s3, 13824\ns_add_u32 s30, s30, s31")
    k("s_lshl_b32 s32, s3, 10\ns_add_u32 s32, s32, 32768")
    for i in range(6):
        k(f"s_add_u32 m0, s32, {4096*i}\nbuffer_load_dwordx4 v7, s[20:23], s30 offen lds\ns_add_u32 s30, s30, {16*3456}")
    k("v_lshlrev_b32 v8, 2, v0\ns_mul_i32 s33, s28, 1296")
    k("buffer_load_dword v16, v8, s[24:27], s33 offen\nbuffer_load_dword v17, v8, s[24:27], s33 offen offset:1024")
    k("v_mov_b32 v20, 0\nv_mov_b32 v21, 0\nv_mov_b32 v22, 0\nv_mov_b32 v23, 0\nv_lshlrev_b32 v9, 4, v0")
    for i in range(8): k(f"ds_write_b128 v9, v[20:23] offset:{4096*i}")
    k("s_and_b32 s34, s28, 1\ns_lshl_b32 s34, s34, 2")
    k("v_mov_b32 v24, 57344")
    for rnd, (e, ad) in enumerate((("v0", 26), ("v25", 27))):
        if rnd: k("v_add_u32 v25, 256, v0")
        k(f"v_cmp_lt_u32 vcc, 161, {e}\nv_cndmask_b32 v10, 0, 1, vcc" .replace("v_cndmask_b32 v10, 0, 1, vcc", "v_cndmask_b32_e64 v10, 0, 1, vcc"))
        k(f"v_mul_u32_u24 v11, 162, v10\nv_sub_u32 v11, {e}, v11")
        k("v_mul_u32_u24 v12, 7282, v11\nv_lshrrev_b32 v12, 16, v12")
        k("v_mul_u32_u24 v13, 9, v12\nv_sub_u32 v13, v11, v13")
        k("v_mul_u32_u24 v14, 18, v10\nv_add3_u32 v14, v14, v12, s34")
        k("v_lshrrev_b32 v15, 1, v13\nv_lshlrev_b32 v15, 5, v15\nv_and_b32 v13, 1, v13\nv_lshl_add_u32 v15, v13, 2, v15\nv_lshl_add_u32 v15, v10, 3, v15")
        k(f"v_lshl_add_u32 v{ad}, v14, 8, v15\nv_add_u32 v{ad+2}, 10256, v{ad}")
        if rnd: k(f"v_cmp_gt_u32 vcc, 324, v25\nv_cndmask_b32 v{ad}, v24, v{ad}, vcc\nv_cndmask_b32 v{ad+2}, v24, v{ad+2}, vcc")
    k("v_cmp_lt_u32 vcc, 17, v0\nv_cndmask_b32_e64 v10, 0, 1, vcc\nv_mul_u32_u24 v11, 18, v10\nv_sub_u32 v11, v0, v11")
    k("v_lshl_add_u32 v12, v10, 4, v11\nv_add_u32 v12, 80, v12\nv_lshl_add_u32 v13, v10, 2, v11\nv_add_u32 v13, 50, v13")
    k("v_cmp_gt_u32 vcc, 16, v11\nv_cndmask_b32 v12, v13, v12, vcc")
    k("v_add_u32 v13, s34, v0\nv_add_u32 v13, 80, v13\nv_lshlrev_b32 v13, 8, v13\nv_lshl_add_u32 v30, v12, 1, v13")
    k("v_cmp_gt_u32 vcc, 36, v0\nv_cndmask_b32 v30, v24, v30, vcc\nv_mov_b32 v31, 0x3f80")
    k.wait_all(vm=False); k("s_barrier")
    k("ds_write_b32 v26, v16\nds_write_b32 v28, v16\nds_write_b32 v27, v17\nds_write_b32 v29, v17\nds_write_b16 v30, v31")
    k("v_lshrrev_b32 v10, 2, v3\nv_and_b32 v11, 3, v3")
    k("v_lshl_add_u32 v12, v4, 3, v10\nv_lshlrev_b32 v12, 8, v12\nv_lshl_add_u32 v12, v11, 3, v12\ns_lshl_b32 s35, s3, 5\nv_add_u32 v12, s35, v12")
    k("v_mul_u32_u24 v13, 240, v11\nv_lshl_add_u32 v13, v10, 11, v13\nv_lshl_add_u32 v13, v4, 4, v13\nv_add_u32 v13, 32768, v13")
    k.wait_all(); k("s_barrier")
    for ts in range(2):
        for s in range(4):
            for h in range(2):
                k(f"ds_read_b64_tr_b16 {V(32+16*ts+4*s+2*h,2)}, v12 offset:{(32*s+4*h)*256+128*ts}")
    for db in range(3):
        for hf in range(2):
            for s in range(4):
                k(f"ds_read_b128 {V(64+32*db+16*hf+4*s,4)}, v13 offset:{db*8192+hf*1024+s*64}")
    k(f"s_mul_i32 s36, s28, 18\ns_mul_i32 s37, s29, 3\ns_add_u32 s36, s36, s37\ns_mul_i32 s36, s36, 7\ns_add_u32 s36, s36, s3\ns_lshl_b32 s36, s36, 10\ns_add_u32 s36, s36, {WF}")
    k(f"s_add_u32 s37, s36, 4096\ns_cmp_lt_u32 s3, 3\ns_cselect_b32 s37, s37, {INV}")
    for db in range(3):
        for s in range(4):
            for hf in range(2):
                for ts in range(2):
                    c = V(160+16*db+8*ts+4*hf, 4)
                    k(MF(c, V(64+32*db+16*hf+4*s,4), V(32+16*ts+4*s,4), c if s else "0"))
    for db in range(3):
        for ts in range(2):
            c = 160+16*db+8*ts; o = 208+8*db+4*ts
            for j in range(4): k(f"v_cvt_pk_bf16_f32 v{o+j}, v{c+2*j}, v{c+2*j+1}")
            k(f"buffer_store_dwordx4 {V(o,4)}, v5, s[16:19], s{36+ts} offen")
        k("s_add_u32 s36, s36, 7168\ns_add_u32 s37, s37, 7168")
    k("s_endpgm")
    k.label("prep_wo")
    srd(k, 20, 10, 663552)
    k("s_sub_u32 s28, s2, 256")
    k("s_mul_i32 s29, s28, 36\ns_sub_u32 s30, s28, 16\ns_mul_i32 s30, s30, 288\ns_add_u32 s30, s30, 16")
    k("s_cmp_lt_u32 s28, 16\ns_cselect_b32 s29, s29, s30\ns_cselect_b32 s30, 18, 36\ns_cselect_b32 s31, 4, 72\ns_cselect_b32 s32, 2, 18")
    k("s_lshr_b32 s33, s3, 1\ns_mul_i32 s33, s33, s30\ns_add_u32 s29, s29, s33\ns_and_b32 s33, s3, 1\ns_mul_i32 s33, s33, s31\ns_lshl_b32 s33, s33, 1\ns_add_u32 s29, s29, s33")
    k("s_mul_i32 s29, s29, 1152\ns_mul_i32 s31, s31, 1152\ns_mul_i32 s32, s32, 1152")
    k("s_lshl_b32 s34, s3, 13")
    for kk in range(8):
        k("s_mov_b32 s35, s29")
        if kk >> 2: k("s_add_u32 s35, s35, s31")
        if (kk & 3) >> 1: k("s_add_u32 s35, s35, s32")
        if kk & 1: k("s_add_u32 s35, s35, 1152")
        k(f"s_add_u32 m0, s34, {kk*1024}\nbuffer_load_dwordx4 v5, s[20:23], s35 offen lds")
    k("v_lshrrev_b32 v7, 5, v1\nv_mul_lo_u32 v7, v7, s31\nv_bfe_u32 v8, v1, 4, 1\nv_mul_lo_u32 v8, v8, s32\nv_bfe_u32 v9, v1, 3, 1\nv_mul_u32_u24 v9, 1152, v9")
    k("v_add3_u32 v7, v7, v8, v9\nv_and_b32 v8, 7, v1\nv_lshl_add_u32 v7, v8, 4, v7")
    k("s_lshl_b32 s34, s3, 10\ns_add_u32 m0, s34, 31744\nbuffer_load_dwordx4 v7, s[20:23], s29 offen offset:1024 lds")
    k("v_lshrrev_b32 v10, 2, v3\nv_and_b32 v11, 3, v3\nv_lshl_add_u32 v12, v4, 2, v10\ns_lshl_b32 s35, s3, 5")
    k("v_lshlrev_b32 v13, 3, v11\nv_add_u32 v13, s35, v13\nv_lshl_add_u32 v14, v12, 10, v13\nv_lshl_add_u32 v15, v12, 7, v13\nv_add_u32 v15, 32768, v15")
    k("s_and_b32 s36, s3, 1\ns_lshl_b32 s37, s36, 4\nv_add_u32 v16, s37, v3\nv_lshlrev_b32 v17, 4, v4\nv_lshl_add_u32 v18, v16, 10, v17\nv_lshl_add_u32 v19, v16, 7, v17\nv_add_u32 v19, 32768, v19")
    for j in range(4): k(f"v_mov_b32 v{20+j}, 0x3f803f80")
    k("v_lshl_add_u32 v24, v10, 4, v4\nv_lshlrev_b32 v24, 4, v24\nv_lshl_add_u32 v24, v11, 1, v24\ns_lshl_b32 s37, s36, 3\nv_add_u32 v24, s37, v24\nv_cmp_gt_u32 vcc, 2, v4\nv_cndmask_b32 v24, v6, v24, vcc")
    k.wait_all(); k("s_barrier")
    for i in range(9):
        for h in range(2):
            if i < 8: k(f"ds_read_b64_tr_b16 {V(32+4*i+2*h,2)}, v14 offset:{h*16384+128*i}")
            else: k(f"ds_read_b64_tr_b16 {V(32+4*i+2*h,2)}, v15 offset:{h*2048}")
    for s in range(18):
        if s < 16: k(f"ds_read_b128 {V(72+4*s,4)}, v18 offset:{64*s}")
        else: k(f"ds_read_b128 {V(72+4*s,4)}, v19 offset:{64*(s-16)}")
    k(f"s_mul_i32 s38, s3, 18\ns_add_u32 s38, s38, s28\ns_lshl_b32 s38, s38, 10\ns_add_u32 s38, s38, {WOF}")
    for i in range(9):
        k(f"buffer_store_dwordx4 {V(32+4*i,4)}, v5, s[16:19], s38 offen\ns_add_u32 s38, s38, {4*18*1024}")
    for s in range(18): k(MF("v[28:31]", "v[20:23]", V(72+4*s,4), "v[28:31]" if s else "0"))
    k("s_mov_b32 s31, 0x3ae38e39\nv_mul_f32 v28, s31, v28")
    bf16r(k, "v29", "v28")
    k("v_sub_f32 v28, v28, v29\nv_cmp_eq_u32 vcc, 0, v4\nv_cndmask_b32 v28, v28, v29, vcc\nv_cvt_pk_bf16_f32 v28, v28, v28")
    k(f"s_lshl_b32 s38, s28, 10\ns_add_u32 s38, s38, {WOF + 36*18*1024}\nbuffer_store_short v28, v24, s[16:19], s38 offen")
    k.label("prep_end")
    k("s_endpgm")
    return k


def a1():
    ROWS = 129024
    k = Kern("attn1_kernel", vgpr=224, lds=159744, block=512, grid=256)
    k("s_cmp_ge_u32 s2, 256\ns_cbranch_scc1 a1_end")
    k("s_load_dwordx2 s[12:13], s[0:1], 80")
    k("v_and_b32 v1, 63, v0\nv_lshrrev_b32 v2, 6, v0\nv_readfirstlane_b32 s3, v2")
    k("v_lshlrev_b32 v5, 4, v1")
    k("s_and_b32 s4, s2, 7\ns_lshr_b32 s5, s2, 3\ns_and_b32 s6, s4, 3\ns_lshl_b32 s6, s6, 2\ns_and_b32 s7, s5, 3\ns_add_u32 s6, s6, s7")
    k("s_lshr_b32 s7, s4, 2\ns_lshl_b32 s7, s7, 3\ns_lshr_b32 s5, s5, 2\ns_add_u32 s7, s7, s5")
    k("s_lshl_b32 s8, s6, 3\ns_add_u32 s8, s8, s3")
    k(f"s_lshl_b32 s9, s3, 10\ns_mul_i32 s10, s7, 129024\ns_add_u32 s10, s10, s9\ns_add_u32 s10, s10, {WF}")
    k(f"s_mul_i32 s11, s8, 18432")
    srd(k, 16, 12, WSSZ)
    order = "D X X D X D X D X D X D X D X D X D X D X D X D X D X D X D X D X X".split()
    di = xi = 0
    for o in order:
        if o == "D":
            k(f"s_add_u32 m0, s9, {8192*di}\nbuffer_load_dwordx4 v5, s[16:19], s10 offen lds", tag=f"D{di}")
            k("s_add_u32 s10, s10, 8192"); di += 1
        else:
            k(f"buffer_load_dwordx4 {V(32+4*xi,4)}, v5, s[16:19], s11 offen offset:{1024*(xi%4)}")
            if xi % 4 == 3: k("s_add_u32 s11, s11, 4096")
            xi += 1
    assert di == 16 and xi == 18
    k("v_and_b32 v3, 15, v1\nv_lshrrev_b32 v4, 4, v1\nv_mov_b32 v6, 0x40000000")
    k("v_lshlrev_b32 v7, 4, v3\nv_lshl_add_u32 v8, v4, 10, v7\nv_lshl_add_u32 v9, v4, 3, v7\nv_cmp_gt_u32 vcc, 2, v4\nv_cndmask_b32 v8, v6, v8, vcc\nv_cndmask_b32 v9, v6, v9, vcc")
    k(f"s_lshl_b32 s20, s8, 5\ns_lshl_b32 s21, s7, 1\ns_add_u32 s20, s20, s21\ns_lshl_b32 s20, s20, 10\ns_add_u32 s20, s20, {PQ}")
    k(f"s_lshl_b32 s21, s8, 4\ns_add_u32 s21, s21, s7\ns_lshl_b32 s21, s21, 8\ns_add_u32 s21, s21, {PQL}")
    k(f"s_mul_i32 s22, s3, 3840\ns_add_u32 s22, s22, {ROWS}\nv_mul_u32_u24 v10, 240, v3\nv_add_u32 v10, s22, v10")
    k("v_mul_u32_u24 v11, 80, v4\nv_add_u32 v11, v11, v10\nv_subrev_u32 v11, 160, v11")
    k("v_lshl_add_u32 v12, v4, 3, v10\nv_mul_u32_u24 v13, 40, v4\nv_add_u32 v13, v13, v10")
    k(f"s_mov_b32 s24, {LOG2E}\ns_mov_b32 s25, {LOG2E | 0x80000000}")
    need = [2, 5, 7, 10, 13, 15]
    def reads(ks):
        for t in range(7):
            off = (ks*7 + t) * 1024
            base = "v5" if off < 65536 else "v14"
            k(f"ds_read_b128 {V(104+28*(ks%2)+4*t,4)}, {base} offset:{off % 65536}")
    def mfmas(ks):
        for t in range(7):
            c = V(160+4*t, 4)
            k(MF(c, V(104+28*(ks%2)+4*t,4), V(32+4*ks,4), c if ks else "0"))
    k("v_add_u32 v14, 0x10000, v5")
    for ks in range(18):
        if ks % 3 == 0:
            if ks: mfmas(ks-1)
            k.wait_vm(f"D{need[ks//3]}"); k("s_barrier")
            if ks == 0: k.stamp(1)
            if ks == 9: k.stamp(2)
            reads(ks)
        else:
            reads(ks); mfmas(ks-1)
    mfmas(17)
    k.stamp(3)
    k("v_cvt_pk_bf16_f32 v50, v180, v181\nv_cvt_pk_bf16_f32 v51, v182, v183\nv_cvt_pk_bf16_f32 v52, v184, v185\nv_cvt_pk_bf16_f32 v53, v186, v187")
    k("v_cvt_pk_bf16_f32 v54, v178, v179\nv_mov_b32 v55, 0x3f80")
    k("ds_write_b64 v12, v[50:51] offset:160\nds_write_b64 v12, v[52:53] offset:200")
    k("s_mov_b64 exec, 0xffffffff\nds_write_b64 v13, v[54:55] offset:192\ns_mov_b64 exec, -1")
    k("v_max3_f32 v190, v160, v161, v162\nv_min3_f32 v191, v160, v161, v162")
    for j in range(7): k(f"v_max3_f32 v190, v190, v{163+2*j}, v{164+2*j}\nv_min3_f32 v191, v191, v{163+2*j}, v{164+2*j}")
    k("v_max_f32 v190, v190, v177\nv_min_f32 v191, v191, v177")
    k("v_mul_f32 v192, s25, v190\nv_mul_f32 v193, s24, v191")
    for f in range(18):
        k(f"v_fma_f32 v{196+f}, v{160+f}, s24, v192\nv_fma_f32 v{160+f}, v{160+f}, s25, v193")
        k(f"v_exp_f32 v{196+f}, v{196+f}\nv_exp_f32 v{160+f}, v{160+f}")
        if f == 1: k("v_add_f32 v190, v196, v197\nv_add_f32 v191, v160, v161")
        if f > 1 + 0 and f >= 2: k(f"v_add_f32 v190, v190, v{196+f}\nv_add_f32 v191, v191, v{160+f}")
    k("v_rcp_f32 v190, v190\nv_rcp_f32 v191, v191")
    for j in range(9):
        k(f"v_mul_f32 v{196+2*j}, v{196+2*j}, v190\nv_mul_f32 v{197+2*j}, v{197+2*j}, v190\nv_cvt_pk_bf16_f32 v{32+j}, v{196+2*j}, v{197+2*j}")
    for j in range(9):
        k(f"v_mul_f32 v{160+2*j}, v{160+2*j}, v191\nv_mul_f32 v{161+2*j}, v{161+2*j}, v191\nv_cvt_pk_bf16_f32 v{41+j}, v{160+2*j}, v{161+2*j}")
    k("s_mov_b32 exec_lo, 0")
    for j in range(4): k(f"ds_write_b128 v11, {V(32+4*j,4)} offset:{16*j}")
    k("ds_write_b64 v11, v[48:49] offset:64")
    k("s_mov_b32 exec_lo, -1")
    for j in range(4): k(f"buffer_store_dwordx4 {V(32+4*j,4)}, v8, s[16:19], s20 offen offset:{256*j}")
    k("buffer_store_dwordx2 v[48:49], v9, s[16:19], s21 offen")
    k("s_cmp_ge_u32 s3, 3\ns_cselect_b32 s26, 1, 0\ns_mul_i32 s27, s26, 3\ns_sub_u32 s27, s3, s27")
    k(f"s_mul_i32 s28, s26, 80\ns_lshl_b32 s29, s27, 3\ns_cmp_lt_u32 s27, 2\ns_cselect_b32 s29, s29, 64\ns_cselect_b32 s30, 16, 0\ns_add_u32 s28, s28, s29\ns_add_u32 s28, s28, {ROWS}")
    k(f"s_mul_i32 s29, s26, 40\ns_add_u32 s29, s29, {ROWS+160}")
    k("v_lshrrev_b32 v56, 2, v3\nv_and_b32 v57, 3, v3\nv_lshl_add_u32 v56, v4, 3, v56\nv_mul_u32_u24 v56, 240, v56")
    k("v_mul_u32_u24 v58, s30, v57\nv_add3_u32 v58, v58, v56, s28")
    k("v_add_u32 v60, s29, v56\nv_lshl_add_u32 v59, v57, 3, v60")
    k(f"s_lshl_b32 s31, s7, 4\ns_add_u32 s31, s31, s6\ns_mul_i32 s31, s31, 6400\ns_mul_i32 s32, s26, 3200\ns_add_u32 s31, s31, s32\ns_add_u32 s31, s31, {KVP}")
    k.stamp(4)
    k.wait_all(vm=False); k("s_barrier")
    k.stamp(5)
    k("s_cmp_ge_u32 s3, 6\ns_cbranch_scc1 a1_end")
    for s in range(4):
        for h in range(2):
            o = (32*s + 4*h) * 240
            k(f"ds_read_b64_tr_b16 {V(64+4*s+2*h,2)}, v58 offset:{o}\nds_read_b64_tr_b16 {V(80+4*s+2*h,2)}, v59 offset:{o}\nds_read_b64_tr_b16 {V(96+4*s+2*h,2)}, v60 offset:{o+32}")
    for s in range(4):
        k(MF("v[112:115]", V(64+4*s,4), V(80+4*s,4), "v[112:115]" if s else "0"))
        k(MF("v[116:119]", V(64+4*s,4), V(96+4*s,4), "v[116:119]" if s else "0"))
    k("s_cmp_eq_u32 s27, 2\ns_cbranch_scc1 a1_mt2")
    k("s_lshl_b32 s32, s27, 4\nv_lshl_add_u32 v61, v1, 5, s32")
    k("v_lshl_add_u32 v62, v3, 2, v4\nv_lshl_add_u32 v62, v62, 5, s32\nv_add_u32 v62, 2560, v62\nv_cmp_gt_u32 vcc, 4, v3\nv_cndmask_b32 v62, v6, v62, vcc")
    k("buffer_store_dwordx4 v[112:115], v61, s[16:19], s31 offen\nbuffer_store_dwordx4 v[116:119], v62, s[16:19], s31 offen")
    k("s_endpgm")
    k.label("a1_mt2")
    k("v_xor_b32 v63, s26, v4\nv_lshl_add_u32 v63, v3, 1, v63\nv_lshlrev_b32 v63, 4, v63")
    k("v_add_u32 v61, 2048, v63\nv_add_u32 v62, 3072, v63\nv_cmp_gt_u32 vcc, 2, v4\nv_cndmask_b32 v61, v6, v61, vcc\nv_cndmask_b32 v62, v6, v62, vcc")
    k("v_cmp_gt_u32 vcc, 4, v3\nv_cndmask_b32 v62, v6, v62, vcc")
    k("v_cmp_eq_u32 vcc, 0, v4\ns_nop 7")
    for j in range(8): k(f"v_cndmask_b32 v{112+j}, 0, v{112+j}, vcc")
    k("buffer_store_dwordx4 v[112:115], v61, s[16:19], s31 offen\nbuffer_store_dwordx4 v[116:119], v62, s[16:19], s31 offen")
    k.label("a1_end")
    k("s_endpgm")
    return k

def a2():
    k = Kern("attn2_kernel", vgpr=128, lds=4096, block=512, grid=256)
    k("s_cmp_ge_u32 s2, 256\ns_cbranch_scc1 a2_end")
    k("s_load_dwordx2 s[12:13], s[0:1], 80")
    k("v_and_b32 v1, 63, v0\nv_lshrrev_b32 v2, 6, v0\nv_readfirstlane_b32 s3, v2")
    k("s_and_b32 s7, s2, 15\ns_lshr_b32 s6, s2, 4\ns_lshl_b32 s8, s6, 3\ns_add_u32 s8, s8, s3")
    k("v_mov_b32 v6, 0x40000000\nv_lshlrev_b32 v7, 4, v0\nv_cmp_gt_u32 vcc, 400, v0\nv_cndmask_b32 v7, v6, v7, vcc")
    k(f"s_mul_i32 s9, s7, 102400\ns_add_u32 s9, s9, {KVP}")
    srd(k, 16, 12, WSSZ)
    for j in range(16):
        k(f"buffer_load_dwordx4 {V(32+4*j,4)}, v7, s[16:19], s9 offen\ns_add_u32 s9, s9, 6400")
    k("v_and_b32 v3, 15, v1\nv_lshrrev_b32 v4, 4, v1\nv_lshlrev_b32 v5, 4, v1")
    k("v_cmp_eq_u32 vcc, 0, v4\nv_cndmask_b32 v8, v6, v5, vcc")
    k(f"s_lshl_b32 s20, s8, 5\ns_lshl_b32 s21, s7, 1\ns_add_u32 s20, s20, s21\ns_lshl_b32 s20, s20, 10\ns_add_u32 s20, s20, {PQ}")
    k(f"s_lshl_b32 s21, s8, 4\ns_add_u32 s21, s21, s7\ns_lshl_b32 s21, s21, 8\ns_add_u32 s21, s21, {PQL}")
    k("buffer_load_dwordx4 v[96:99], v5, s[16:19], s20 offen\nbuffer_load_dwordx4 v[100:103], v5, s[16:19], s20 offen offset:1024\nbuffer_load_dwordx4 v[104:107], v8, s[16:19], s21 offen")
    k("v_mov_b32 v9, 1472\nv_add_u32 v10, 1024, v5\nv_cndmask_b32 v10, v9, v10, vcc")
    k("v_and_b32 v11, 3, v3\nv_lshl_add_u32 v12, v11, 2, v4\nv_lshlrev_b32 v12, 4, v12\nv_lshlrev_b32 v11, 4, v11\nv_add_u32 v11, 1536, v11\nv_cndmask_b32 v11, v9, v11, vcc")
    k("v_lshlrev_b32 v13, 3, v0")
    k(f"s_mul_i32 s22, s8, 18\ns_add_u32 s23, s22, s7\ns_lshl_b32 s23, s23, 10\ns_add_u32 s23, s23, {OF}")
    k(f"s_lshr_b32 s24, s7, 3\ns_add_u32 s22, s22, s24\ns_lshl_b32 s22, s22, 10\ns_bfe_u32 s24, s7, 0x20001\ns_lshl_b32 s24, s24, 8\ns_add_u32 s22, s22, s24\ns_and_b32 s24, s7, 1\ns_lshl_b32 s24, s24, 3\ns_add_u32 s22, s22, s24\ns_add_u32 s22, s22, {OF + 16384}")
    for c in range(4): k(f"v_add_f32 v{32+c}, v{32+c}, v{36+c}")
    for j in range(2, 16):
        for c in range(4): k(f"v_add_f32 v{32+c}, v{32+c}, v{32+4*j+c}")
    k("v_cvt_pk_bf16_f32 v32, v32, v33\nv_cvt_pk_bf16_f32 v33, v34, v35\nds_write_b64 v13, v[32:33]")
    k.stamp(1)
    k.wait_all(vm=False); k("s_barrier")
    k.stamp(2)
    for hh in range(2):
        b = 40 + 16*hh; o = 1600*hh
        k(f"ds_read_b128 {V(b,4)}, v5 offset:{o}\nds_read_b128 {V(b+4,4)}, v12 offset:{o+1280}\nds_read_b128 {V(b+8,4)}, v10 offset:{o}\nds_read_b128 {V(b+12,4)}, v11 offset:{o}")
    for hh in range(2):
        b = 40 + 16*hh; c = 72 + 8*hh; pq = V(96+4*hh, 4)
        k(MF(V(c,4), V(b,4), pq, "0")); k(MF(V(c+4,4), V(b+4,4), pq, "0"))
    for hh in range(2):
        b = 40 + 16*hh; c = 72 + 8*hh
        k(MF(V(c,4), V(b+8,4), "v[104:107]", V(c,4))); k(MF(V(c+4,4), V(b+12,4), "v[104:107]", V(c+4,4)))
    for hh in range(2):
        c = 72 + 8*hh
        bf16r(k, f"v{c+6}", f"v{c+6}")
        k(f"v_add_f32 v{c+6}, 0x358637bd, v{c+6}")
        bf16r(k, f"v{c+6}", f"v{c+6}")
        k(f"v_rcp_f32 v{c+6}, v{c+6}")
    for hh in range(2):
        c = 72 + 8*hh
        for j in range(6): k(f"v_mul_f32 v{c+j}, v{c+j}, v{c+6}")
        k(f"v_cvt_pk_bf16_f32 v{88+2*hh}, v{c}, v{c+1}\nv_cvt_pk_bf16_f32 v{89+2*hh}, v{c+2}, v{c+3}\nv_cvt_pk_bf16_f32 v{92+hh}, v{c+4}, v{c+5}")
    k("buffer_store_dwordx4 v[88:91], v5, s[16:19], s23 offen\nbuffer_store_dwordx2 v[92:93], v8, s[16:19], s22 offen")
    k.label("a2_end")
    k("s_endpgm")
    return k

def a3():
    XO = 40960; MO = XO + 10240
    k = Kern("attn3_kernel", vgpr=256, lds=MO + 128, block=320, grid=256)
    k("s_cmp_ge_u32 s2, 256\ns_cbranch_scc1 a3_end")
    k("s_load_dwordx2 s[12:13], s[0:1], 80\ns_load_dwordx2 s[4:5], s[0:1], 0")
    k("v_and_b32 v1, 63, v0\nv_lshrrev_b32 v2, 6, v0\nv_readfirstlane_b32 s3, v2")
    k("v_lshlrev_b32 v5, 4, v1")
    k("s_and_b32 s7, s2, 3\ns_lshr_b32 s6, s2, 2")
    k(f"s_lshl_b32 s9, s3, 10\ns_mul_i32 s10, s6, 36864\ns_add_u32 s10, s10, s9\ns_add_u32 s10, s10, {OF}")
    srd(k, 16, 12, WSSZ)
    for i in range(8):
        k(f"s_add_u32 m0, s9, {5120*i}\nbuffer_load_dwordx4 v5, s[16:19], s10 offen lds\ns_add_u32 s10, s10, 5120")
    srd(k, 20, 4, 2359296)
    k("s_mul_i32 s11, s6, 36864\ns_mul_i32 s14, s7, 288\ns_add_u32 s11, s11, s14")
    for r in range(2):
        k(f"v_add_u32 v7, {320*r}, v0\nv_mul_u32_u24 v8, 3641, v7\nv_lshrrev_b32 v8, 16, v8\nv_mul_u32_u24 v9, 18, v8\nv_sub_u32 v9, v7, v9\nv_mul_u32_u24 v8, 1152, v8\nv_lshl_add_u32 v8, v9, 4, v8")
        k(f"s_add_u32 m0, s9, {XO + 5120*r}\nbuffer_load_dwordx4 v8, s[20:23], s11 offen lds", tag="DX")
    k("v_and_b32 v3, 15, v1\nv_lshrrev_b32 v4, 4, v1\nv_mov_b32 v6, 0x40000000")
    k("s_and_b32 s14, s7, 1\ns_lshl_b32 s15, s3, 1\ns_add_u32 s15, s15, s14")
    k("s_xor_b32 s24, s14, 1\ns_lshl_b32 s24, s24, 3\ns_cmp_lt_u32 s3, 4\ns_cselect_b32 s15, s15, s24")
    k("s_mul_i32 s24, s7, 9\ns_add_u32 s24, s24, s15\ns_add_u32 s25, s24, 1\ns_cselect_b32 s25, s25, 36".replace("s_add_u32 s25, s24, 1\ns_cselect_b32 s25, s25, 36", "s_add_u32 s25, s24, 1\ns_cmp_lt_u32 s3, 4\ns_cselect_b32 s25, s25, 36"))
    k(f"s_mul_i32 s26, s24, 18432\ns_add_u32 s26, s26, {WOF}\ns_mul_i32 s27, s25, 18432\ns_add_u32 s27, s27, {WOF}")
    k("s_cmp_lt_u32 s3, 4\ns_cselect_b32 s28, 16, 2\nv_cmp_gt_u32 vcc, s28, v3\nv_cndmask_b32 v10, v6, v5, vcc")
    for ks in range(18):
        k(f"buffer_load_dwordx4 {V(64+8*ks,4)}, v5, s[16:19], s26 offen offset:{1024*(ks%4)}\nbuffer_load_dwordx4 {V(68+8*ks,4)}, v10, s[16:19], s27 offen offset:{1024*(ks%4)}")
        if ks % 4 == 3: k("s_add_u32 s26, s26, 4096\ns_add_u32 s27, s27, 4096")
    k(f"v_lshlrev_b32 v11, 2, v3\ns_lshl_b32 s29, s6, 7\ns_add_u32 s29, s29, {MX}\nbuffer_load_dword v12, v11, s[16:19], s29 offen\nbuffer_load_dword v13, v11, s[16:19], s29 offen offset:64")
    k(f"v_mul_u32_u24 v14, 288, v3\nv_lshl_add_u32 v14, v4, 3, v14\ns_lshl_b32 s30, s15, 5\ns_add_u32 s30, s30, {XO}\nv_add_u32 v14, s30, v14")
    k(f"v_add_u32 v15, {MO}, v11")
    k.stamp(1)
    k.wait_vm("DX"); k("s_barrier")
    k.stamp(2)
    def rd(ks):
        k(f"ds_read_b128 {V(16+8*(ks%3),4)}, v5 offset:{ks*1024}\nds_read_b128 {V(20+8*(ks%3),4)}, v5 offset:{(18+ks)*1024}")
    rd(0); rd(1)
    for tt in range(2):
        for t in range(2): k(f"ds_read_b64 {V(208+4*tt+2*t,2)}, v14 offset:{tt*4608+32*t}")
    for ks in range(18):
        if ks + 2 < 18: rd(ks + 2)
        for t in range(2):
            for tt in range(2):
                c = V(40 + 8*tt + 4*t, 4)
                k(MF(c, V(64+8*ks+4*t,4), V(16+8*(ks%3)+4*tt,4), c if ks else "0"))
    k.stamp(3)
    k("s_cmp_lt_u32 s3, 4\ns_cbranch_scc1 a3_nomean")
    k.skip_begin()
    for tt in range(2):
        k(f"v_add_f32 v{44+8*tt}, v{44+8*tt}, v{45+8*tt}\nv_add_f32 v{44+8*tt}, v{44+8*tt}, v{12+tt}")
        bf16r(k, f"v{44+8*tt}", f"v{44+8*tt}")
    k("s_mov_b64 exec, 0xffff\nds_write_b32 v15, v44\nds_write_b32 v15, v52 offset:64\ns_mov_b64 exec, -1")
    k.wait_all(vm=False)
    k.skip_end("a3_nomean")
    k("s_barrier")
    k.stamp(4)
    k("ds_read_b32 v12, v15\nds_read_b32 v13, v15 offset:64")
    k("s_mov_b32 s31, 0xffff0000")
    for tt in range(2):
        for t in range(2):
            for hf in range(2):
                c = 40 + 8*tt + 4*t + 2*hf; xr = 208 + 4*tt + 2*t + hf; ho = 216 + 4*tt + 2*t + hf; co = 224 + 4*tt + 2*t + hf
                k(f"v_cvt_pk_bf16_f32 v56, v{c}, v{c+1}\nv_lshlrev_b32 v57, 16, v56\nv_and_b32 v56, s31, v56")
                k(f"v_lshlrev_b32 v58, 16, v{xr}\nv_and_b32 v59, s31, v{xr}\nv_add_f32 v57, v57, v58\nv_add_f32 v56, v56, v59")
                k(f"v_cvt_pk_bf16_f32 v{ho}, v57, v56\nv_lshlrev_b32 v57, 16, v{ho}\nv_and_b32 v56, s31, v{ho}")
                k(f"v_sub_f32 v57, v57, v{12+tt}\nv_sub_f32 v56, v56, v{12+tt}\nv_cvt_pk_bf16_f32 v{co}, v57, v56")
                sq = 60 + 2*tt + t
                if hf == 0: k(f"v_mul_f32 v{sq}, v57, v57\nv_fmac_f32 v{sq}, v56, v56")
                else: k(f"v_fmac_f32 v{sq}, v57, v57\nv_fmac_f32 v{sq}, v56, v56")
    k.stamp(5)
    k(f"s_lshl_b32 s32, s6, 1\ns_mul_i32 s32, s32, 18\ns_lshr_b32 s33, s24, 1\ns_add_u32 s32, s32, s33\ns_lshl_b32 s32, s32, 10\ns_add_u32 s33, s32, {HR}\ns_add_u32 s32, s32, {HC}")
    k("s_add_u32 s34, s32, 18432\ns_add_u32 s35, s33, 18432")
    k(f"v_mul_u32_u24 v11, 80, v3\nv_cmp_eq_u32 vcc, 0, v4\nv_cndmask_b32 v11, v6, v11, vcc\ns_mul_i32 s36, s6, 2560\ns_mul_i32 s37, s7, 5\ns_add_u32 s37, s37, s3\ns_lshl_b32 s37, s37, 2\ns_add_u32 s36, s36, s37\ns_add_u32 s36, s36, {SSQ}")
    k("s_cmp_lt_u32 s3, 4\ns_cbranch_scc0 a3_single")
    k("buffer_store_dwordx4 v[224:227], v5, s[16:19], s32 offen\nbuffer_store_dwordx4 v[228:231], v5, s[16:19], s34 offen")
    k("buffer_store_dwordx4 v[216:219], v5, s[16:19], s33 offen\nbuffer_store_dwordx4 v[220:223], v5, s[16:19], s35 offen")
    k("v_add_f32 v60, v60, v61\nv_add_f32 v62, v62, v63\ns_branch a3_ssq")
    k.label("a3_single")
    k("s_and_b32 s37, s24, 1\ns_lshl_b32 s37, s37, 3\nv_add_u32 v10, s37, v5\ns_nop 1")
    k("buffer_store_dwordx2 v[224:225], v10, s[16:19], s32 offen\nbuffer_store_dwordx2 v[228:229], v10, s[16:19], s34 offen")
    k("buffer_store_dwordx2 v[216:217], v10, s[16:19], s33 offen\nbuffer_store_dwordx2 v[220:221], v10, s[16:19], s35 offen")
    k.label("a3_ssq")
    k("s_nop 1")
    for r in (60, 62):
        k(f"v_mov_b32 v{r+1}, v{r}\nv_permlane32_swap_b32 v{r}, v{r+1}\nv_add_f32 v{r}, v{r}, v{r+1}")
        k(f"v_mov_b32 v{r+1}, v{r}\nv_permlane16_swap_b32 v{r}, v{r+1}\nv_add_f32 v{r}, v{r}, v{r+1}")
    k("buffer_store_dword v60, v11, s[16:19], s36 offen\nbuffer_store_dword v62, v11, s[16:19], s36 offen offset:1280")
    k.label("a3_end")
    k("s_endpgm")
    return k

def kernels():
    return [k0(), a1(), a2(), a3(), k3(), k4()]

if __name__ == "__main__":
    if len(sys.argv) > 2: Kern.prof = 0
    ks = kernels()
    print(ks[4].log)
    out = sys.argv[1] if len(sys.argv) > 1 else "cur.s"
    if len(sys.argv) > 2:
        for i, k in enumerate(ks): k.prof = PROF + i * 0x100000
    build_file(ks, out)
    for k in ks: print(k.name, "nops", k.nnops, "waits", k.nwaits)
```

```python
import sys
sys.path.insert(0, 'dev')
from asmlib import *
from wsmap import *

def cost(I): return 8 if I.cls == 'trans' else 4

def k3(G1=3, defer=2, store_mod=""):
    k = Kern("ffn_kernel", vgpr=256, agpr=256, lds=163840, block=256, grid=256)
    PB = 11
    vW, vWH, vW2, vH0, vH1 = 4, 5, 6, 7, 8
    vT = [[9, 10], [11, 12], [13, 14]]; vTH = [15, 16, 17]; vR = [18, 19, 20]; vPW, vPW8 = 21, 22
    vS = [23, 24, 25, 26]; C1 = [27, 28, 29, 30]; C2 = [31, 32, 33, 34]
    AF = [48, 64]; ACC = [80, 144]; HCV = 208; TMP = 240
    sK = lambda ks: f"s{40+ks}"
    sJ = lambda j: f"s{58+j}"
    def hc(ks, tt): return A(16*ks + 4*tt, 4) if ks < 16 else V(HCV + 16*(ks-16) + 4*tt, 4)
    def pf(j, tt): return A(16*j + 4*tt, 4)

    k("s_cmp_ge_u32 s2, 256\ns_cbranch_scc1 ffn_end")
    k("s_load_dwordx4 s[4:7], s[0:1], 40\ns_load_dwordx2 s[8:9], s[0:1], 56\ns_load_dwordx2 s[12:13], s[0:1], 80")
    k("v_and_b32 v1, 63, v0\nv_lshrrev_b32 v2, 6, v0\nv_readfirstlane_b32 s3, v2")
    k("s_and_b32 s10, s2, 7\ns_bfe_u32 s11, s2, 0x10003\ns_lshr_b32 s14, s2, 4")
    k(f"v_lshlrev_b32 v{vH0}, 4, v1\nv_add_u32 v{vH1}, {18432-1024}, v{vH0}")
    k("v_lshrrev_b32 v2, 3, v1\nv_and_b32 v3, 6, v2\nv_and_b32 v35, 7, v1\nv_xor_b32 v3, v3, v35\nv_lshlrev_b32 v3, 4, v3")
    k("s_lshl_b32 s67, s3, 11\ns_lshl_b32 s68, s3, 10\ns_lshl_b32 s15, s3, 3\nv_add_u32 v2, s15, v2")
    k(f"v_mul_u32_u24 v{vW}, 9216, v2\nv_add_u32 v{vW}, v{vW}, v3\nv_mul_u32_u24 v{vW2}, 1152, v2\nv_add_u32 v{vW2}, v{vW2}, v3")
    k(f"s_lshl_b32 s69, s14, 3\ns_lshl_b32 s15, s3, 1\ns_add_u32 s69, s69, s15\ns_mul_i32 s69, s69, 18432\ns_add_u32 s69, s69, {HC}")
    k("s_mul_i32 s71, s10, 576\ns_mul_i32 s72, s11, 320\ns_add_u32 s72, s72, s71")
    k(f"s_lshl_b32 {sK(0)}, s72, 1")
    for ks in range(1, 18): k(f"s_add_u32 {sK(ks)}, {sK(ks-1)}, 294912")
    srd(k, 16, 12, WSSZ)
    srd(k, 20, 4, 5308416)
    k("s_sub_u32 s24, s6, 1024\ns_subb_u32 s25, s7, 0\ns_mov_b32 s26, 5309440\ns_mov_b32 s27, 0x20000")

    O2 = []
    for n in range(defer): O2 += [(n, j) for j in range(6)]
    for jj in ((6, 7),):
        for n in range(defer): O2 += [(n, j) for j in jj]
    O2 += [(n, 8) for n in range(defer)]
    for n in range(defer, 9): O2 += [(n, j) for j in range(9)]
    S2 = 81
    NS = S2 + (81 + 1) // 2
    sP67 = S2 + 3*defer - 1
    i8 = O2.index((0, 8)); sP8 = S2 + i8 // 2 - 1
    B = set([-1, 0, 1, 2, 3, 4, 5] + list(range(6, 18, 2)) + list(range(18, NS, G1)) + [sP67, sP8, 72])
    B = sorted(b for b in B if b < NS - 1)
    for f in (sP67, sP8):
        for b in (f - 1, f + 1):
            if b in B and b not in (sP67, sP8): B.remove(b)
    pb = lambda r: max(b for b in B if b <= r)
    rb = lambda r: min([b for b in B if b > r] + [10**6])
    units = []
    for s in range(NS):
        if s < 18: units.append(('H', s, s))
        units.append(('W', s, s))
    slot_of = {}
    free = list(range(20)); held = []
    def pdead(sl):
        if sl < PB: return 10**6
        j = sl - PB
        return 18*(j//2 + 1) if j < 8 else S2
    state = dict(sp=0, nsp=0, m0=None)
    def dma_ops(u, sl):
        kind, s, _ = u
        tag = f"{kind}{s}"; ops = []
        base = sl * 8192
        if kind == 'H':
            ops += [(f"s_add_u32 m0, s67, {base}", None), (f"buffer_load_dwordx4 v{vH0}, s[16:19], s69 offen lds", tag), (f"buffer_load_dwordx4 v{vH1}, s[16:19], s69 offen offset:1024 lds", tag), ("s_add_u32 s69, s69, 1024", None)]
        elif s < 72:
            sp, ks = divmod(s, 18)
            if sp != state['sp']: ops.append((f"v_add_u32 v{vW}, 128, v{vW}", None)); state['sp'] = sp
            ops += [(f"s_add_u32 m0, s67, {base}", None), (f"buffer_load_dwordx4 v{vW}, s[20:23], {sK(ks)} offen lds", tag), (f"buffer_load_dwordx4 v{vW}, s[24:27], {sK(ks)} offen offset:1024 lds", tag)]
        elif s < S2:
            for kp in range(2):
                ops += [(f"s_add_u32 m0, s68, {base + 4096*kp}", None), (f"buffer_load_dwordx4 v{vWH}, s[28:31], {sK(2*(s-72)+kp)} offen lds", tag)]
        else:
            ops.append((f"s_add_u32 m0, s67, {base}", None))
            for par in range(2):
                i = 2*(s - S2) + par
                if i >= 81: continue
                n, j = O2[i]
                if n != state['nsp']:
                    ops.append((f"v_add_u32 v{vW2}, {((n - state['nsp'])*128) & 0xffffffff}, v{vW2}", None)); state['nsp'] = n
                ops.append((f"buffer_load_dwordx4 v{vW2}, s[{32+4*par}:{35+4*par}], {sJ(j)} offen{' offset:1024' if par else ''} lds", tag))
        return ops
    upos = 0
    def issue(step, cap):
        nonlocal upos
        ops = []
        while cap > 0 and upos < len(units):
            u = units[upos]; r = rb(u[2] - 1)
            cand = [sl for sl in free if pdead(sl) >= r]
            if not cand: break
            sl = max(cand); free.remove(sl); slot_of[(u[0], u[1])] = sl; held.append((r, sl))
            assert step < pb(u[2] - 1) or step == -2, (step, u)
            ops += dma_ops(u, sl); upos += 1; cap -= 1
        return ops
    def reads_for(s):
        ops = []
        sl = slot_of[('W', s)]; reg, off = divmod(sl * 8192, 65536); af = AF[s % 2]
        if s < 18:
            hs = slot_of[('H', s)]; hr, ho = divmod(hs * 8192, 65536)
            hops = [f"ds_read_b128 {hc(s, tt)}, v{vR[hr]} offset:{ho + 1024*tt}" for tt in range(4)]
        else: hops = []
        if 72 <= s < S2:
            for kp in range(2):
                for m in range(2):
                    for h in range(2): ops.append(f"ds_read_b64_tr_b16 {V(af + 8*kp + 4*m + 2*h, 2)}, v{vTH[reg]} offset:{off + 4096*kp + 2048*m + 1024*h}")
        else:
            for m in range(2):
                if s >= S2 and 2*(s - S2) + m >= 81: continue
                for t in range(2):
                    for h in range(2): ops.append(f"ds_read_b64_tr_b16 {V(af + 8*m + 4*t + 2*h, 2)}, v{vT[reg][t]} offset:{off + 1024*m + 4096*h}")
        return ops[:2] + hops + ops[2:]
    acc2 = {}
    accs = [ACC[0] + 32, HCV, ACC[1], ACC[1] + 32]
    for n in range(9): acc2[n] = accs[n % (defer + 1)]
    def mfmas(s):
        af = AF[s % 2]; out = []
        if s < 72:
            sp, ks = divmod(s, 18); a = ACC[sp % 2]
            for m in range(4):
                for tt in range(4):
                    c = V(a + 16*m + 4*tt, 4); out.append(MF(c, V(af + 4*m, 4), hc(ks, tt), c if ks else "0"))
        elif s < S2:
            for kp in range(2):
                ks = 2*(s - 72) + kp
                for m in range(2):
                    for tt in range(4):
                        c = V(ACC[0] + 16*m + 4*tt, 4); out.append(MF(c, V(af + 8*kp + 4*m, 4), hc(ks, tt), c if ks else "0"))
        else:
            for par in range(2):
                i = 2*(s - S2) + par
                if i >= 81: continue
                n, j = O2[i]
                for t in range(2):
                    for tt in range(4):
                        c = V(acc2[n] + 16*t + 4*tt, 4); out.append(MF(c, V(af + 8*par + 4*t, 4), pf(j, tt), c if j else "0"))
        return out
    def silu(sp):
        ops = []
        if sp < 4: a = ACC[sp % 2]; nt = 2; bo = 32
        else: a = ACC[0]; nt = 1; bo = 16
        for tt in range(4):
            for t in range(nt):
                ga = a + 16*t + 4*tt; ub = ga + bo
                for r in range(4): ops += [f"v_mul_f32 v{ub+r}, v{ga+r}, v{ub+r}", f"v_mul_f32 v{ga+r}, v{ga+r}, v{C1[tt]}"]
                for r in range(4): ops.append(f"v_exp_f32 v{ga+r}, v{ga+r}")
                for r in range(4): ops.append(f"v_fma_f32 v{ga+r}, v{ga+r}, v{C2[tt]}, v{C2[tt]}")
                for r in range(4): ops.append(f"v_rcp_f32 v{ga+r}, v{ga+r}")
                for r in range(4): ops.append(f"v_mul_f32 v{ub+r}, v{ub+r}, v{ga+r}")
                d = a + 4*tt + 2*t
                ops += [f"v_cvt_pk_bf16_f32 v{d}, v{ub}, v{ub+1}", f"v_cvt_pk_bf16_f32 v{d+1}, v{ub+2}, v{ub+3}"]
            if sp < 4: ops.append(f"ds_write_b128 v{vPW}, {V(a + 4*tt, 4)} offset:{16384*sp + 1024*tt}")
            else: ops.append(f"ds_write_b64 v{vPW8}, {V(a + 4*tt, 2)} offset:{1024*tt}")
        return [Ins(o, f"silu{sp}") for o in ops]
    def epi(n):
        a = acc2[n]; ops = []
        for tt in range(4):
            d = a + 4*tt
            ops += [f"v_cvt_pk_bf16_f32 v{d}, v{d}, v{d+1}", f"v_cvt_pk_bf16_f32 v{d+1}, v{d+2}, v{d+3}", f"v_cvt_pk_bf16_f32 v{d+2}, v{d+16}, v{d+17}", f"v_cvt_pk_bf16_f32 v{d+3}, v{d+18}, v{d+19}"]
            ops.append(f"buffer_store_dwordx4 {V(d,4)}, v{vS[tt]}, s[16:19], s70 offen {store_mod}")
        ops.append("s_add_u32 s70, s70, 2048")
        return [Ins(o, f"epi{n}") for o in ops]

    first = issue(-2, 4)
    for o, t in first: k(o, tag=t)
    k(f"v_and_b32 v2, 15, v1\nv_lshrrev_b32 v3, 4, v1\nv_mul_u32_u24 v35, 80, v2\nv_lshl_add_u32 v36, v3, 2, v35\nv_lshl_add_u32 v35, v3, 4, v35")
    k(f"s_lshr_b32 s73, s3, 1\ns_and_b32 s74, s3, 1\ns_lshl_b32 s15, s14, 1\ns_add_u32 s15, s15, s73\ns_mul_i32 s15, s15, 5120\ns_add_u32 s15, s15, {SSQ}")
    for tt in range(4):
        k(f"buffer_load_dwordx4 {V(TMP + 4*tt, 4)}, v35, s[16:19], s15 offen offset:{1280*tt}\nbuffer_load_dword v{C2[tt]}, v36, s[16:19], s15 offen offset:{1280*tt + 64}")
    for o, t in issue(-2, 16): k(o, tag=t)
    k("v_lshrrev_b32 v37, 2, v2\nv_and_b32 v38, 1, v3\nv_lshl_add_u32 v37, v38, 2, v37")
    k("s_lshl_b32 s15, s74, 2\nv_and_b32 v39, 6, v37\nv_xor_b32 v39, s15, v39\nv_lshlrev_b32 v39, 4, v39\nv_lshl_add_u32 v39, v37, 7, v39")
    k(f"v_and_b32 v40, 3, v2\nv_lshl_add_u32 v39, v40, 3, v39\nv_lshrrev_b32 v41, 1, v3\nv_lshl_add_u32 v{vT[0][0]}, v41, 11, v39\nv_xor_b32 v{vT[0][1]}, 32, v{vT[0][0]}")
    k(f"s_lshl_b32 s15, s73, 12\nv_add_u32 v{vR[0]}, s15, v{vH0}")
    for r in (1, 2):
        k(f"v_add_u32 v{vT[r][0]}, {65536*r}, v{vT[0][0]}\nv_add_u32 v{vT[r][1]}, {65536*r}, v{vT[0][1]}\nv_add_u32 v{vR[r]}, {65536*r}, v{vR[0]}")
    late = []
    L = late.append
    L("v_lshrrev_b32 v37, 2, v2"); L("v_lshl_add_u32 v37, v3, 2, v37"); L("v_xor_b32 v39, s74, v38"); L("v_lshlrev_b32 v39, 5, v39"); L("v_lshl_add_u32 v39, v37, 6, v39"); L(f"v_lshl_add_u32 v{vTH[0]}, v40, 3, v39")
    for r in (1, 2): L(f"v_add_u32 v{vTH[r]}, {65536*r}, v{vTH[0]}")
    L("s_lshl_b32 s15, s74, 13"); L(f"s_add_u32 s15, s15, {PB*8192}"); L(f"v_add_u32 v{vPW}, s15, v{vR[0]}")
    L("s_lshl_b32 s15, s74, 3"); L(f"s_add_u32 s15, s15, {(PB+8)*8192}"); L(f"v_add_u32 v{vPW8}, s15, v{vR[0]}")
    for tt in range(4): L(f"v_add_u32 v{vS[tt]}, {18432*tt}, v{vH0}")
    L("v_lshrrev_b32 v37, 2, v1"); L("s_lshl_b32 s15, s74, 4"); L("v_add_u32 v37, s15, v37"); L("v_lshrrev_b32 v39, 3, v1"); L("v_and_b32 v39, 2, v39"); L("v_and_b32 v41, 3, v1"); L("v_xor_b32 v39, v39, v41")
    L(f"v_mul_u32_u24 v{vWH}, 9216, v37"); L(f"v_lshl_add_u32 v{vWH}, v39, 4, v{vWH}")
    L("s_cmp_eq_u32 s73, 0"); L("s_cselect_b32 s28, s4, s6"); L("s_cselect_b32 s29, s5, s7"); L("s_movk_i32 s75, -64"); L("s_cmp_eq_u32 s11, 0"); L("s_cselect_b32 s15, 512, s75"); L("s_cselect_b32 s75, 0, -1"); L("s_add_u32 s28, s28, s15"); L("s_addc_u32 s29, s29, s75")
    L("s_mov_b32 s30, 5308416"); L("s_mov_b32 s31, 0x20000")
    L("s_mov_b32 s32, s8"); L("s_mov_b32 s33, s9"); L("s_mov_b32 s34, 5308416"); L("s_mov_b32 s35, 0x20000")
    L("s_sub_u32 s36, s8, 1024"); L("s_subb_u32 s37, s9, 0"); L("s_mov_b32 s38, 5309440"); L("s_mov_b32 s39, 0x20000")
    L(f"s_mul_i32 {sJ(0)}, s72, 1152")
    for j in range(1, 8): L(f"s_add_u32 {sJ(j)}, {sJ(j-1)}, 36864")
    L("s_lshl_b32 s15, s11, 5"); L("s_add_u32 s15, s15, s71"); L("s_add_u32 s15, s15, 256"); L(f"s_mul_i32 {sJ(8)}, s15, 1152")
    L("s_lshl_b32 s70, s10, 1"); L("s_add_u32 s70, s70, s11"); L("s_lshl_b32 s70, s70, 7"); L("s_lshl_b32 s15, s14, 3"); L("s_add_u32 s70, s70, s15"); L("s_lshl_b32 s15, s73, 2"); L("s_add_u32 s70, s70, s15")
    L("s_mul_i32 s70, s70, 18"); L("s_add_u32 s70, s70, s74"); L("s_lshl_b32 s70, s70, 10"); L(f"s_add_u32 s70, s70, {PART}")
    for o in late: k(o)
    rs = []
    R = rs.append
    for tt in range(4):
        t = TMP + 4*tt; c = C2[tt]; d = C1[tt]
        R(f"v_add_f32 v{t}, v{t}, v{t+1}"); R(f"v_add_f32 v{t+2}, v{t+2}, v{t+3}"); R(f"v_add_f32 v{c}, v{c}, v{t}"); R(f"v_add_f32 v{c}, v{c}, v{t+2}")
        R(f"v_mov_b32 v{t}, v{c}"); R(f"v_permlane32_swap_b32 v{c}, v{t}"); R(f"v_add_f32 v{c}, v{c}, v{t}")
        R(f"v_mov_b32 v{t}, v{c}"); R(f"v_permlane16_swap_b32 v{c}, v{t}"); R(f"v_add_f32 v{c}, v{c}, v{t}")
        R(f"v_mul_f32 v{c}, 0x3ae38e39, v{c}"); R(f"v_cvt_pk_bf16_f32 v{c}, v{c}, v{c}"); R(f"v_lshlrev_b32 v{c}, 16, v{c}")
        R(f"v_add_f32 v{c}, 0x3727c5ac, v{c}"); R(f"v_cvt_pk_bf16_f32 v{c}, v{c}, v{c}"); R(f"v_lshlrev_b32 v{c}, 16, v{c}")
        R(f"v_sqrt_f32 v{c}, v{c}"); R(f"v_cvt_pk_bf16_f32 v{c}, v{c}, v{c}"); R(f"v_lshlrev_b32 v{c}, 16, v{c}")
        R(f"v_rcp_f32 v{d}, v{c}"); R(f"v_mul_f32 v{c}, v{c}, v{c}"); R(f"v_mul_f32 v{d}, {LOG2E | 0x80000000}, v{d}")
    fq = []
    def conflicts(I, J):
        return bool((set(I.rd) | set(I.wr)) & set(J.wr)) or bool(set(I.wr) & set(J.rd))
    def take(budget, allow_ds):
        for i, I in enumerate(fq[:28]):
            if cost(I) > budget: continue
            if I.cls == 'ds' and not allow_ds: continue
            if any(conflicts(I, J) for J in fq[:i]): continue
            if I.cls == 'vmem' and any(J.cls == 'vmem' for J in fq[:i]): continue
            return fq.pop(i)
        return None
    def flush(tags):
        n = 0
        last = max([i for i, I in enumerate(fq) if I.tag in tags] + [-1])
        for i in range(last + 1): k.add(fq.pop(0)); n += 1
        return n
    def barrier(b):
        for e in list(held):
            if e[0] <= b: held.remove(e); free.append(e[1])
        tags = set(f"{u[0]}{u[1]}" for u in units if pb(u[2] - 1) == b)
        k.wait_both(tags, 'all'); k("s_barrier")
    k.stamp(1)
    barrier(-1)
    k.stamp(2)
    for o in reads_for(0): k(o, tag="rd")
    done2 = set(); log = []
    for s in range(NS):
        if s == 4: fq += [Ins(o, "rs") for o in rs]
        if s in (18, 36, 54, 72):
            dl = {18: {"rs"}, 36: {"silu0"}, 54: {"silu1"}, 72: {"silu2"}}[s]
            n = flush(dl)
            if n: log.append((s, "flush", n))
            fq += silu(s // 18 - 1)
        if s == S2: fq += silu(4)
        if s == sP67: log.append((s, "flush3", flush({"silu3"})))
        if s == sP8: log.append((s, "flush4", flush({"silu4"})))
        if s >= S2:
            for par in range(2):
                i = 2*(s - S2) + par
                if i < 81 and O2[i][1] == 0 and O2[i][0] > defer:
                    n = flush({f"epi{O2[i][0] - defer - 1}"})
                    if n: log.append((s, "flushepi", n))
        if s in (18, 72, S2): k.stamp({18: 3, 72: 4, S2: 5}[s])
        if s in B: barrier(s)
        else: k.wait_lg("rd")
        lds = reads_for(s + 1) if s + 1 < NS else []
        if 73 <= s <= 78: lds += [f"ds_read_b128 {pf(s-73, tt)}, v{vR[((PB+s-73)*8192)//65536]} offset:{((PB+s-73)*8192) % 65536 + 1024*tt}" for tt in range(4)]
        pj = [6, 7] if s == sP67 else ([8] if s == sP8 else [])
        for j in pj: lds = [f"ds_read_b128 {pf(j, tt)}, v{vR[((PB+j)*8192)//65536]} offset:{((PB+j)*8192) % 65536 + 1024*tt}" for tt in range(4)] + lds
        dma = issue(s, 2 if s < 18 else 1)
        M = mfmas(s)
        for gi, m in enumerate(M):
            k(m)
            if s >= S2:
                i = 2*(s - S2) + gi // 8
                if gi % 8 == 7 and O2[i][1] == 8: fq += epi(O2[i][0])
            budget = 8
            if gi == len(M) - 1: budget = 0 if (s + 1) in B else 4
            left = len(M) - gi
            nl = 2 if len(lds) > max(left - 5, 0) else 1
            used_ds = False
            while lds and nl > 0 and (budget >= 4 or gi == len(M) - 1):
                k(lds.pop(0), tag="rd"); budget -= 4; nl -= 1; used_ds = True
            if gi == len(M) - 1:
                while lds: k(lds.pop(0), tag="rd")
            if dma and (budget >= 4 or gi == len(M) - 1):
                o, t = dma.pop(0); k(o, tag=t); budget -= 4
                if gi == len(M) - 1:
                    for o, t in dma: k(o, tag=t)
                    dma = []
            while budget >= 4:
                I = take(budget, allow_ds=(not used_ds and gi < len(M) - 4))
                if I is None: break
                k.add(I); budget -= cost(I)
                if I.cls == 'ds': used_ds = True
    k.stamp(6)
    log.append(("end", "flush", flush({f"epi{n}" for n in range(9)})))
    assert not fq and upos == len(units)
    k.label("ffn_end")
    k("s_endpgm")
    k.log = log
    return k

def k4():
    k = Kern("red_kernel", vgpr=96, lds=0, block=576, grid=256)
    k("s_cmp_ge_u32 s2, 256\ns_cbranch_scc1 red_end")
    k("s_load_dwordx2 s[12:13], s[0:1], 80\ns_load_dwordx2 s[4:5], s[0:1], 64")
    k("v_and_b32 v1, 63, v0\nv_lshrrev_b32 v2, 6, v0\nv_readfirstlane_b32 s3, v2")
    k("v_and_b32 v3, 7, v1\nv_bfe_u32 v4, v1, 3, 1\nv_lshrrev_b32 v5, 4, v1")
    k("v_lshlrev_b32 v6, 4, v3\nv_lshl_add_u32 v6, v4, 10, v6\nv_lshl_add_u32 v6, v5, 8, v6")
    k("s_lshr_b32 s6, s2, 1\ns_mul_i32 s6, s6, 18\ns_lshl_b32 s7, s3, 1\ns_add_u32 s6, s6, s7\ns_lshl_b32 s6, s6, 10\ns_and_b32 s7, s2, 1\ns_lshl_b32 s7, s7, 7\ns_add_u32 s6, s6, s7")
    k(f"s_add_u32 s7, s6, {HR}\ns_add_u32 s6, s6, {PART}")
    srd(k, 16, 12, WSSZ)
    for f in range(16):
        k(f"buffer_load_dwordx4 {V(16+4*f,4)}, v6, s[16:19], s6 offen\ns_add_u32 s6, s6, 2359296")
    k("buffer_load_dwordx4 v[80:83], v6, s[16:19], s7 offen")
    k("v_and_b32 v7, 15, v1\nv_lshrrev_b32 v8, 2, v7\nv_lshlrev_b32 v8, 1, v8\nv_and_b32 v9, 3, v7")
    k("v_and_b32 v10, 1, v9\nv_lshlrev_b32 v10, 4, v10\nv_mov_b32 v11, 0x3f80\nv_lshlrev_b32 v10, v10, v11\nv_lshrrev_b32 v9, 1, v9")
    for t in range(2):
        k(f"v_add_u32 v11, {t}, v8\nv_and_b32 v12, 3, v11\nv_lshrrev_b32 v11, 2, v11\nv_lshl_add_u32 v11, v11, 1, v9")
        k("v_cmp_eq_u32 vcc, v12, v5\nv_cndmask_b32 v12, 0, v10, vcc")
        for d in range(4):
            k(f"v_cmp_eq_u32 vcc, {d}, v11\nv_cndmask_b32 v{84+4*t+d}, 0, v12, vcc")
    srd(k, 20, 4, 2359296)
    k("v_mul_u32_u24 v7, 1152, v3\nv_lshl_add_u32 v7, v4, 6, v7\nv_lshl_add_u32 v7, v5, 4, v7\ns_mul_i32 s8, s2, 9216\ns_lshl_b32 s9, s3, 7\ns_add_u32 s8, s8, s9")
    for f in range(17):
        for t in range(2):
            c = V(8+4*t, 4)
            k(MF(c, V(84+4*t, 4), V(16+4*f, 4), c if f else "0"))
    for j in range(4): k(f"v_cvt_pk_bf16_f32 v{16+j}, v{8+2*j}, v{9+2*j}")
    k("buffer_store_dwordx4 v[16:19], v7, s[20:23], s8 offen")
    k.label("red_end")
    k("s_endpgm")
    return k
```

```python
XN   = 0x0000000
WF   = 0x0240000
WOF  = 0x0440000
MX   = 0x0500000
SSQ  = 0x0508000
KVP  = 0x0540000
PQL  = 0x06D0000
PQ   = 0x0800000
OF   = 0x0C00000
HC   = 0x0E80000
HR   = 0x1100000
PART = 0x1400000
PROF = 0x8000000
WSSZ = 0x10000000
INV  = 0x40000000
LOG2E = 0x3fb8aa3b

def srd(k, d, p, size):
    k(f"s_mov_b32 s{d}, s{p}\ns_mov_b32 s{d+1}, s{p+1}\ns_mov_b32 s{d+2}, {size}\ns_mov_b32 s{d+3}, 0x20000")

def bf16r(k, dst, src):
    k(f"v_cvt_pk_bf16_f32 {dst}, {src}, {src}\nv_lshlrev_b32 {dst}, 16, {dst}")

def V(a, n=1): return f"v{a}" if n == 1 else f"v[{a}:{a+n-1}]"
def A(a, n=1): return f"a{a}" if n == 1 else f"a[{a}:{a+n-1}]"
def MF(d, a, b, c): return f"v_mfma_f32_16x16x32_bf16 {d}, {a}, {b}, {c}"
```

```python
import sys
sys.path.insert(0, 'dev')
import gen
from asmlib import *
name = "sequential_preLN__linear_kernel_hedgehog__glu_gated_swiglu__prompt"
ref = open(f"cdna_kernels/{name}.s.ref").read().split("\n")
hdr = "\n".join(l for l in ref if l.startswith(";") and "@launch" not in l and "Override" not in l and "grid=ceil" not in l) + "\n"
ks = gen.kernels()
out = sys.argv[1] if len(sys.argv) > 1 else f"cdna_kernels/{name}.s"
build_file(ks, out, hdr)
print("written", out)
```

```python
import re, os

REG_RE = re.compile(r'\b([vas])(\d+)\b|\b([vas])\[(\d+):(\d+)\]|\b(vcc|exec|m0|scc)\b|\b(vcc_lo|vcc_hi|exec_lo|exec_hi)\b')

def regs_of(op):
    out = []
    for m in REG_RE.finditer(op):
        if m.group(1): out.append((m.group(1), int(m.group(2))))
        elif m.group(3):
            out += [(m.group(3), i) for i in range(int(m.group(4)), int(m.group(5)) + 1)]
        elif m.group(6): out.append((m.group(6), 0))
        elif m.group(7): out.append((m.group(7)[:-3], 0))
    return out

def split_ops(s):
    ops = []; depth = 0; cur = ''
    for ch in s:
        if ch == '[': depth += 1
        if ch == ']': depth -= 1
        if ch == ',' and depth == 0:
            ops.append(cur.strip()); cur = ''
        else: cur += ch
    if cur.strip(): ops.append(cur.strip())
    return ops

TRANS = ('v_exp_f32', 'v_log_f32', 'v_rcp_f32', 'v_rsq_f32', 'v_sqrt_f32', 'v_sin_f32', 'v_cos_f32', 'v_rcp_iflag_f32')
NODST_S = ('s_cmp', 's_cbranch', 's_branch', 's_waitcnt', 's_barrier', 's_nop', 's_endpgm', 's_setprio', 's_sleep', 's_bitcmp')

class Ins:
    __slots__ = ('text', 'op', 'cls', 'wr', 'rd', 'tag', 'srcc', 'srcab', 'dpp', 'wide_store', 'data', 'cost', 'lds_dma', 'sgpr_rd', 'opt', 'meta')
    def __init__(self, text, tag=None):
        self.text = text; self.tag = tag; self.opt = False; self.meta = None
        t = text.split(';')[0].strip()
        sp = t.split(None, 1)
        self.op = op = sp[0]
        rest = sp[1] if len(sp) > 1 else ''
        ops = split_ops(rest)
        self.wr = []; self.rd = []; self.srcc = []; self.srcab = []; self.dpp = False
        self.wide_store = False; self.data = []; self.lds_dma = False
        R = [regs_of(o) for o in ops]
        allr = [r for x in R for r in x]
        if op.startswith('v_mfma'):
            self.cls = 'mfma'; self.wr = R[0]; self.srcab = R[1] + R[2]; self.srcc = R[3]; self.rd = self.srcab + self.srcc
        elif op.startswith('v_cmp'):
            self.cls = 'valu'; self.wr = R[0]; self.rd = [r for x in R[1:] for r in x]
        elif op.startswith('v_permlane') and 'swap' in op:
            self.cls = 'valu'; self.wr = allr; self.rd = allr
        elif op.startswith('v_'):
            self.cls = 'trans' if op.replace('_e32', '').replace('_e64', '') in TRANS else ('dot' if op.startswith('v_dot') else 'valu')
            self.wr = R[0]; self.rd = [r for x in R[1:] for r in x]
            if re.search(r'row_|quad_perm|wave_|bcast', rest):
                self.dpp = True; self.rd += R[0]
            if re.match(r'v_(fmac|mac|dot2c|dot4c|pk_fmac)', op) or 'op_sel' in rest and 'cvt' in op: self.rd += R[0]
            if op.startswith('v_cndmask') and len(ops) == 3: self.rd.append(('vcc', 0))
            if op.startswith('v_writelane'): self.rd += R[0]
        elif op.startswith('buffer_load') or op.startswith('global_load'):
            self.cls = 'vmem'
            if re.search(r'\blds\b', rest) or '_lds_' in op:
                self.lds_dma = True; self.rd = allr + [('m0', 0)]
            else:
                self.wr = R[0]; self.rd = [r for x in R[1:] for r in x]
                if 'd16' in op: self.rd += R[0]
        elif op.startswith('buffer_store') or op.startswith('global_store') or 'atomic' in op:
            self.cls = 'vmem'; self.rd = allr
            self.data = R[0] if op.startswith('buffer') else R[1]
            self.wide_store = 'x3' in op or 'x4' in op
            if 'atomic' in op and re.search(r'\bsc0\b', rest):
                self.wr = R[0]
        elif op.startswith('ds_'):
            self.cls = 'ds'
            if op.startswith('ds_write') or op.startswith('ds_add') or op.startswith('ds_max') :
                self.rd = allr
            else:
                self.wr = R[0]; self.rd = [r for x in R[1:] for r in x]
                if 'd16' in op: self.rd += R[0]
        elif op.startswith('s_load') or op.startswith('s_memtime') or op.startswith('s_memrealtime') or op.startswith('s_buffer_load'):
            self.cls = 'smem'; self.wr = R[0]; self.rd = [r for x in R[1:] for r in x]
        elif op.startswith('s_'):
            self.cls = 'salu'
            if op.startswith(NODST_S): self.rd = allr
            else:
                self.wr = R[0]; self.rd = [r for x in R[1:] for r in x]
                if 'saveexec' in op: self.wr = self.wr + [('exec', 0)]; self.rd += [('exec', 0)]
        else:
            raise ValueError('unknown op ' + text)

class Kern:
    def __init__(self, name, vgpr=256, agpr=0, lds=0, block=256, grid=256):
        self.name = name; self.items = []; self.vgpr = vgpr; self.agpr = agpr; self.lds = lds; self.block = block; self.grid = grid
    def __call__(self, text, tag=None):
        for line in text.strip().split('\n'):
            line = line.strip()
            if not line or line.startswith(';'): continue
            self.items.append(Ins(line, tag))
    def add(self, ins): self.items.append(ins)
    def label(self, name, reset=True): self.items.append(('label', name, reset))
    def wait_vm(self, tag): self.items.append(('waitvm', tag))
    def wait_lg(self, tag): self.items.append(('waitlg', tag))
    def wait_both(self, vtag, ltag): self.items.append(('waitboth', vtag, ltag))
    def wait_all(self, vm=True, lgkm=True): self.items.append(('waitall', vm, lgkm))
    def skip_begin(self): self.items.append(('skipb',))
    def skip_end(self, label): self.items.append(('skipe', label))
    def raw(self, text): self.items.append(('raw', text))
    prof = None
    def stamp(self, n):
        if self.prof is not None:
            import os
            op = 's_memtime' if os.environ.get('CYC') else 's_memrealtime'
            self.items.append(('raw', f'  {op} s[{84+2*n}:{85+2*n}]'))

    def finalize(self):
        out = []
        t = 0
        vmq = []; lgq = []; smem = set()
        lastw = {}
        cread = {}
        sdata = {}
        skip_stack = []
        self.nnops = 0; self.nwaits = 0
        def emit(s):
            out.append('  ' + s)
        def do_wait(vm=None, lg=None):
            nonlocal t, vmq, lgq, smem
            parts = []
            if vm is not None:
                n = sum(1 for e in vmq[vm + 1:] if not e[2])
                parts.append(f'vmcnt({min(n, 63)})')
                vmq = vmq[vm + 1:]
            if lg is not None:
                if lg == 'all' or smem:
                    parts.append('lgkmcnt(0)'); lgq = []; smem = set()
                else:
                    n = sum(1 for e in lgq[lg + 1:] if not e[2])
                    parts.append(f'lgkmcnt({min(n, 15)})')
                    lgq = lgq[lg + 1:]
            if parts:
                emit('s_waitcnt ' + ' '.join(parts)); t += 1; self.nwaits += 1
        pend_wait = None
        for it in self.items:
            if isinstance(it, tuple):
                k = it[0]
                if k == 'label':
                    out.append(f'{it[1]}:')
                    if it[2]:
                        vmq = []; lgq = []; smem = set(); lastw = {}; cread = {}; sdata = {}
                elif k == 'waitvm':
                    idx = [i for i, e in enumerate(vmq) if e[1] == it[1]]
                    if idx: do_wait(vm=idx[-1])
                elif k == 'waitlg':
                    idx = [i for i, e in enumerate(lgq) if e[1] == it[1]]
                    if idx: do_wait(lg=idx[-1])
                elif k == 'waitboth':
                    idx = [i for i, e in enumerate(vmq) if e[1] in it[1]]
                    do_wait(vm=(idx[-1] if idx else None), lg=('all' if (lgq or smem) else None))
                elif k == 'waitall':
                    do_wait(vm=(len(vmq) - 1 if (it[1] and vmq) else None), lg=('all' if (it[2] and (lgq or smem)) else None))
                elif k == 'skipb':
                    skip_stack.append((t, list(vmq), list(lgq), set(smem)))
                elif k == 'skipe':
                    t0, sv, sl, ss = skip_stack.pop()
                    d = t - t0
                    for r in list(lastw):
                        if lastw[r][0] < t0: lastw[r] = (lastw[r][0] + d,) + lastw[r][1:]
                    for dd in (cread, sdata):
                        for r in list(dd):
                            if dd[r] < t0: dd[r] += d
                    nv = [e for e in vmq if not any(e is x for x in sv)]
                    nl = [e for e in lgq if not any(e is x for x in sl)]
                    for e in nv + nl: e[2] = True
                    vmq = sv + nv; lgq = sl + nl; smem = smem | ss
                    out.append(f'{it[1]}:')
                elif k == 'raw':
                    out.append(it[1])
                continue
            I = it
            touched = set(I.rd) | set(I.wr)
            vm = None; lg = None
            for i, e in enumerate(vmq):
                if e[0] & touched: vm = i
            for i, e in enumerate(lgq):
                if e[0] & touched: lg = i
            if smem & touched: lg = 'all'
            if vm is not None or lg is not None: do_wait(vm, lg)
            need = 0
            def req(tp, n):
                nonlocal need
                need = max(need, n - (t - tp - 1))
            isvalu = I.cls in ('valu', 'trans', 'dot')
            for r in I.rd:
                if r in lastw:
                    tp, pc, P = lastw[r]
                    pv = pc in ('valu', 'trans', 'dot')
                    if pc == 'mfma':
                        if I.cls == 'mfma':
                            if r in I.srcab: req(tp, 8)
                            elif P.wr == I.srcc: pass
                            else: req(tp, 6)
                        else: req(tp, 8)
                    if pv and r[0] in 'va':
                        if I.cls == 'mfma': req(tp, 2)
                        if I.dpp: req(tp, 2)
                        if I.op.startswith('v_permlane'): req(tp, 2)
                        if I.op.startswith('v_readlane') or I.op.startswith('v_readfirstlane'): req(tp, 1)
                        if pc == 'trans' and (I.cls != 'trans'): req(tp, 1)
                        if pc == 'dot' and P.op != I.op: req(tp, 3)
                        if 'op_sel' in P.text or 'sdwa' in P.text: req(tp, 1)
                    if pv and r[0] in ('s', 'vcc', 'exec'):
                        if I.cls == 'vmem': req(tp, 5)
                        if isvalu or I.cls == 'mfma': req(tp, 5 if (r[0] == 'exec') else 2)
                        if I.cls in ('salu', 'smem', 'ds'): req(tp, 2)
                    if r[0] == 'm0' and pc == 'salu' and I.lds_dma: req(tp, 1)
            for r in I.wr:
                if r in lastw and lastw[r][1] == 'mfma' and not (I.cls == 'mfma' and lastw[r][2].wr == I.wr):
                    req(lastw[r][0], 8)
                if r in lastw and lastw[r][1] == 'dot' and I.op != lastw[r][2].op: req(lastw[r][0], 3)
                if isvalu and r in cread: req(cread[r], 3)
                if r in sdata: req(sdata[r], 2)
            if need > 0:
                while need > 0:
                    n = min(need, 16); emit(f's_nop {n - 1}'); t += n; need -= n; self.nnops += 1
            emit(I.text)
            if I.op == 's_nop': t += int(I.text.split()[1]) + 1
            else: t += 1
            tt = t - 1
            if I.op == 's_waitcnt':
                m = re.search(r'vmcnt\((\d+)\)', I.text)
                if m and int(m.group(1)) == 0: vmq = []
                m = re.search(r'lgkmcnt\((\d+)\)', I.text)
                if m and int(m.group(1)) == 0: lgq = []; smem = set()
            for r in I.wr: lastw[r] = (tt, I.cls, I)
            if I.cls == 'mfma':
                for r in I.srcc: cread[r] = tt
            if I.wide_store:
                for r in I.data: sdata[r] = tt
            if I.cls == 'vmem': vmq.append([set(I.wr), I.tag, False])
            elif I.cls == 'ds': lgq.append([set(I.wr), I.tag, False])
            elif I.cls == 'smem': smem |= set(I.wr)
        return out

    def align(self, body):
        mode = os.environ.get('ALIGN', '0')
        if mode == '0': return body
        import subprocess
        idx = [i for i, l in enumerate(body) if l.startswith('  ')]
        src = "\n".join(re.sub(r'[A-Za-z_][A-Za-z_0-9]*_(kernel|codeend|pc_\w+)\S*', '0x12345', body[i]) if ('_kernel' in body[i] and 'branch' not in body[i]) else re.sub(r'(s_c?branch\w*)\s+\S+', r'\1 4', body[i]) for i in idx)
        r = subprocess.run(['llvm-mc', '-triple=amdgcn-amd-amdhsa', '-mcpu=gfx950', '-show-encoding'], input=src, capture_output=True, text=True)
        assert r.returncode == 0, r.stderr[:2000]
        enc = [l for l in r.stdout.split('\n') if 'encoding:' in l]
        assert len(enc) == len(idx), (len(enc), len(idx))
        size = {i: e.split('encoding:')[1].count(',') + 1 for i, e in zip(idx, enc)}
        e32 = {i: e.split()[0].endswith('_e32') for i, e in zip(idx, enc)}
        out = []; off = 4 if mode == '-1' else 0; run = []; self.nal = [0, 0, 0]
        for i, l in enumerate(body):
            if i not in size:
                out.append(l); continue
            if size[i] == 4:
                if e32[i] and not re.search(r'_e32|_e64', l.split()[0]): run.append(len(out))
                out.append(l); off += 4; continue
            if off % 8:
                if run:
                    j = run[-1]; t = out[j].split(None, 1); out[j] = f"  {t[0]}_e64 {t[1]}"; off += 4; self.nal[0] += 1
                elif mode in ('1', '-1') or (mode == '2' and 'mfma' in l):
                    out.append('  s_nop 0'); off += 4; self.nal[1] += 1
                else: self.nal[2] += 1
            run = []
            out.append(l); off += size[i]
        print(self.name, 'align: widened, nops, left', self.nal)
        return out

    def text(self):
        body = self.finalize()
        if self.name.split('_')[0] in os.environ.get('SC1', '').split(','):
            body = [(l + ' sc1' if ('buffer_store' in l and 'sc1' not in l) else l) for l in body]
        if self.prof is not None:
            body = ['  s_mov_b64 s[%d:%d], 0' % (86+2*i, 87+2*i) for i in range(6)] + ['  %s s[84:85]' % ('s_memtime' if os.environ.get('CYC') else 's_memrealtime')] + [(f'  s_branch {self.name}_prof' if l.strip() == 's_endpgm' else l) for l in body]
            body += [f'{self.name}_prof:', '  s_waitcnt vmcnt(0) lgkmcnt(0)', '  %s s[98:99]' % ('s_memtime' if os.environ.get('CYC') else 's_memrealtime'), '  s_load_dwordx2 s[76:77], s[0:1], 80', '  s_mov_b64 exec, 1',
                     '  v_lshrrev_b32 v1, 6, v0', '  v_lshlrev_b32 v1, 6, v1', '  s_lshl_b32 s80, s2, 10', f'  s_add_u32 s80, s80, {self.prof}', '  s_mov_b32 s78, 0x10000000', '  s_mov_b32 s79, 0x20000', '  s_waitcnt lgkmcnt(0)']
            for i in range(8):
                body += [f'  v_mov_b32 v2, s{84+2*i}', f'  v_mov_b32 v3, s{85+2*i}', f'  buffer_store_dwordx2 v[2:3], v1, s[76:79], s80 offen offset:{8*i}', '  s_nop 1']
            body += ['  s_endpgm']
        body = self.align(body)
        hdr = f".globl {self.name}\n.p2align 8\n.type {self.name},@function\n{self.name}:\n"
        nv = self.vgpr + self.agpr
        kd = f""".section .rodata,"a"
.p2align 6
.amdhsa_kernel {self.name}
  .amdhsa_next_free_vgpr {nv}
  .amdhsa_next_free_sgpr 102
  .amdhsa_accum_offset {self.vgpr}
  .amdhsa_group_segment_fixed_size 0
  .amdhsa_kernarg_size 88
  .amdhsa_user_sgpr_count 2
  .amdhsa_user_sgpr_kernarg_segment_ptr 1
  .amdhsa_system_sgpr_workgroup_id_x 1
.end_amdhsa_kernel
.text
"""
        return hdr + '\n'.join(body) + f'\n{self.name}_codeend:\n' + kd
    def launch_line(self):
        return f"; @launch kernel={self.name} grid=({self.grid},1,1) block=({self.block},1,1) lds={self.lds}"

def build_file(kerns, path, header=''):
    s = header + '\n'.join(k.launch_line() for k in kerns) + '\n'
    s += '.amdgcn_target "amdgcn-amd-amdhsa--gfx950"\n.text\n'
    seen = set()
    for k in kerns:
        if k.name in seen: continue
        seen.add(k.name); s += k.text()
    open(path, 'w').write(s)
    return s
```

```python
import sys
sys.path.insert(0, 'dev')
from asmlib import *

from wsmap import *
from gen3 import k3, k4
import os
OPT = set(os.environ.get('OPT', '').split(','))

def k0():
    k = Kern("prep_kernel", vgpr=256, lds=57360, block=256, grid=274)
    k("s_cmp_ge_u32 s2, 274\ns_cbranch_scc1 prep_end")
    k("s_load_dwordx8 s[4:11], s[0:1], 0\ns_load_dwordx2 s[12:13], s[0:1], 80")
    k("v_and_b32 v1, 63, v0\nv_lshrrev_b32 v2, 6, v0\nv_readfirstlane_b32 s3, v2")
    k("v_and_b32 v3, 15, v1\nv_lshrrev_b32 v4, 4, v1")
    k("v_lshlrev_b32 v5, 4, v1")
    k("v_mov_b32 v6, 0x40000000")
    if 'pc' in OPT: pf_code(k, "attn1_kernel", 250, 40)
    srd(k, 16, 12, WSSZ)
    k("s_cmp_ge_u32 s2, 256\ns_cbranch_scc1 prep_wo")
    k("s_cmp_ge_u32 s2, 128\ns_cbranch_scc1 prep_w")
    srd(k, 20, 4, 2359296)
    k("v_lshrrev_b32 v7, 4, v0")
    k("v_mul_u32_u24 v8, 1152, v7\nv_lshl_add_u32 v8, v3, 4, v8")
    k("v_add_u32 v9, 1024, v8\nv_cmp_gt_u32 vcc, 8, v3\nv_cndmask_b32 v9, v6, v9, vcc")
    k("s_mul_i32 s28, s2, 18432")
    for j in range(4): k(f"buffer_load_dwordx4 {V(16+4*j,4)}, v8, s[20:23], s28 offen offset:{256*j}")
    k(f"buffer_load_dwordx4 v[32:35], v9, s[20:23], s28 offen")
    k("v_xor_b32 v10, v7, v3\nv_lshlrev_b32 v10, 4, v10\nv_lshl_add_u32 v10, v3, 8, v10")
    k("s_lshl_b32 s29, s3, 2\nv_add_u32 v11, s29, v4\nv_xor_b32 v12, v3, v11\nv_lshlrev_b32 v12, 4, v12\nv_lshl_add_u32 v11, v11, 8, v12")
    k("s_mov_b32 s30, 0xffff0000")
    for i in range(20):
        k(f"v_lshlrev_b32 v{40+2*i}, 16, v{16+i}\nv_and_b32 v{41+2*i}, s30, v{16+i}")
    k("v_add_f32 v80, v40, v41\nv_mul_f32 v82, v40, v40\nv_mul_f32 v83, v41, v41\nv_add_f32 v81, v42, v43\nv_fmac_f32 v82, v42, v42\nv_fmac_f32 v83, v43, v43")
    for i in range(2, 20):
        a = 80 + (i % 2)
        k(f"v_add_f32 v{a}, v{a}, v{40+2*i}\nv_fmac_f32 v82, v{40+2*i}, v{40+2*i}\nv_add_f32 v{a^1}, v{a^1}, v{41+2*i}\nv_fmac_f32 v83, v{41+2*i}, v{41+2*i}")
    k("v_add_f32 v80, v80, v81\nv_add_f32 v82, v82, v83")
    for r in (8, 4, 2, 1):
        k(f"v_add_f32_dpp v80, v80, v80 row_ror:{r} row_mask:0xf bank_mask:0xf\nv_add_f32_dpp v82, v82, v82 row_ror:{r} row_mask:0xf bank_mask:0xf")
    k("s_mov_b32 s31, 0x3ae38e39")
    k("v_mul_f32 v80, s31, v80\nv_mul_f32 v82, s31, v82\nv_fma_f32 v82, -v80, v80, v82\nv_max_f32 v82, 0, v82")
    k("v_lshlrev_b32 v13, 2, v7\nv_cmp_eq_u32 vcc, 0, v3\nv_cndmask_b32 v13, v6, v13, vcc")
    k(f"s_lshl_b32 s32, s2, 6\ns_add_u32 s32, s32, {MX}\nbuffer_store_dword v80, v13, s[16:19], s32 offen")
    bf16r(k, "v81", "v80"); bf16r(k, "v82", "v82")
    k("v_add_f32 v82, 0x3727c5ac, v82"); bf16r(k, "v82", "v82")
    k("v_sqrt_f32 v82, v82"); bf16r(k, "v82", "v82")
    k("v_rcp_f32 v82, v82\nv_mul_f32 v81, v81, v82")
    for i in range(20):
        k(f"v_fma_f32 v{40+2*i}, v{40+2*i}, v82, -v81\nv_fma_f32 v{41+2*i}, v{41+2*i}, v82, -v81\nv_cvt_pk_bf16_f32 v{16+i}, v{40+2*i}, v{41+2*i}")
        if i % 4 == 3: k(f"ds_write_b128 v10, {V(13+i,4)} offset:{4096*(i//4)}")
    k.wait_all(vm=False); k("s_barrier")
    for i in range(5): k(f"ds_read_b128 {V(16+4*i,4)}, v11 offset:{4096*i}")
    k(f"s_lshl_b32 s33, s3, 10\ns_add_u32 s33, s33, s28\ns_add_u32 s34, s33, 16384\ns_cmp_lt_u32 s3, 2\ns_cselect_b32 s34, s34, {INV}")
    for i in range(4):
        k(f"buffer_store_dwordx4 {V(16+4*i,4)}, v5, s[16:19], s33 offen")
        k("s_add_u32 s33, s33, 4096")
    k("buffer_store_dwordx4 v[32:35], v5, s[16:19], s34 offen")
    k("s_endpgm")
    k.label("prep_w")
    k("s_sub_u32 s28, s2, 128\ns_and_b32 s29, s28, 7\ns_lshr_b32 s28, s28, 3")
    k("s_cmp_ge_u32 s29, 6\ns_cbranch_scc1 prep_end")
    srd(k, 20, 6, 1990656); srd(k, 24, 8, 20736)
    k("v_mul_u32_u24 v7, 13108, v1\nv_lshrrev_b32 v7, 16, v7")
    k("v_mul_u32_u24 v8, 5, v7\nv_sub_u32 v8, v1, v8")
    k("v_mul_u32_u24 v9, 21846, v7\nv_lshrrev_b32 v9, 16, v9")
    k("v_mul_u32_u24 v10, 3, v9\nv_sub_u32 v10, v7, v10")
    k("v_mul_u32_u24 v9, 3456, v9\nv_mul_u32_u24 v10, 1152, v10\nv_lshlrev_b32 v8, 4, v8\nv_add3_u32 v7, v9, v10, v8")
    k("s_mul_i32 s30, s28, 72\ns_and_b32 s30, s30, 0xfffffff0\ns_mul_i32 s31, s29, 331776\ns_add_u32 s30, s30, s31\ns_mul_i32 s31, s3, 13824\ns_add_u32 s30, s30, s31")
    k("s_lshl_b32 s32, s3, 10\ns_add_u32 s32, s32, 32768")
    for i in range(6):
        k(f"s_add_u32 m0, s32, {4096*i}\nbuffer_load_dwordx4 v7, s[20:23], s30 offen lds\ns_add_u32 s30, s30, {16*3456}")
    k("v_lshlrev_b32 v8, 2, v0\ns_mul_i32 s33, s28, 1296")
    k("buffer_load_dword v16, v8, s[24:27], s33 offen\nbuffer_load_dword v17, v8, s[24:27], s33 offen offset:1024")
    k("v_mov_b32 v20, 0\nv_mov_b32 v21, 0\nv_mov_b32 v22, 0\nv_mov_b32 v23, 0\nv_lshlrev_b32 v9, 4, v0")
    for i in range(8): k(f"ds_write_b128 v9, v[20:23] offset:{4096*i}")
    k("s_and_b32 s34, s28, 1\ns_lshl_b32 s34, s34, 2")
    k("v_mov_b32 v24, 57344")
    for rnd, (e, ad) in enumerate((("v0", 26), ("v25", 27))):
        if rnd: k("v_add_u32 v25, 256, v0")
        k(f"v_cmp_lt_u32 vcc, 161, {e}\nv_cndmask_b32 v10, 0, 1, vcc" .replace("v_cndmask_b32 v10, 0, 1, vcc", "v_cndmask_b32_e64 v10, 0, 1, vcc"))
        k(f"v_mul_u32_u24 v11, 162, v10\nv_sub_u32 v11, {e}, v11")
        k("v_mul_u32_u24 v12, 7282, v11\nv_lshrrev_b32 v12, 16, v12")
        k("v_mul_u32_u24 v13, 9, v12\nv_sub_u32 v13, v11, v13")
        k("v_mul_u32_u24 v14, 18, v10\nv_add3_u32 v14, v14, v12, s34")
        k("v_lshrrev_b32 v15, 1, v13\nv_lshlrev_b32 v15, 5, v15\nv_and_b32 v13, 1, v13\nv_lshl_add_u32 v15, v13, 2, v15\nv_lshl_add_u32 v15, v10, 3, v15")
        k(f"v_lshl_add_u32 v{ad}, v14, 8, v15\nv_add_u32 v{ad+2}, 10256, v{ad}")
        if rnd: k(f"v_cmp_gt_u32 vcc, 324, v25\nv_cndmask_b32 v{ad}, v24, v{ad}, vcc\nv_cndmask_b32 v{ad+2}, v24, v{ad+2}, vcc")
    k("v_cmp_lt_u32 vcc, 17, v0\nv_cndmask_b32_e64 v10, 0, 1, vcc\nv_mul_u32_u24 v11, 18, v10\nv_sub_u32 v11, v0, v11")
    k("v_lshl_add_u32 v12, v10, 4, v11\nv_add_u32 v12, 80, v12\nv_lshl_add_u32 v13, v10, 2, v11\nv_add_u32 v13, 50, v13")
    k("v_cmp_gt_u32 vcc, 16, v11\nv_cndmask_b32 v12, v13, v12, vcc")
    k("v_add_u32 v13, s34, v0\nv_add_u32 v13, 80, v13\nv_lshlrev_b32 v13, 8, v13\nv_lshl_add_u32 v30, v12, 1, v13")
    k("v_cmp_gt_u32 vcc, 36, v0\nv_cndmask_b32 v30, v24, v30, vcc\nv_mov_b32 v31, 0x3f80")
    k.wait_all(vm=False); k("s_barrier")
    k("ds_write_b32 v26, v16\nds_write_b32 v28, v16\nds_write_b32 v27, v17\nds_write_b32 v29, v17\nds_write_b16 v30, v31")
    k("v_lshrrev_b32 v10, 2, v3\nv_and_b32 v11, 3, v3")
    k("v_lshl_add_u32 v12, v4, 3, v10\nv_lshlrev_b32 v12, 8, v12\nv_lshl_add_u32 v12, v11, 3, v12\ns_lshl_b32 s35, s3, 5\nv_add_u32 v12, s35, v12")
    k("v_mul_u32_u24 v13, 240, v11\nv_lshl_add_u32 v13, v10, 11, v13\nv_lshl_add_u32 v13, v4, 4, v13\nv_add_u32 v13, 32768, v13")
    k.wait_all(); k("s_barrier")
    for ts in range(2):
        for s in range(4):
            for h in range(2):
                k(f"ds_read_b64_tr_b16 {V(32+16*ts+4*s+2*h,2)}, v12 offset:{(32*s+4*h)*256+128*ts}")
    for db in range(3):
        for hf in range(2):
            for s in range(4):
                k(f"ds_read_b128 {V(64+32*db+16*hf+4*s,4)}, v13 offset:{db*8192+hf*1024+s*64}")
    k(f"s_mul_i32 s36, s28, 18\ns_mul_i32 s37, s29, 3\ns_add_u32 s36, s36, s37\ns_mul_i32 s36, s36, 7\ns_add_u32 s36, s36, s3\ns_lshl_b32 s36, s36, 10\ns_add_u32 s36, s36, {WF}")
    k(f"s_add_u32 s37, s36, 4096\ns_cmp_lt_u32 s3, 3\ns_cselect_b32 s37, s37, {INV}")
    for db in range(3):
        for s in range(4):
            for hf in range(2):
                for ts in range(2):
                    c = V(160+16*db+8*ts+4*hf, 4)
                    k(MF(c, V(64+32*db+16*hf+4*s,4), V(32+16*ts+4*s,4), c if s else "0"))
    for db in range(3):
        for ts in range(2):
            c = 160+16*db+8*ts; o = 208+8*db+4*ts
            for j in range(4): k(f"v_cvt_pk_bf16_f32 v{o+j}, v{c+2*j}, v{c+2*j+1}")
            k(f"buffer_store_dwordx4 {V(o,4)}, v5, s[16:19], s{36+ts} offen")
        k("s_add_u32 s36, s36, 7168\ns_add_u32 s37, s37, 7168")
    k("s_endpgm")
    k.label("prep_wo")
    srd(k, 20, 10, 663552)
    k("s_sub_u32 s28, s2, 256")
    k("s_mul_i32 s29, s28, 36\ns_sub_u32 s30, s28, 16\ns_mul_i32 s30, s30, 288\ns_add_u32 s30, s30, 16")
    k("s_cmp_lt_u32 s28, 16\ns_cselect_b32 s29, s29, s30\ns_cselect_b32 s30, 18, 36\ns_cselect_b32 s31, 4, 72\ns_cselect_b32 s32, 2, 18")
    k("s_lshr_b32 s33, s3, 1\ns_mul_i32 s33, s33, s30\ns_add_u32 s29, s29, s33\ns_and_b32 s33, s3, 1\ns_mul_i32 s33, s33, s31\ns_lshl_b32 s33, s33, 1\ns_add_u32 s29, s29, s33")
    k("s_mul_i32 s29, s29, 1152\ns_mul_i32 s31, s31, 1152\ns_mul_i32 s32, s32, 1152")
    k("s_lshl_b32 s34, s3, 13")
    for kk in range(8):
        k("s_mov_b32 s35, s29")
        if kk >> 2: k("s_add_u32 s35, s35, s31")
        if (kk & 3) >> 1: k("s_add_u32 s35, s35, s32")
        if kk & 1: k("s_add_u32 s35, s35, 1152")
        k(f"s_add_u32 m0, s34, {kk*1024}\nbuffer_load_dwordx4 v5, s[20:23], s35 offen lds")
    k("v_lshrrev_b32 v7, 5, v1\nv_mul_lo_u32 v7, v7, s31\nv_bfe_u32 v8, v1, 4, 1\nv_mul_lo_u32 v8, v8, s32\nv_bfe_u32 v9, v1, 3, 1\nv_mul_u32_u24 v9, 1152, v9")
    k("v_add3_u32 v7, v7, v8, v9\nv_and_b32 v8, 7, v1\nv_lshl_add_u32 v7, v8, 4, v7")
    k("s_lshl_b32 s34, s3, 10\ns_add_u32 m0, s34, 31744\nbuffer_load_dwordx4 v7, s[20:23], s29 offen offset:1024 lds")
    k("v_lshrrev_b32 v10, 2, v3\nv_and_b32 v11, 3, v3\nv_lshl_add_u32 v12, v4, 2, v10\ns_lshl_b32 s35, s3, 5")
    k("v_lshlrev_b32 v13, 3, v11\nv_add_u32 v13, s35, v13\nv_lshl_add_u32 v14, v12, 10, v13\nv_lshl_add_u32 v15, v12, 7, v13\nv_add_u32 v15, 32768, v15")
    k("s_and_b32 s36, s3, 1\ns_lshl_b32 s37, s36, 4\nv_add_u32 v16, s37, v3\nv_lshlrev_b32 v17, 4, v4\nv_lshl_add_u32 v18, v16, 10, v17\nv_lshl_add_u32 v19, v16, 7, v17\nv_add_u32 v19, 32768, v19")
    for j in range(4): k(f"v_mov_b32 v{20+j}, 0x3f803f80")
    k("v_lshl_add_u32 v24, v10, 4, v4\nv_lshlrev_b32 v24, 4, v24\nv_lshl_add_u32 v24, v11, 1, v24\ns_lshl_b32 s37, s36, 3\nv_add_u32 v24, s37, v24\nv_cmp_gt_u32 vcc, 2, v4\nv_cndmask_b32 v24, v6, v24, vcc")
    k.wait_all(); k("s_barrier")
    for i in range(9):
        for h in range(2):
            if i < 8: k(f"ds_read_b64_tr_b16 {V(32+4*i+2*h,2)}, v14 offset:{h*16384+128*i}")
            else: k(f"ds_read_b64_tr_b16 {V(32+4*i+2*h,2)}, v15 offset:{h*2048}")
    for s in range(18):
        if s < 16: k(f"ds_read_b128 {V(72+4*s,4)}, v18 offset:{64*s}")
        else: k(f"ds_read_b128 {V(72+4*s,4)}, v19 offset:{64*(s-16)}")
    k(f"s_mul_i32 s38, s3, 18\ns_add_u32 s38, s38, s28\ns_lshl_b32 s38, s38, 10\ns_add_u32 s38, s38, {WOF}")
    for i in range(9):
        k(f"buffer_store_dwordx4 {V(32+4*i,4)}, v5, s[16:19], s38 offen\ns_add_u32 s38, s38, {4*18*1024}")
    for s in range(18): k(MF("v[28:31]", "v[20:23]", V(72+4*s,4), "v[28:31]" if s else "0"))
    k("s_mov_b32 s31, 0x3ae38e39\nv_mul_f32 v28, s31, v28")
    bf16r(k, "v29", "v28")
    k("v_sub_f32 v28, v28, v29\nv_cmp_eq_u32 vcc, 0, v4\nv_cndmask_b32 v28, v28, v29, vcc\nv_cvt_pk_bf16_f32 v28, v28, v28")
    k(f"s_lshl_b32 s38, s28, 10\ns_add_u32 s38, s38, {WOF + 36*18*1024}\nbuffer_store_short v28, v24, s[16:19], s38 offen")
    k.label("prep_end")
    k("s_endpgm")
    return k


def a1():
    ROWS = 129024
    k = Kern("attn1_kernel", vgpr=224, lds=159744, block=512, grid=256)
    k("s_cmp_ge_u32 s2, 256\ns_cbranch_scc1 a1_end")
    k("s_load_dwordx2 s[12:13], s[0:1], 80")
    k("v_and_b32 v1, 63, v0\nv_lshrrev_b32 v2, 6, v0\nv_readfirstlane_b32 s3, v2")
    k("v_lshlrev_b32 v5, 4, v1")
    k("s_and_b32 s4, s2, 7\ns_lshr_b32 s5, s2, 3\ns_and_b32 s6, s4, 3\ns_lshl_b32 s6, s6, 2\ns_and_b32 s7, s5, 3\ns_add_u32 s6, s6, s7")
    k("s_lshr_b32 s7, s4, 2\ns_lshl_b32 s7, s7, 3\ns_lshr_b32 s5, s5, 2\ns_add_u32 s7, s7, s5")
    k("s_lshl_b32 s8, s6, 3\ns_add_u32 s8, s8, s3")
    k(f"s_lshl_b32 s9, s3, 10\ns_mul_i32 s10, s7, 129024\ns_add_u32 s10, s10, s9\ns_add_u32 s10, s10, {WF}")
    k(f"s_mul_i32 s11, s8, 18432")
    srd(k, 16, 12, WSSZ)
    LA = int(os.environ.get('A1LA', 6)); GB = int(os.environ.get('A1GB', 2))
    st = dict(di=0, xi=0)
    def ld(upto):
        while st['xi'] <= min(upto, 17):
            ks = st['xi']
            while st['di'] <= (7*ks + 6) // 8:
                di = st['di']
                k(f"s_add_u32 m0, s9, {8192*di}\nbuffer_load_dwordx4 v5, s[16:19], s10 offen lds", tag=f"D{di}")
                k("s_add_u32 s10, s10, 8192"); st['di'] += 1
            k(f"buffer_load_dwordx4 {V(32+4*ks,4)}, v5, s[16:19], s11 offen offset:{1024*(ks%4)}")
            if ks % 4 == 3: k("s_add_u32 s11, s11, 4096")
            st['xi'] += 1
    ld(LA - 1)
    if 'pc' in OPT: pf_code(k, "attn2_kernel", 216, 40)
    if any(o.startswith('a1w') for o in OPT): pf_w(k, '', 218, 44, part=1)
    k("v_and_b32 v3, 15, v1\nv_lshrrev_b32 v4, 4, v1\nv_mov_b32 v6, 0x40000000")
    k("v_lshlrev_b32 v7, 4, v3\nv_lshl_add_u32 v8, v4, 10, v7\nv_lshl_add_u32 v9, v4, 3, v7\nv_cmp_gt_u32 vcc, 2, v4\nv_cndmask_b32 v8, v6, v8, vcc\nv_cndmask_b32 v9, v6, v9, vcc")
    k(f"s_lshl_b32 s20, s8, 5\ns_lshl_b32 s21, s7, 1\ns_add_u32 s20, s20, s21\ns_lshl_b32 s20, s20, 10\ns_add_u32 s20, s20, {PQ}")
    k(f"s_lshl_b32 s21, s8, 4\ns_add_u32 s21, s21, s7\ns_lshl_b32 s21, s21, 8\ns_add_u32 s21, s21, {PQL}")
    k(f"s_mul_i32 s22, s3, 3840\ns_add_u32 s22, s22, {ROWS}\nv_mul_u32_u24 v10, 240, v3\nv_add_u32 v10, s22, v10")
    k("v_mul_u32_u24 v11, 80, v4\nv_add_u32 v11, v11, v10\nv_subrev_u32 v11, 160, v11")
    k("v_lshl_add_u32 v12, v4, 3, v10\nv_mul_u32_u24 v13, 40, v4\nv_add_u32 v13, v13, v10")
    k(f"s_mov_b32 s24, {LOG2E}\ns_mov_b32 s25, {LOG2E | 0x80000000}")
    def reads(ks):
        for t in range(7):
            off = (ks*7 + t) * 1024
            base = "v5" if off < 65536 else "v14"
            k(f"ds_read_b128 {V(104+28*(ks%2)+4*t,4)}, {base} offset:{off % 65536}")
    def mfmas(ks):
        for t in range(7):
            c = V(160+4*t, 4)
            k(MF(c, V(104+28*(ks%2)+4*t,4), V(32+4*ks,4), c if ks else "0"))
    k("v_add_u32 v14, 0x10000, v5")
    for ks in range(18):
        if ks % GB == 0:
            if ks: mfmas(ks-1)
            k.wait_vm(f"D{(7*min(ks+GB-1, 17) + 6) // 8}"); k("s_barrier")
            if ks == 0: k.stamp(1)
            if ks == 8: k.stamp(2)
            reads(ks); ld(ks + LA)
        else:
            reads(ks); ld(ks + LA); mfmas(ks-1)
        if ks == 15:
            for o in OPT:
                if o.startswith('a1w'): pf_w(k, o[3:], 218, 44, part=2)
    mfmas(17)
    k.stamp(3)
    k("v_cvt_pk_bf16_f32 v50, v180, v181\nv_cvt_pk_bf16_f32 v51, v182, v183\nv_cvt_pk_bf16_f32 v52, v184, v185\nv_cvt_pk_bf16_f32 v53, v186, v187")
    k("v_cvt_pk_bf16_f32 v54, v178, v179\nv_mov_b32 v55, 0x3f80")
    k("ds_write_b64 v12, v[50:51] offset:160\nds_write_b64 v12, v[52:53] offset:200")
    k("s_mov_b64 exec, 0xffffffff\nds_write_b64 v13, v[54:55] offset:192\ns_mov_b64 exec, -1")
    k("v_max3_f32 v190, v160, v161, v162\nv_min3_f32 v191, v160, v161, v162")
    for j in range(7): k(f"v_max3_f32 v190, v190, v{163+2*j}, v{164+2*j}\nv_min3_f32 v191, v191, v{163+2*j}, v{164+2*j}")
    k("v_max_f32 v190, v190, v177\nv_min_f32 v191, v191, v177")
    k("v_mul_f32 v192, s25, v190\nv_mul_f32 v193, s24, v191")
    for f in range(18):
        k(f"v_fma_f32 v{196+f}, v{160+f}, s24, v192\nv_fma_f32 v{160+f}, v{160+f}, s25, v193")
        k(f"v_exp_f32 v{196+f}, v{196+f}\nv_exp_f32 v{160+f}, v{160+f}")
        if f == 1: k("v_add_f32 v190, v196, v197\nv_add_f32 v191, v160, v161")
        if f > 1 + 0 and f >= 2: k(f"v_add_f32 v190, v190, v{196+f}\nv_add_f32 v191, v191, v{160+f}")
    k("v_rcp_f32 v190, v190\nv_rcp_f32 v191, v191")
    for j in range(9):
        k(f"v_mul_f32 v{196+2*j}, v{196+2*j}, v190\nv_mul_f32 v{197+2*j}, v{197+2*j}, v190\nv_cvt_pk_bf16_f32 v{32+j}, v{196+2*j}, v{197+2*j}")
    for j in range(9):
        k(f"v_mul_f32 v{160+2*j}, v{160+2*j}, v191\nv_mul_f32 v{161+2*j}, v{161+2*j}, v191\nv_cvt_pk_bf16_f32 v{41+j}, v{160+2*j}, v{161+2*j}")
    k("s_mov_b32 exec_lo, 0")
    for j in range(4): k(f"ds_write_b128 v11, {V(32+4*j,4)} offset:{16*j}")
    k("ds_write_b64 v11, v[48:49] offset:64")
    k("s_mov_b32 exec_lo, -1")
    for j in range(4): k(f"buffer_store_dwordx4 {V(32+4*j,4)}, v8, s[16:19], s20 offen offset:{256*j}")
    k("buffer_store_dwordx2 v[48:49], v9, s[16:19], s21 offen")
    k("s_cmp_ge_u32 s3, 3\ns_cselect_b32 s26, 1, 0\ns_mul_i32 s27, s26, 3\ns_sub_u32 s27, s3, s27")
    k(f"s_mul_i32 s28, s26, 80\ns_lshl_b32 s29, s27, 3\ns_cmp_lt_u32 s27, 2\ns_cselect_b32 s29, s29, 64\ns_cselect_b32 s30, 16, 0\ns_add_u32 s28, s28, s29\ns_add_u32 s28, s28, {ROWS}")
    k(f"s_mul_i32 s29, s26, 40\ns_add_u32 s29, s29, {ROWS+160}")
    k("v_lshrrev_b32 v56, 2, v3\nv_and_b32 v57, 3, v3\nv_lshl_add_u32 v56, v4, 3, v56\nv_mul_u32_u24 v56, 240, v56")
    k("v_mul_u32_u24 v58, s30, v57\nv_add3_u32 v58, v58, v56, s28")
    k("v_add_u32 v60, s29, v56\nv_lshl_add_u32 v59, v57, 3, v60")
    k(f"s_lshl_b32 s31, s7, 4\ns_add_u32 s31, s31, s6\ns_mul_i32 s31, s31, 6400\ns_mul_i32 s32, s26, 3200\ns_add_u32 s31, s31, s32\ns_add_u32 s31, s31, {KVP}")
    k.stamp(4)
    k.wait_all(vm=False); k("s_barrier")
    k.stamp(5)
    k("s_cmp_ge_u32 s3, 6\ns_cbranch_scc1 a1_end")
    for s in range(4):
        for h in range(2):
            o = (32*s + 4*h) * 240
            k(f"ds_read_b64_tr_b16 {V(64+4*s+2*h,2)}, v58 offset:{o}\nds_read_b64_tr_b16 {V(80+4*s+2*h,2)}, v59 offset:{o}\nds_read_b64_tr_b16 {V(96+4*s+2*h,2)}, v60 offset:{o+32}")
    for s in range(4):
        k(MF("v[112:115]", V(64+4*s,4), V(80+4*s,4), "v[112:115]" if s else "0"))
        k(MF("v[116:119]", V(64+4*s,4), V(96+4*s,4), "v[116:119]" if s else "0"))
    k("s_cmp_eq_u32 s27, 2\ns_cbranch_scc1 a1_mt2")
    k("s_lshl_b32 s32, s27, 4\nv_lshl_add_u32 v61, v1, 5, s32")
    k("v_lshl_add_u32 v62, v3, 2, v4\nv_lshl_add_u32 v62, v62, 5, s32\nv_add_u32 v62, 2560, v62\nv_cmp_gt_u32 vcc, 4, v3\nv_cndmask_b32 v62, v6, v62, vcc")
    k("buffer_store_dwordx4 v[112:115], v61, s[16:19], s31 offen\nbuffer_store_dwordx4 v[116:119], v62, s[16:19], s31 offen")
    k("s_endpgm")
    k.label("a1_mt2")
    k("v_xor_b32 v63, s26, v4\nv_lshl_add_u32 v63, v3, 1, v63\nv_lshlrev_b32 v63, 4, v63")
    k("v_add_u32 v61, 2048, v63\nv_add_u32 v62, 3072, v63\nv_cmp_gt_u32 vcc, 2, v4\nv_cndmask_b32 v61, v6, v61, vcc\nv_cndmask_b32 v62, v6, v62, vcc")
    k("v_cmp_gt_u32 vcc, 4, v3\nv_cndmask_b32 v62, v6, v62, vcc")
    k("v_cmp_eq_u32 vcc, 0, v4\ns_nop 7")
    for j in range(8): k(f"v_cndmask_b32 v{112+j}, 0, v{112+j}, vcc")
    k("buffer_store_dwordx4 v[112:115], v61, s[16:19], s31 offen\nbuffer_store_dwordx4 v[116:119], v62, s[16:19], s31 offen")
    k.label("a1_end")
    k("s_endpgm")
    return k

def a2():
    k = Kern("attn2_kernel", vgpr=128, lds=4096, block=512, grid=256)
    k("s_cmp_ge_u32 s2, 256\ns_cbranch_scc1 a2_end")
    k("s_load_dwordx2 s[12:13], s[0:1], 80")
    k("v_and_b32 v1, 63, v0\nv_lshrrev_b32 v2, 6, v0\nv_readfirstlane_b32 s3, v2")
    k("s_and_b32 s7, s2, 15\ns_lshr_b32 s6, s2, 4\ns_lshl_b32 s8, s6, 3\ns_add_u32 s8, s8, s3")
    k("v_mov_b32 v6, 0x40000000\nv_lshlrev_b32 v7, 4, v0\nv_cmp_gt_u32 vcc, 400, v0\nv_cndmask_b32 v7, v6, v7, vcc")
    k(f"s_mul_i32 s9, s7, 102400\ns_add_u32 s9, s9, {KVP}")
    srd(k, 16, 12, WSSZ)
    for j in range(16):
        k(f"buffer_load_dwordx4 {V(32+4*j,4)}, v7, s[16:19], s9 offen\ns_add_u32 s9, s9, 6400")
    k("v_and_b32 v3, 15, v1\nv_lshrrev_b32 v4, 4, v1\nv_lshlrev_b32 v5, 4, v1")
    k("v_cmp_eq_u32 vcc, 0, v4\nv_cndmask_b32 v8, v6, v5, vcc")
    k(f"s_lshl_b32 s20, s8, 5\ns_lshl_b32 s21, s7, 1\ns_add_u32 s20, s20, s21\ns_lshl_b32 s20, s20, 10\ns_add_u32 s20, s20, {PQ}")
    k(f"s_lshl_b32 s21, s8, 4\ns_add_u32 s21, s21, s7\ns_lshl_b32 s21, s21, 8\ns_add_u32 s21, s21, {PQL}")
    k("buffer_load_dwordx4 v[96:99], v5, s[16:19], s20 offen\nbuffer_load_dwordx4 v[100:103], v5, s[16:19], s20 offen offset:1024\nbuffer_load_dwordx4 v[104:107], v8, s[16:19], s21 offen")
    if 'pc' in OPT: pf_code(k, "attn3_kernel", 110, 40)
    for o in OPT:
        if o.startswith('a2w'): pf_w(k, o[3:], 112, 44); k("v_cmp_eq_u32 vcc, 0, v4")
    k("v_mov_b32 v9, 1472\nv_add_u32 v10, 1024, v5\nv_cndmask_b32 v10, v9, v10, vcc")
    k("v_and_b32 v11, 3, v3\nv_lshl_add_u32 v12, v11, 2, v4\nv_lshlrev_b32 v12, 4, v12\nv_lshlrev_b32 v11, 4, v11\nv_add_u32 v11, 1536, v11\nv_cndmask_b32 v11, v9, v11, vcc")
    k("v_lshlrev_b32 v13, 3, v0")
    k(f"s_mul_i32 s22, s8, 18\ns_add_u32 s23, s22, s7\ns_lshl_b32 s23, s23, 10\ns_add_u32 s23, s23, {OF}")
    k(f"s_lshr_b32 s24, s7, 3\ns_add_u32 s22, s22, s24\ns_lshl_b32 s22, s22, 10\ns_bfe_u32 s24, s7, 0x20001\ns_lshl_b32 s24, s24, 8\ns_add_u32 s22, s22, s24\ns_and_b32 s24, s7, 1\ns_lshl_b32 s24, s24, 3\ns_add_u32 s22, s22, s24\ns_add_u32 s22, s22, {OF + 16384}")
    for c in range(4): k(f"v_add_f32 v{32+c}, v{32+c}, v{36+c}")
    for j in range(2, 16):
        for c in range(4): k(f"v_add_f32 v{32+c}, v{32+c}, v{32+4*j+c}")
    k("v_cvt_pk_bf16_f32 v32, v32, v33\nv_cvt_pk_bf16_f32 v33, v34, v35\nds_write_b64 v13, v[32:33]")
    k.stamp(1)
    k.wait_all(vm=False); k("s_barrier")
    k.stamp(2)
    for hh in range(2):
        b = 40 + 16*hh; o = 1600*hh
        k(f"ds_read_b128 {V(b,4)}, v5 offset:{o}\nds_read_b128 {V(b+4,4)}, v12 offset:{o+1280}\nds_read_b128 {V(b+8,4)}, v10 offset:{o}\nds_read_b128 {V(b+12,4)}, v11 offset:{o}")
    for hh in range(2):
        b = 40 + 16*hh; c = 72 + 8*hh; pq = V(96+4*hh, 4)
        k(MF(V(c,4), V(b,4), pq, "0")); k(MF(V(c+4,4), V(b+4,4), pq, "0"))
    for hh in range(2):
        b = 40 + 16*hh; c = 72 + 8*hh
        k(MF(V(c,4), V(b+8,4), "v[104:107]", V(c,4))); k(MF(V(c+4,4), V(b+12,4), "v[104:107]", V(c+4,4)))
    for hh in range(2):
        c = 72 + 8*hh
        bf16r(k, f"v{c+6}", f"v{c+6}")
        k(f"v_add_f32 v{c+6}, 0x358637bd, v{c+6}")
        bf16r(k, f"v{c+6}", f"v{c+6}")
        k(f"v_rcp_f32 v{c+6}, v{c+6}")
    for hh in range(2):
        c = 72 + 8*hh
        for j in range(6): k(f"v_mul_f32 v{c+j}, v{c+j}, v{c+6}")
        k(f"v_cvt_pk_bf16_f32 v{88+2*hh}, v{c}, v{c+1}\nv_cvt_pk_bf16_f32 v{89+2*hh}, v{c+2}, v{c+3}\nv_cvt_pk_bf16_f32 v{92+hh}, v{c+4}, v{c+5}")
    k("buffer_store_dwordx4 v[88:91], v5, s[16:19], s23 offen\nbuffer_store_dwordx2 v[92:93], v8, s[16:19], s22 offen")
    k.label("a2_end")
    k("s_endpgm")
    return k

def a3():
    XO = 40960; MO = XO + 10240
    k = Kern("attn3_kernel", vgpr=256, lds=MO + 128, block=320, grid=256)
    k("s_cmp_ge_u32 s2, 256\ns_cbranch_scc1 a3_end")
    k("s_load_dwordx2 s[12:13], s[0:1], 80\ns_load_dwordx2 s[4:5], s[0:1], 0")
    k("v_and_b32 v1, 63, v0\nv_lshrrev_b32 v2, 6, v0\nv_readfirstlane_b32 s3, v2")
    k("v_lshlrev_b32 v5, 4, v1")
    k("s_and_b32 s7, s2, 3\ns_lshr_b32 s6, s2, 2")
    k(f"s_lshl_b32 s9, s3, 10\ns_mul_i32 s10, s6, 36864\ns_add_u32 s10, s10, s9\ns_add_u32 s10, s10, {OF}")
    srd(k, 16, 12, WSSZ)
    for i in range(8):
        k(f"s_add_u32 m0, s9, {5120*i}\nbuffer_load_dwordx4 v5, s[16:19], s10 offen lds\ns_add_u32 s10, s10, 5120")
    srd(k, 20, 4, 2359296)
    k("s_mul_i32 s11, s6, 36864\ns_mul_i32 s14, s7, 288\ns_add_u32 s11, s11, s14")
    for r in range(2):
        k(f"v_add_u32 v7, {320*r}, v0\nv_mul_u32_u24 v8, 3641, v7\nv_lshrrev_b32 v8, 16, v8\nv_mul_u32_u24 v9, 18, v8\nv_sub_u32 v9, v7, v9\nv_mul_u32_u24 v8, 1152, v8\nv_lshl_add_u32 v8, v9, 4, v8")
        k(f"s_add_u32 m0, s9, {XO + 5120*r}\nbuffer_load_dwordx4 v8, s[20:23], s11 offen lds", tag="DX")
    k("v_and_b32 v3, 15, v1\nv_lshrrev_b32 v4, 4, v1\nv_mov_b32 v6, 0x40000000")
    k("s_and_b32 s14, s7, 1\ns_lshl_b32 s15, s3, 1\ns_add_u32 s15, s15, s14")
    k("s_xor_b32 s24, s14, 1\ns_lshl_b32 s24, s24, 3\ns_cmp_lt_u32 s3, 4\ns_cselect_b32 s15, s15, s24")
    k("s_mul_i32 s24, s7, 9\ns_add_u32 s24, s24, s15\ns_add_u32 s25, s24, 1\ns_cselect_b32 s25, s25, 36".replace("s_add_u32 s25, s24, 1\ns_cselect_b32 s25, s25, 36", "s_add_u32 s25, s24, 1\ns_cmp_lt_u32 s3, 4\ns_cselect_b32 s25, s25, 36"))
    k(f"s_mul_i32 s26, s24, 18432\ns_add_u32 s26, s26, {WOF}\ns_mul_i32 s27, s25, 18432\ns_add_u32 s27, s27, {WOF}")
    k("s_cmp_lt_u32 s3, 4\ns_cselect_b32 s28, 16, 2\nv_cmp_gt_u32 vcc, s28, v3\nv_cndmask_b32 v10, v6, v5, vcc")
    for ks in range(18):
        k(f"buffer_load_dwordx4 {V(64+8*ks,4)}, v5, s[16:19], s26 offen offset:{1024*(ks%4)}\nbuffer_load_dwordx4 {V(68+8*ks,4)}, v10, s[16:19], s27 offen offset:{1024*(ks%4)}")
        if ks % 4 == 3: k("s_add_u32 s26, s26, 4096\ns_add_u32 s27, s27, 4096")
    k(f"v_lshlrev_b32 v11, 2, v3\ns_lshl_b32 s29, s6, 7\ns_add_u32 s29, s29, {MX}\nbuffer_load_dword v12, v11, s[16:19], s29 offen\nbuffer_load_dword v13, v11, s[16:19], s29 offen offset:64")
    if 'pc' in OPT: pf_code(k, "ffn_kernel", 240, 40)
    for o in OPT:
        if o.startswith('a3w'): pf_w(k, o[3:], 242, 44)
    k(f"v_mul_u32_u24 v14, 288, v3\nv_lshl_add_u32 v14, v4, 3, v14\ns_lshl_b32 s30, s15, 5\ns_add_u32 s30, s30, {XO}\nv_add_u32 v14, s30, v14")
    k(f"v_add_u32 v15, {MO}, v11")
    k.stamp(1)
    k.wait_vm("DX"); k("s_barrier")
    k.stamp(2)
    def rd(ks):
        k(f"ds_read_b128 {V(16+8*(ks%3),4)}, v5 offset:{ks*1024}\nds_read_b128 {V(20+8*(ks%3),4)}, v5 offset:{(18+ks)*1024}")
    rd(0); rd(1)
    for tt in range(2):
        for t in range(2): k(f"ds_read_b64 {V(208+4*tt+2*t,2)}, v14 offset:{tt*4608+32*t}")
    for ks in range(18):
        if ks + 2 < 18: rd(ks + 2)
        for t in range(2):
            for tt in range(2):
                c = V(40 + 8*tt + 4*t, 4)
                k(MF(c, V(64+8*ks+4*t,4), V(16+8*(ks%3)+4*tt,4), c if ks else "0"))
    k.stamp(3)
    k("s_cmp_lt_u32 s3, 4\ns_cbranch_scc1 a3_nomean")
    k.skip_begin()
    for tt in range(2):
        k(f"v_add_f32 v{44+8*tt}, v{44+8*tt}, v{45+8*tt}\nv_add_f32 v{44+8*tt}, v{44+8*tt}, v{12+tt}")
        bf16r(k, f"v{44+8*tt}", f"v{44+8*tt}")
    k("s_mov_b64 exec, 0xffff\nds_write_b32 v15, v44\nds_write_b32 v15, v52 offset:64\ns_mov_b64 exec, -1")
    k.wait_all(vm=False)
    k.skip_end("a3_nomean")
    k("s_barrier")
    k.stamp(4)
    k("ds_read_b32 v12, v15\nds_read_b32 v13, v15 offset:64")
    k("s_mov_b32 s31, 0xffff0000")
    for tt in range(2):
        for t in range(2):
            for hf in range(2):
                c = 40 + 8*tt + 4*t + 2*hf; xr = 208 + 4*tt + 2*t + hf; ho = 216 + 4*tt + 2*t + hf; co = 224 + 4*tt + 2*t + hf
                k(f"v_cvt_pk_bf16_f32 v56, v{c}, v{c+1}\nv_lshlrev_b32 v57, 16, v56\nv_and_b32 v56, s31, v56")
                k(f"v_lshlrev_b32 v58, 16, v{xr}\nv_and_b32 v59, s31, v{xr}\nv_add_f32 v57, v57, v58\nv_add_f32 v56, v56, v59")
                k(f"v_cvt_pk_bf16_f32 v{ho}, v57, v56\nv_lshlrev_b32 v57, 16, v{ho}\nv_and_b32 v56, s31, v{ho}")
                k(f"v_sub_f32 v57, v57, v{12+tt}\nv_sub_f32 v56, v56, v{12+tt}\nv_cvt_pk_bf16_f32 v{co}, v57, v56")
                sq = 60 + 2*tt + t
                if hf == 0: k(f"v_mul_f32 v{sq}, v57, v57\nv_fmac_f32 v{sq}, v56, v56")
                else: k(f"v_fmac_f32 v{sq}, v57, v57\nv_fmac_f32 v{sq}, v56, v56")
    k.stamp(5)
    k(f"s_lshl_b32 s32, s6, 1\ns_mul_i32 s32, s32, 18\ns_lshr_b32 s33, s24, 1\ns_add_u32 s32, s32, s33\ns_lshl_b32 s32, s32, 10\ns_add_u32 s33, s32, {HR}\ns_add_u32 s32, s32, {HC}")
    k("s_add_u32 s34, s32, 18432\ns_add_u32 s35, s33, 18432")
    k(f"v_mul_u32_u24 v11, 80, v3\nv_cmp_eq_u32 vcc, 0, v4\nv_cndmask_b32 v11, v6, v11, vcc\ns_mul_i32 s36, s6, 2560\ns_mul_i32 s37, s7, 5\ns_add_u32 s37, s37, s3\ns_lshl_b32 s37, s37, 2\ns_add_u32 s36, s36, s37\ns_add_u32 s36, s36, {SSQ}")
    k("s_cmp_lt_u32 s3, 4\ns_cbranch_scc0 a3_single")
    k("buffer_store_dwordx4 v[224:227], v5, s[16:19], s32 offen\nbuffer_store_dwordx4 v[228:231], v5, s[16:19], s34 offen")
    k("buffer_store_dwordx4 v[216:219], v5, s[16:19], s33 offen\nbuffer_store_dwordx4 v[220:223], v5, s[16:19], s35 offen")
    k("v_add_f32 v60, v60, v61\nv_add_f32 v62, v62, v63\ns_branch a3_ssq")
    k.label("a3_single")
    k("s_and_b32 s37, s24, 1\ns_lshl_b32 s37, s37, 3\nv_add_u32 v10, s37, v5\ns_nop 1")
    k("buffer_store_dwordx2 v[224:225], v10, s[16:19], s32 offen\nbuffer_store_dwordx2 v[228:229], v10, s[16:19], s34 offen")
    k("buffer_store_dwordx2 v[216:217], v10, s[16:19], s33 offen\nbuffer_store_dwordx2 v[220:221], v10, s[16:19], s35 offen")
    k.label("a3_ssq")
    k("s_nop 1")
    for r in (60, 62):
        k(f"v_mov_b32 v{r+1}, v{r}\nv_permlane32_swap_b32 v{r}, v{r+1}\nv_add_f32 v{r}, v{r}, v{r+1}")
        k(f"v_mov_b32 v{r+1}, v{r}\nv_permlane16_swap_b32 v{r}, v{r+1}\nv_add_f32 v{r}, v{r}, v{r+1}")
    k("buffer_store_dword v60, v11, s[16:19], s36 offen\nbuffer_store_dword v62, v11, s[16:19], s36 offen offset:1280")
    k.label("a3_end")
    k("s_endpgm")
    return k

def kernels():
    return [k0(), a1(), a2(), a3(), k3(), k4()]

if __name__ == "__main__":
    if len(sys.argv) > 2: Kern.prof = 0
    ks = kernels()
    print(ks[4].log)
    out = sys.argv[1] if len(sys.argv) > 1 else "cur.s"
    if len(sys.argv) > 2:
        for i, k in enumerate(ks): k.prof = PROF + i * 0x100000
    build_file(ks, out)
    for k in ks: print(k.name, "nops", k.nnops, "waits", k.nwaits)
```

```python
import sys
sys.path.insert(0, 'dev')
from asmlib import *
from wsmap import *
import os
OPT = set(os.environ.get('OPT', '').split(','))

def cost(I): return 8 if I.cls == 'trans' else 4

def k3(G1=int(os.environ.get("G1", 3)), defer=2, store_mod=os.environ.get("SMOD", "")):
    k = Kern("ffn_kernel", vgpr=256, agpr=256, lds=163840, block=256, grid=256)
    PB = 11
    vW, vWH, vW2, vH0, vH1 = 4, 5, 6, 7, 8
    vT = [[9, 10], [11, 12], [13, 14]]; vTH = [15, 16, 17]; vR = [18, 19, 20]; vPW, vPW8 = 21, 22
    vS = [23, 24, 25, 26]; C1 = [27, 28, 29, 30]; C2 = [31, 32, 33, 34]
    AF = [48, 64]; ACC = [80, 144]; HCV = 208; TMP = 240
    sK = lambda ks: f"s{40+ks}"
    sJ = lambda j: f"s{58+j}"
    def hc(ks, tt): return A(16*ks + 4*tt, 4) if ks < 16 else V(HCV + 16*(ks-16) + 4*tt, 4)
    def pf(j, tt): return A(16*j + 4*tt, 4)

    k("s_cmp_ge_u32 s2, 256\ns_cbranch_scc1 ffn_end")
    k("s_load_dwordx4 s[4:7], s[0:1], 40\ns_load_dwordx2 s[8:9], s[0:1], 56\ns_load_dwordx2 s[12:13], s[0:1], 80")
    k("v_and_b32 v1, 63, v0\nv_lshrrev_b32 v2, 6, v0\nv_readfirstlane_b32 s3, v2")
    k("s_and_b32 s10, s2, 7\ns_bfe_u32 s11, s2, 0x10003\ns_lshr_b32 s14, s2, 4")
    k(f"v_lshlrev_b32 v{vH0}, 4, v1\nv_add_u32 v{vH1}, {18432-1024}, v{vH0}")
    k("v_lshrrev_b32 v2, 3, v1\nv_and_b32 v3, 6, v2\nv_and_b32 v35, 7, v1\nv_xor_b32 v3, v3, v35\nv_lshlrev_b32 v3, 4, v3")
    k("s_lshl_b32 s67, s3, 11\ns_lshl_b32 s68, s3, 10\ns_lshl_b32 s15, s3, 3\nv_add_u32 v2, s15, v2")
    k(f"v_mul_u32_u24 v{vW}, 9216, v2\nv_add_u32 v{vW}, v{vW}, v3\nv_mul_u32_u24 v{vW2}, 1152, v2\nv_add_u32 v{vW2}, v{vW2}, v3")
    k(f"s_lshl_b32 s69, s14, 3\ns_lshl_b32 s15, s3, 1\ns_add_u32 s69, s69, s15\ns_mul_i32 s69, s69, 18432\ns_add_u32 s69, s69, {HC}")
    if 'hchot' in OPT: k(f"s_mul_i32 s69, s15, 18432\ns_add_u32 s69, s69, {HC}")
    k("s_mul_i32 s71, s10, 576\ns_mul_i32 s72, s11, 320\ns_add_u32 s72, s72, s71")
    k(f"s_lshl_b32 {sK(0)}, s72, 1")
    for ks in range(1, 18): k(f"s_add_u32 {sK(ks)}, {sK(ks-1)}, 294912")
    srd(k, 16, 12, WSSZ)
    srd(k, 20, 4, 5308416)
    k("s_sub_u32 s24, s6, 1024\ns_subb_u32 s25, s7, 0\ns_mov_b32 s26, 5309440\ns_mov_b32 s27, 0x20000")

    O2 = []
    for n in range(defer): O2 += [(n, j) for j in range(6)]
    for jj in ((6, 7),):
        for n in range(defer): O2 += [(n, j) for j in jj]
    O2 += [(n, 8) for n in range(defer)]
    for n in range(defer, 9): O2 += [(n, j) for j in range(9)]
    S2 = 81
    NS = S2 + (81 + 1) // 2
    sP67 = S2 + 3*defer - 1
    i8 = O2.index((0, 8)); sP8 = S2 + i8 // 2 - 1
    B = set([-1, 0, 1, 2, 3, 4, 5] + list(range(6, 18, 2)) + list(range(18, NS, G1)) + [sP67, sP8, 72])
    B = sorted(b for b in B if b < NS - 1)
    for f in (sP67, sP8):
        for b in (f - 1, f + 1):
            if b in B and b not in (sP67, sP8): B.remove(b)
    pb = lambda r: max(b for b in B if b <= r)
    rb = lambda r: min([b for b in B if b > r] + [10**6])
    units = []
    for s in range(NS):
        if s < 18: units.append(('H', s, s))
        units.append(('W', s, s))
    slot_of = {}
    free = list(range(20)); held = []
    prel = set()
    def pdead(sl):
        if sl < PB or sl in prel: return 10**6
        j = sl - PB
        return 18*(j//2 + 1) if j < 8 else S2
    state = dict(sp=0, nsp=0, m0=None)
    def dma_ops(u, sl):
        kind, s, _ = u
        tag = f"{kind}{s}"; ops = []
        base = sl * 8192
        if kind == 'H':
            ops += [(f"s_add_u32 m0, s67, {base}", None), (f"buffer_load_dwordx4 v{vH0}, s[16:19], s69 offen lds", tag), (f"buffer_load_dwordx4 v{vH1}, s[16:19], s69 offen offset:1024 lds", tag), ("s_add_u32 s69, s69, 1024", None)]
        elif s < 72:
            sp, ks = divmod(s, 18)
            if sp != state['sp']: ops.append((f"v_add_u32 v{vW}, 128, v{vW}", None)); state['sp'] = sp
            ops += [(f"s_add_u32 m0, s67, {base}", None), (f"buffer_load_dwordx4 v{vW}, s[20:23], {sK(ks)} offen lds", tag), (f"buffer_load_dwordx4 v{vW}, s[24:27], {sK(ks)} offen offset:1024 lds", tag)]
        elif s < S2:
            for kp in range(2):
                ops += [(f"s_add_u32 m0, s68, {base + 4096*kp}", None), (f"buffer_load_dwordx4 v{vWH}, s[28:31], {sK(2*(s-72)+kp)} offen lds", tag)]
        else:
            ops.append((f"s_add_u32 m0, s67, {base}", None))
            for par in range(2):
                i = 2*(s - S2) + par
                if i >= 81: continue
                n, j = O2[i]
                if n != state['nsp']:
                    ops.append((f"v_add_u32 v{vW2}, {((n - state['nsp'])*128) & 0xffffffff}, v{vW2}", None)); state['nsp'] = n
                ops.append((f"buffer_load_dwordx4 v{vW2}, s[{32+4*par}:{35+4*par}], {sJ(j)} offen{' offset:1024' if par else ''} lds", tag))
        return ops
    upos = 0
    LA0 = int(os.environ.get('LA0', 6))
    def issue(step, cap):
        nonlocal upos
        ops = []
        while cap > 0 and upos < len(units):
            u = units[upos]; r = rb(u[2] - 1)
            if u[2] > max(step, -1) + (LA0 if step < 18 else 100): break
            cand = [sl for sl in free if pdead(sl) >= r]
            if not cand: break
            sl = max(cand); free.remove(sl); slot_of[(u[0], u[1])] = sl; held.append((r, sl))
            ops += [(o, t, pb(u[2] - 1)) for o, t in dma_ops(u, sl)]; upos += 1; cap -= 1
        return ops
    def reads_for(s):
        ops = []
        sl = slot_of[('W', s)]; reg, off = divmod(sl * 8192, 65536); af = AF[s % 2]
        if s < 18:
            hs = slot_of[('H', s)]; hr, ho = divmod(hs * 8192, 65536)
            hops = [f"ds_read_b128 {hc(s, tt)}, v{vR[hr]} offset:{ho + 1024*tt}" for tt in range(4)]
        else: hops = []
        if 72 <= s < S2:
            for kp in range(2):
                for m in range(2):
                    for h in range(2): ops.append(f"ds_read_b64_tr_b16 {V(af + 8*kp + 4*m + 2*h, 2)}, v{vTH[reg]} offset:{off + 4096*kp + 2048*m + 1024*h}")
        else:
            for m in range(2):
                if s >= S2 and 2*(s - S2) + m >= 81: continue
                for t in range(2):
                    for h in range(2): ops.append(f"ds_read_b64_tr_b16 {V(af + 8*m + 4*t + 2*h, 2)}, v{vT[reg][t]} offset:{off + 1024*m + 4096*h}")
        return ops[:2] + hops + ops[2:]
    acc2 = {}
    accs = [ACC[0] + 32, HCV, ACC[1], ACC[1] + 32]
    for n in range(9): acc2[n] = accs[n % (defer + 1)]
    def mfmas(s):
        af = AF[s % 2]; out = []
        if s < 72:
            sp, ks = divmod(s, 18); a = ACC[sp % 2]
            if sp == 0 and 'nogram' not in OPT:
                for tt in range(4): out.append(MF(V(TMP + 4*tt, 4), hc(ks, tt), hc(ks, tt), V(TMP + 4*tt, 4) if ks else "0"))
            for m in range(4):
                for tt in range(4):
                    c = V(a + 16*m + 4*tt, 4); out.append(MF(c, V(af + 4*m, 4), hc(ks, tt), c if ks else "0"))
        elif s < S2:
            for kp in range(2):
                ks = 2*(s - 72) + kp
                for m in range(2):
                    for tt in range(4):
                        c = V(ACC[0] + 16*m + 4*tt, 4); out.append(MF(c, V(af + 8*kp + 4*m, 4), hc(ks, tt), c if ks else "0"))
        else:
            for par in range(2):
                i = 2*(s - S2) + par
                if i >= 81: continue
                n, j = O2[i]
                for t in range(2):
                    for tt in range(4):
                        c = V(acc2[n] + 16*t + 4*tt, 4); out.append(MF(c, V(af + 8*par + 4*t, 4), pf(j, tt), c if j else "0"))
        return out
    def silu(sp):
        ops = []
        if sp < 4: a = ACC[sp % 2]; nt = 2; bo = 32
        else: a = ACC[0]; nt = 1; bo = 16
        for tt in range(4):
            for t in range(nt):
                ga = a + 16*t + 4*tt; ub = ga + bo
                for r in range(4): ops += [f"v_mul_f32 v{ub+r}, v{ga+r}, v{ub+r}", f"v_mul_f32 v{ga+r}, v{ga+r}, v{C1[tt]}"]
                for r in range(4): ops.append(f"v_exp_f32 v{ga+r}, v{ga+r}")
                for r in range(4): ops.append(f"v_fma_f32 v{ga+r}, v{ga+r}, v{C2[tt]}, v{C2[tt]}")
                for r in range(4): ops.append(f"v_rcp_f32 v{ga+r}, v{ga+r}")
                for r in range(4): ops.append(f"v_mul_f32 v{ub+r}, v{ub+r}, v{ga+r}")
                d = a + 4*tt + 2*t
                ops += [f"v_cvt_pk_bf16_f32 v{d}, v{ub}, v{ub+1}", f"v_cvt_pk_bf16_f32 v{d+1}, v{ub+2}, v{ub+3}"]
            if sp < 4: ops.append(f"ds_write_b128 v{vPW}, {V(a + 4*tt, 4)} offset:{16384*sp + 1024*tt}")
            else: ops.append(f"ds_write_b64 v{vPW8}, {V(a + 4*tt, 2)} offset:{1024*tt}")
        if 'nosilu' in OPT: ops = [o for o in ops if o.startswith('ds_')]
        return [Ins(o, f"silu{sp}") for o in ops]
    def epi(n):
        a = acc2[n]; ops = []
        for tt in range(4):
            d = a + 4*tt
            ops += [f"v_cvt_pk_bf16_f32 v{d}, v{d}, v{d+1}", f"v_cvt_pk_bf16_f32 v{d+1}, v{d+2}, v{d+3}", f"v_cvt_pk_bf16_f32 v{d+2}, v{d+16}, v{d+17}", f"v_cvt_pk_bf16_f32 v{d+3}, v{d+18}, v{d+19}"]
            if 'nostore' not in OPT: ops.append(f"buffer_store_dwordx4 {V(d,4)}, v{vS[tt]}, s[16:19], s70 offen {store_mod}")
        ops.append("s_add_u32 s70, s70, 2048")
        return [Ins(o, f"epi{n}") for o in ops]

    first = issue(-2, 4)
    for o, t, _ in first: k(o, tag=t)
    k(f"v_and_b32 v2, 15, v1\nv_lshrrev_b32 v3, 4, v1\ns_lshr_b32 s73, s3, 1\ns_and_b32 s74, s3, 1")
    for o, t, _ in issue(-2, int(os.environ.get('PRO', 2))): k(o, tag=t)
    k("v_lshrrev_b32 v37, 2, v2\nv_and_b32 v38, 1, v3\nv_lshl_add_u32 v37, v38, 2, v37")
    k("s_lshl_b32 s15, s74, 2\nv_and_b32 v39, 6, v37\nv_xor_b32 v39, s15, v39\nv_lshlrev_b32 v39, 4, v39\nv_lshl_add_u32 v39, v37, 7, v39")
    k(f"v_and_b32 v40, 3, v2\nv_lshl_add_u32 v39, v40, 3, v39\nv_lshrrev_b32 v41, 1, v3\nv_lshl_add_u32 v{vT[0][0]}, v41, 11, v39\nv_xor_b32 v{vT[0][1]}, 32, v{vT[0][0]}")
    k(f"s_lshl_b32 s15, s73, 12\nv_add_u32 v{vR[0]}, s15, v{vH0}")
    for r in (1, 2):
        k(f"v_add_u32 v{vT[r][0]}, {65536*r}, v{vT[0][0]}\nv_add_u32 v{vT[r][1]}, {65536*r}, v{vT[0][1]}\nv_add_u32 v{vR[r]}, {65536*r}, v{vR[0]}")
    late = []
    L = late.append
    L("v_lshrrev_b32 v37, 2, v2"); L("v_lshl_add_u32 v37, v3, 2, v37"); L("v_xor_b32 v39, s74, v38"); L("v_lshlrev_b32 v39, 5, v39"); L("v_lshl_add_u32 v39, v37, 6, v39"); L(f"v_lshl_add_u32 v{vTH[0]}, v40, 3, v39")
    for r in (1, 2): L(f"v_add_u32 v{vTH[r]}, {65536*r}, v{vTH[0]}")
    L("s_lshl_b32 s15, s74, 13"); L(f"s_add_u32 s15, s15, {PB*8192}"); L(f"v_add_u32 v{vPW}, s15, v{vR[0]}")
    L("s_lshl_b32 s15, s74, 3"); L(f"s_add_u32 s15, s15, {(PB+8)*8192}"); L(f"v_add_u32 v{vPW8}, s15, v{vR[0]}")
    for tt in range(4): L(f"v_add_u32 v{vS[tt]}, {18432*tt}, v{vH0}")
    L("v_lshrrev_b32 v37, 2, v1"); L("s_lshl_b32 s15, s74, 4"); L("v_add_u32 v37, s15, v37"); L("v_lshrrev_b32 v39, 3, v1"); L("v_and_b32 v39, 2, v39"); L("v_and_b32 v41, 3, v1"); L("v_xor_b32 v39, v39, v41")
    L(f"v_mul_u32_u24 v{vWH}, 9216, v37"); L(f"v_lshl_add_u32 v{vWH}, v39, 4, v{vWH}")
    L("s_cmp_eq_u32 s73, 0"); L("s_cselect_b32 s28, s4, s6"); L("s_cselect_b32 s29, s5, s7"); L("s_movk_i32 s75, -64"); L("s_cmp_eq_u32 s11, 0"); L("s_cselect_b32 s15, 512, s75"); L("s_cselect_b32 s75, 0, -1"); L("s_add_u32 s28, s28, s15"); L("s_addc_u32 s29, s29, s75")
    L("s_mov_b32 s30, 5308416"); L("s_mov_b32 s31, 0x20000")
    L("s_mov_b32 s32, s8"); L("s_mov_b32 s33, s9"); L("s_mov_b32 s34, 5308416"); L("s_mov_b32 s35, 0x20000")
    L("s_sub_u32 s36, s8, 1024"); L("s_subb_u32 s37, s9, 0"); L("s_mov_b32 s38, 5309440"); L("s_mov_b32 s39, 0x20000")
    L(f"s_mul_i32 {sJ(0)}, s72, 1152")
    for j in range(1, 8): L(f"s_add_u32 {sJ(j)}, {sJ(j-1)}, 36864")
    L("s_lshl_b32 s15, s11, 5"); L("s_add_u32 s15, s15, s71"); L("s_add_u32 s15, s15, 256"); L(f"s_mul_i32 {sJ(8)}, s15, 1152")
    L("s_lshl_b32 s70, s10, 1"); L("s_add_u32 s70, s70, s11"); L("s_lshl_b32 s70, s70, 7"); L("s_lshl_b32 s15, s14, 3"); L("s_add_u32 s70, s70, s15"); L("s_lshl_b32 s15, s73, 2"); L("s_add_u32 s70, s70, s15")
    L("s_mul_i32 s70, s70, 18"); L("s_add_u32 s70, s70, s74"); L("s_lshl_b32 s70, s70, 10"); L(f"s_add_u32 s70, s70, {PART}")
    L("v_and_b32 v37, 1, v2"); L("v_cmp_eq_u32_e64 s[76:77], 1, v37"); L("v_and_b32 v37, 2, v2"); L("v_cmp_eq_u32_e64 s[78:79], 2, v37"); L("v_lshrrev_b32 v37, 2, v2"); L("v_cmp_eq_u32_e64 s[80:81], v37, v3")
    for o in late: k(o)
    if 'pc' in OPT: pf_code(k, "red_kernel", 42, 82, s3=15)
    rs = []
    R = rs.append
    for tt in range(4):
        t = TMP + 4*tt; c = C2[tt]; d = C1[tt]
        R(f"v_cndmask_b32_e64 v{t}, v{t}, v{t+1}, s[76:77]"); R(f"v_cndmask_b32_e64 v{t+2}, v{t+2}, v{t+3}, s[76:77]"); R(f"v_cndmask_b32_e64 v{t}, v{t}, v{t+2}, s[78:79]"); R(f"v_cndmask_b32_e64 v{c}, 0, v{t}, s[80:81]")
        R(f"v_mov_b32 v{t}, v{c}"); R(f"v_permlane32_swap_b32 v{c}, v{t}"); R(f"v_add_f32 v{c}, v{c}, v{t}")
        R(f"v_mov_b32 v{t}, v{c}"); R(f"v_permlane16_swap_b32 v{c}, v{t}"); R(f"v_add_f32 v{c}, v{c}, v{t}")
        R(f"v_mul_f32 v{c}, 0x3ae38e39, v{c}"); R(f"v_cvt_pk_bf16_f32 v{c}, v{c}, v{c}"); R(f"v_lshlrev_b32 v{c}, 16, v{c}")
        R(f"v_add_f32 v{c}, 0x3727c5ac, v{c}"); R(f"v_cvt_pk_bf16_f32 v{c}, v{c}, v{c}"); R(f"v_lshlrev_b32 v{c}, 16, v{c}")
        R(f"v_sqrt_f32 v{c}, v{c}"); R(f"v_cvt_pk_bf16_f32 v{c}, v{c}, v{c}"); R(f"v_lshlrev_b32 v{c}, 16, v{c}")
        R(f"v_rcp_f32 v{d}, v{c}"); R(f"v_mul_f32 v{c}, v{c}, v{c}"); R(f"v_mul_f32 v{d}, {LOG2E | 0x80000000}, v{d}")
    fq = []
    def conflicts(I, J):
        return bool((set(I.rd) | set(I.wr)) & set(J.wr)) or bool(set(I.wr) & set(J.rd))
    def take(budget, allow_ds, allow_vm=True):
        for i, I in enumerate(fq[:28]):
            if cost(I) > budget: continue
            if I.cls == 'vmem' and not allow_vm: continue
            if I.cls == 'ds' and not allow_ds: continue
            if any(conflicts(I, J) for J in fq[:i]): continue
            if I.cls == 'vmem' and any(J.cls == 'vmem' for J in fq[:i]): continue
            return fq.pop(i)
        return None
    def flush(tags):
        n = 0
        last = max([i for i, I in enumerate(fq) if I.tag in tags] + [-1])
        for i in range(last + 1): k.add(fq.pop(0)); n += 1
        return n
    def barrier(b):
        for e in list(held):
            if e[0] <= b: held.remove(e); free.append(e[1])
        for j in range(9):
            if b > (73 + j if j < 6 else (sP67 if j < 8 else sP8)): prel.add(PB + j)
        last = max([i for i, e in enumerate(dma) if e[2] <= b] + [-1])
        if last >= 0: log.append((b, "dmaforce", last + 1))
        for i in range(last + 1): o, t, _ = dma.pop(0); k(o, tag=t)
        tags = set(f"{u[0]}{u[1]}" for u in units if pb(u[2] - 1) == b)
        k.wait_both(tags, 'all')
        if 'nobar' not in OPT: k("s_barrier")
    dma = []; log = []
    k.stamp(1)
    barrier(-1)
    k.stamp(2)
    for o in reads_for(0): k(o, tag="rd")
    done2 = set(); gap = 0; lastvm = -100
    VSP0, VSP1, VSP2, DMAC, DSC, PRO = [int(os.environ.get(n, d)) for n, d in (('VSP0', 3), ('VSP1', 7), ('VSP2', 4), ('DMAC', 4), ('DSC', 4), ('PRO', 16))]
    for s in range(NS):
        if s in (18, 36, 54, 72):
            dl = {18: {"late"}, 36: {"silu0"}, 54: {"silu1"}, 72: {"silu2"}}[s]
            n = flush(dl)
            if n: log.append((s, "flush", n))
            fq += silu(s // 18 - 1)
        if s == S2: fq += silu(4)
        if s == sP67: log.append((s, "flush3", flush({"silu3"})))
        if s == sP8: log.append((s, "flush4", flush({"silu4"})))
        if s >= S2:
            for par in range(2):
                i = 2*(s - S2) + par
                if i < 81 and O2[i][1] == 0 and O2[i][0] > defer:
                    n = flush({f"epi{O2[i][0] - defer - 1}"})
                    if n: log.append((s, "flushepi", n))
        if s in (18, 72, S2): k.stamp({18: 3, 72: 4, S2: 5}[s])
        if s in B: barrier(s)
        else: k.wait_lg("rd")
        lds = reads_for(s + 1) if s + 1 < NS else []
        if 73 <= s <= 78: lds += [f"ds_read_b128 {pf(s-73, tt)}, v{vR[((PB+s-73)*8192)//65536]} offset:{((PB+s-73)*8192) % 65536 + 1024*tt}" for tt in range(4)]
        pj = [6, 7] if s == sP67 else ([8] if s == sP8 else [])
        for j in pj: lds = [f"ds_read_b128 {pf(j, tt)}, v{vR[((PB+j)*8192)//65536]} offset:{((PB+j)*8192) % 65536 + 1024*tt}" for tt in range(4)] + lds
        cap = int(os.environ.get('CAP0', 3)) if s < 18 else int(os.environ.get('CAP1', 2))
        dma += issue(s, cap - (sum(1 for e in dma if e[1]) + 1) // 2)
        if 'nodma' in OPT: dma.clear()
        if 'nolds' in OPT: lds = []
        M = mfmas(s)
        for gi, m in enumerate(M):
            k(m)
            if s == 17 and gi == 7: fq += [Ins(o, "rs") for o in rs]
            if s >= S2:
                i = 2*(s - S2) + gi // 8
                if gi % 8 == 7 and O2[i][1] == 8: fq += epi(O2[i][0])
            budget = 8
            if gi == len(M) - 1: budget = 0 if (s + 1) in B else 4
            left = len(M) - gi
            nl = 2 if len(lds) > max(left - 5, 0) else 1
            used_ds = False
            while lds and nl > 0 and (budget >= 4 or gi == len(M) - 1):
                k(lds.pop(0), tag="rd"); budget -= DSC; nl -= 1; used_ds = True
            if gi == len(M) - 1:
                while lds: k(lds.pop(0), tag="rd")
            gap += 1
            space = VSP0 if s < 18 else (VSP1 if s < S2 else VSP2)
            if dma and budget >= 4:
                isv = dma[0][0].startswith('buffer')
                if not isv or gap - lastvm >= space:
                    o, t, _ = dma.pop(0); k(o, tag=t); budget -= (DMAC if isv else 4)
                    if isv: lastvm = gap
            while budget >= 4:
                I = take(budget, allow_ds=(not used_ds and gi < len(M) - 4), allow_vm=(gap - lastvm >= space))
                if I is None: break
                k.add(I); budget -= cost(I)
                if I.cls == 'ds': used_ds = True
                if I.cls == 'vmem': lastvm = gap
    k.stamp(6)
    log.append(("end", "flush", flush({f"epi{n}" for n in range(9)})))
    assert not fq and upos == len(units)
    k.label("ffn_end")
    k("s_endpgm")
    k.log = log
    return k

def k4():
    k = Kern("red_kernel", vgpr=96, lds=0, block=576, grid=256)
    k("s_cmp_ge_u32 s2, 256\ns_cbranch_scc1 red_end")
    k("s_load_dwordx2 s[12:13], s[0:1], 80\ns_load_dwordx2 s[4:5], s[0:1], 64")
    k("v_and_b32 v1, 63, v0\nv_lshrrev_b32 v2, 6, v0\nv_readfirstlane_b32 s3, v2")
    k("v_and_b32 v3, 7, v1\nv_bfe_u32 v4, v1, 3, 1\nv_lshrrev_b32 v5, 4, v1")
    k("v_lshlrev_b32 v6, 4, v3\nv_lshl_add_u32 v6, v4, 10, v6\nv_lshl_add_u32 v6, v5, 8, v6")
    k("s_lshr_b32 s6, s2, 1\ns_mul_i32 s6, s6, 18\ns_lshl_b32 s7, s3, 1\ns_add_u32 s6, s6, s7\ns_lshl_b32 s6, s6, 10\ns_and_b32 s7, s2, 1\ns_lshl_b32 s7, s7, 7\ns_add_u32 s6, s6, s7")
    k(f"s_add_u32 s7, s6, {HR}\ns_add_u32 s6, s6, {PART}")
    srd(k, 16, 12, WSSZ)
    for f in range(16):
        k(f"buffer_load_dwordx4 {V(16+4*f,4)}, v6, s[16:19], s6 offen\ns_add_u32 s6, s6, 2359296")
    k("buffer_load_dwordx4 v[80:83], v6, s[16:19], s7 offen")
    k("v_and_b32 v7, 15, v1\nv_lshrrev_b32 v8, 2, v7\nv_lshlrev_b32 v8, 1, v8\nv_and_b32 v9, 3, v7")
    k("v_and_b32 v10, 1, v9\nv_lshlrev_b32 v10, 4, v10\nv_mov_b32 v11, 0x3f80\nv_lshlrev_b32 v10, v10, v11\nv_lshrrev_b32 v9, 1, v9")
    for t in range(2):
        k(f"v_add_u32 v11, {t}, v8\nv_and_b32 v12, 3, v11\nv_lshrrev_b32 v11, 2, v11\nv_lshl_add_u32 v11, v11, 1, v9")
        k("v_cmp_eq_u32 vcc, v12, v5\nv_cndmask_b32 v12, 0, v10, vcc")
        for d in range(4):
            k(f"v_cmp_eq_u32 vcc, {d}, v11\nv_cndmask_b32 v{84+4*t+d}, 0, v12, vcc")
    srd(k, 20, 4, 2359296)
    k("v_mul_u32_u24 v7, 1152, v3\nv_lshl_add_u32 v7, v4, 6, v7\nv_lshl_add_u32 v7, v5, 4, v7\ns_mul_i32 s8, s2, 9216\ns_lshl_b32 s9, s3, 7\ns_add_u32 s8, s8, s9")
    for f in range(17):
        for t in range(2):
            c = V(8+4*t, 4)
            k(MF(c, V(84+4*t, 4), V(16+4*f, 4), c if f else "0"))
    for j in range(4): k(f"v_cvt_pk_bf16_f32 v{16+j}, v{8+2*j}, v{9+2*j}")
    k("buffer_store_dwordx4 v[16:19], v7, s[20:23], s8 offen")
    k.label("red_end")
    k("s_endpgm")
    return k
```

```python
XN   = 0x0000000
WF   = 0x0240000
WOF  = 0x0440000
MX   = 0x0500000
SSQ  = 0x0508000
KVP  = 0x0540000
PQL  = 0x06D0000
PQ   = 0x0800000
OF   = 0x0C00000
HC   = 0x0E80000
HR   = 0x1100000
PART = 0x1400000
PROF = 0x8000000
WSSZ = 0x10000000
INV  = 0x40000000
LOG2E = 0x3fb8aa3b

def srd(k, d, p, size):
    k(f"s_mov_b32 s{d}, s{p}\ns_mov_b32 s{d+1}, s{p+1}\ns_mov_b32 s{d+2}, {size}\ns_mov_b32 s{d+3}, 0x20000")

def bf16r(k, dst, src):
    k(f"v_cvt_pk_bf16_f32 {dst}, {src}, {src}\nv_lshlrev_b32 {dst}, 16, {dst}")

def V(a, n=1): return f"v{a}" if n == 1 else f"v[{a}:{a+n-1}]"
def A(a, n=1): return f"a{a}" if n == 1 else f"a[{a}:{a+n-1}]"
def MF(d, a, b, c): return f"v_mfma_f32_16x16x32_bf16 {d}, {a}, {b}, {c}"


CODE_SZ = {"attn1_kernel": 8192, "attn2_kernel": 4096, "attn3_kernel": 4096, "ffn_kernel": 40960, "red_kernel": 4096}
def pf_code(k, target, vt, st, nb=None, s3=None):
    nb = nb or CODE_SZ[target]
    n = (nb // 128 + 31) // 32
    lab = f"{k.name}_pc_{target}"
    s3 = st + 2 if s3 is None else s3
    k(f"s_getpc_b64 s[{st}:{st+1}]")
    k.raw(f"{lab}:")
    k(f"s_add_u32 s{st}, s{st}, {target}-{lab}\ns_addc_u32 s{st+1}, s{st+1}, 0")
    k(f"s_bfe_u32 s{s3}, s2, 0x50003\ns_mul_i32 s{s3}, s{s3}, {n*128}\nv_min_u32 v{vt}, {n-1}, v0\nv_lshlrev_b32 v{vt}, 7, v{vt}\nv_add_u32 v{vt}, s{s3}, v{vt}\nv_min_u32 v{vt}, {target}_codeend-{target}-4, v{vt}")
    k(f"global_load_dword v{vt+1}, v{vt}, s[{st}:{st+1}]")

def pf_w(k, which, vt, st, mod="", part=3):
    if part & 1: pf_w_setup(k, vt, st)
    if part & 2: pf_w_issue(k, which, vt, st, mod)
def pf_w_setup(k, vt, st):
    k(f"s_load_dwordx4 s[{st}:{st+3}], s[0:1], 40\ns_load_dwordx2 s[{st+8}:{st+9}], s[0:1], 56")
    k(f"v_mul_u32_u24 v{vt}, 7282, v0\nv_lshrrev_b32 v{vt}, 16, v{vt}\nv_mul_u32_u24 v{vt+1}, {9216-1152}, v{vt}\nv_lshl_add_u32 v{vt}, v0, 7, v{vt+1}\nv_lshlrev_b32 v{vt+1}, 7, v0")
    k(f"v_mov_b32 v{vt+2}, {INV}\nv_cmp_gt_u32 vcc, 162, v0\nv_cndmask_b32 v{vt}, v{vt+2}, v{vt}, vcc\nv_cndmask_b32 v{vt+1}, v{vt+2}, v{vt+1}, vcc")
    k(f"s_mov_b32 s{st+4}, s{st+2}\ns_mov_b32 s{st+5}, s{st+3}")
    for b in (0, 4, 8): k(f"s_mov_b32 s{st+b+2}, 5308416\ns_mov_b32 s{st+b+3}, 0x20000")
    k(f"s_and_b32 s{st+12}, s2, 7\ns_bfe_u32 s{st+13}, s2, 0x50003\ns_mul_i32 s{st+14}, s{st+13}, {18*9216}\ns_mul_i32 s{st+15}, s{st+12}, 1152\ns_add_u32 s{st+14}, s{st+14}, s{st+15}")
    k(f"s_mul_i32 s{st+15}, s{st+12}, 663552\ns_mul_i32 s{st+13}, s{st+13}, {162*128}\ns_add_u32 s{st+15}, s{st+15}, s{st+13}")
def pf_w_issue(k, which, vt, st, mod=""):
    if '1' in which: k(f"buffer_load_dword v{vt+3}, v{vt}, s[{st}:{st+3}], s{st+14} offen {mod}")
    if '3' in which: k(f"buffer_load_dword v{vt+4}, v{vt}, s[{st+4}:{st+7}], s{st+14} offen {mod}")
    if '2' in which: k(f"buffer_load_dword v{vt+5}, v{vt+1}, s[{st+8}:{st+11}], s{st+15} offen {mod}")
```

```python
import sys
sys.path.insert(0, 'dev')
from asmlib import *

from wsmap import *
from gen3 import k3, k4
import os
OPT = set(os.environ.get('OPT', '').split(','))

def k0():
    k = Kern("prep_kernel", vgpr=256, lds=57360, block=256, grid=274)
    k("s_cmp_ge_u32 s2, 274\ns_cbranch_scc1 prep_end")
    k("s_load_dwordx8 s[4:11], s[0:1], 0\ns_load_dwordx2 s[12:13], s[0:1], 80")
    k("v_and_b32 v1, 63, v0\nv_lshrrev_b32 v2, 6, v0\nv_readfirstlane_b32 s3, v2")
    k("v_and_b32 v3, 15, v1\nv_lshrrev_b32 v4, 4, v1")
    k("v_lshlrev_b32 v5, 4, v1")
    k("v_mov_b32 v6, 0x40000000")
    if 'pc' in OPT: pf_code(k, "attn1_kernel", 250, 40)
    srd(k, 16, 12, WSSZ)
    k("s_cmp_ge_u32 s2, 256\ns_cbranch_scc1 prep_wo")
    k("s_cmp_ge_u32 s2, 128\ns_cbranch_scc1 prep_w")
    srd(k, 20, 4, 2359296)
    k("v_lshrrev_b32 v7, 4, v0")
    k("v_mul_u32_u24 v8, 1152, v7\nv_lshl_add_u32 v8, v3, 4, v8")
    k("v_add_u32 v9, 1024, v8\nv_cmp_gt_u32 vcc, 8, v3\nv_cndmask_b32 v9, v6, v9, vcc")
    k("s_mul_i32 s28, s2, 18432")
    for j in range(4): k(f"buffer_load_dwordx4 {V(16+4*j,4)}, v8, s[20:23], s28 offen offset:{256*j}")
    k(f"buffer_load_dwordx4 v[32:35], v9, s[20:23], s28 offen")
    k("v_xor_b32 v10, v7, v3\nv_lshlrev_b32 v10, 4, v10\nv_lshl_add_u32 v10, v3, 8, v10")
    k("s_lshl_b32 s29, s3, 2\nv_add_u32 v11, s29, v4\nv_xor_b32 v12, v3, v11\nv_lshlrev_b32 v12, 4, v12\nv_lshl_add_u32 v11, v11, 8, v12")
    k("s_mov_b32 s30, 0xffff0000")
    if 'k0w' in OPT:
        k("s_load_dwordx4 s[44:47], s[0:1], 40")
        k("v_lshrrev_b32 v84, 2, v0\nv_mul_u32_u24 v84, 9216, v84\nv_and_b32 v85, 1, v0\nv_lshl_add_u32 v84, v85, 7, v84\nv_bfe_u32 v85, v0, 1, 1\nv_mul_u32_u24 v85, 640, v85\nv_add_u32 v84, v84, v85")
        k("v_cmp_gt_u32 vcc, 144, v0\nv_cndmask_b32 v84, v6, v84, vcc")
        k(f"s_and_b32 s52, s2, 7\ns_mul_i32 s52, s52, 1152\ns_lshr_b32 s53, s2, 3\ns_mul_i32 s53, s53, {36*9216}\ns_add_u32 s52, s52, s53")
        k("s_mov_b32 s48, s46\ns_mov_b32 s49, s47\ns_mov_b32 s46, 5308416\ns_mov_b32 s47, 0x20000\ns_mov_b32 s50, 5308416\ns_mov_b32 s51, 0x20000")
    for i in range(20):
        k(f"v_lshlrev_b32 v{40+2*i}, 16, v{16+i}\nv_and_b32 v{41+2*i}, s30, v{16+i}")
    k("v_add_f32 v80, v40, v41\nv_mul_f32 v82, v40, v40\nv_mul_f32 v83, v41, v41\nv_add_f32 v81, v42, v43\nv_fmac_f32 v82, v42, v42\nv_fmac_f32 v83, v43, v43")
    for i in range(2, 20):
        a = 80 + (i % 2)
        k(f"v_add_f32 v{a}, v{a}, v{40+2*i}\nv_fmac_f32 v82, v{40+2*i}, v{40+2*i}\nv_add_f32 v{a^1}, v{a^1}, v{41+2*i}\nv_fmac_f32 v83, v{41+2*i}, v{41+2*i}")
    k("v_add_f32 v80, v80, v81\nv_add_f32 v82, v82, v83")
    for r in (8, 4, 2, 1):
        k(f"v_add_f32_dpp v80, v80, v80 row_ror:{r} row_mask:0xf bank_mask:0xf\nv_add_f32_dpp v82, v82, v82 row_ror:{r} row_mask:0xf bank_mask:0xf")
    k("s_mov_b32 s31, 0x3ae38e39")
    k("v_mul_f32 v80, s31, v80\nv_mul_f32 v82, s31, v82\nv_fma_f32 v82, -v80, v80, v82\nv_max_f32 v82, 0, v82")
    k("v_lshlrev_b32 v13, 2, v7\nv_cmp_eq_u32 vcc, 0, v3\nv_cndmask_b32 v13, v6, v13, vcc")
    k(f"s_lshl_b32 s32, s2, 6\ns_add_u32 s32, s32, {MX}\nbuffer_store_dword v80, v13, s[16:19], s32 offen")
    bf16r(k, "v81", "v80"); bf16r(k, "v82", "v82")
    k("v_add_f32 v82, 0x3727c5ac, v82"); bf16r(k, "v82", "v82")
    k("v_sqrt_f32 v82, v82"); bf16r(k, "v82", "v82")
    k("v_rcp_f32 v82, v82\nv_mul_f32 v81, v81, v82")
    for i in range(20):
        k(f"v_fma_f32 v{40+2*i}, v{40+2*i}, v82, -v81\nv_fma_f32 v{41+2*i}, v{41+2*i}, v82, -v81\nv_cvt_pk_bf16_f32 v{16+i}, v{40+2*i}, v{41+2*i}")
        if i % 4 == 3: k(f"ds_write_b128 v10, {V(13+i,4)} offset:{4096*(i//4)}")
    k.wait_all(vm=False); k("s_barrier")
    for i in range(5): k(f"ds_read_b128 {V(16+4*i,4)}, v11 offset:{4096*i}")
    k(f"s_lshl_b32 s33, s3, 10\ns_add_u32 s33, s33, s28\ns_add_u32 s34, s33, 16384\ns_cmp_lt_u32 s3, 2\ns_cselect_b32 s34, s34, {INV}")
    for i in range(4):
        k(f"buffer_store_dwordx4 {V(16+4*i,4)}, v5, s[16:19], s33 offen")
        k("s_add_u32 s33, s33, 4096")
    k("buffer_store_dwordx4 v[32:35], v5, s[16:19], s34 offen")
    if 'k0w' in OPT:
        k("buffer_load_dword v86, v84, s[44:47], s52 offen\nbuffer_load_dword v87, v84, s[48:51], s52 offen")
    k("s_endpgm")
    k.label("prep_w")
    k("s_sub_u32 s28, s2, 128\ns_and_b32 s29, s28, 7\ns_lshr_b32 s28, s28, 3")
    k("s_cmp_ge_u32 s29, 6\ns_cbranch_scc1 prep_end")
    srd(k, 20, 6, 1990656); srd(k, 24, 8, 20736)
    k("v_mul_u32_u24 v7, 13108, v1\nv_lshrrev_b32 v7, 16, v7")
    k("v_mul_u32_u24 v8, 5, v7\nv_sub_u32 v8, v1, v8")
    k("v_mul_u32_u24 v9, 21846, v7\nv_lshrrev_b32 v9, 16, v9")
    k("v_mul_u32_u24 v10, 3, v9\nv_sub_u32 v10, v7, v10")
    k("v_mul_u32_u24 v9, 3456, v9\nv_mul_u32_u24 v10, 1152, v10\nv_lshlrev_b32 v8, 4, v8\nv_add3_u32 v7, v9, v10, v8")
    k("s_mul_i32 s30, s28, 72\ns_and_b32 s30, s30, 0xfffffff0\ns_mul_i32 s31, s29, 331776\ns_add_u32 s30, s30, s31\ns_mul_i32 s31, s3, 13824\ns_add_u32 s30, s30, s31")
    k("s_lshl_b32 s32, s3, 10\ns_add_u32 s32, s32, 32768")
    for i in range(6):
        k(f"s_add_u32 m0, s32, {4096*i}\nbuffer_load_dwordx4 v7, s[20:23], s30 offen lds\ns_add_u32 s30, s30, {16*3456}")
    k("v_lshlrev_b32 v8, 2, v0\ns_mul_i32 s33, s28, 1296")
    k("buffer_load_dword v16, v8, s[24:27], s33 offen\nbuffer_load_dword v17, v8, s[24:27], s33 offen offset:1024")
    k("v_mov_b32 v20, 0\nv_mov_b32 v21, 0\nv_mov_b32 v22, 0\nv_mov_b32 v23, 0\nv_lshlrev_b32 v9, 4, v0")
    for i in range(8): k(f"ds_write_b128 v9, v[20:23] offset:{4096*i}")
    k("s_and_b32 s34, s28, 1\ns_lshl_b32 s34, s34, 2")
    k("v_mov_b32 v24, 57344")
    for rnd, (e, ad) in enumerate((("v0", 26), ("v25", 27))):
        if rnd: k("v_add_u32 v25, 256, v0")
        k(f"v_cmp_lt_u32 vcc, 161, {e}\nv_cndmask_b32 v10, 0, 1, vcc" .replace("v_cndmask_b32 v10, 0, 1, vcc", "v_cndmask_b32_e64 v10, 0, 1, vcc"))
        k(f"v_mul_u32_u24 v11, 162, v10\nv_sub_u32 v11, {e}, v11")
        k("v_mul_u32_u24 v12, 7282, v11\nv_lshrrev_b32 v12, 16, v12")
        k("v_mul_u32_u24 v13, 9, v12\nv_sub_u32 v13, v11, v13")
        k("v_mul_u32_u24 v14, 18, v10\nv_add3_u32 v14, v14, v12, s34")
        k("v_lshrrev_b32 v15, 1, v13\nv_lshlrev_b32 v15, 5, v15\nv_and_b32 v13, 1, v13\nv_lshl_add_u32 v15, v13, 2, v15\nv_lshl_add_u32 v15, v10, 3, v15")
        k(f"v_lshl_add_u32 v{ad}, v14, 8, v15\nv_add_u32 v{ad+2}, 10256, v{ad}")
        if rnd: k(f"v_cmp_gt_u32 vcc, 324, v25\nv_cndmask_b32 v{ad}, v24, v{ad}, vcc\nv_cndmask_b32 v{ad+2}, v24, v{ad+2}, vcc")
    k("v_cmp_lt_u32 vcc, 17, v0\nv_cndmask_b32_e64 v10, 0, 1, vcc\nv_mul_u32_u24 v11, 18, v10\nv_sub_u32 v11, v0, v11")
    k("v_lshl_add_u32 v12, v10, 4, v11\nv_add_u32 v12, 80, v12\nv_lshl_add_u32 v13, v10, 2, v11\nv_add_u32 v13, 50, v13")
    k("v_cmp_gt_u32 vcc, 16, v11\nv_cndmask_b32 v12, v13, v12, vcc")
    k("v_add_u32 v13, s34, v0\nv_add_u32 v13, 80, v13\nv_lshlrev_b32 v13, 8, v13\nv_lshl_add_u32 v30, v12, 1, v13")
    k("v_cmp_gt_u32 vcc, 36, v0\nv_cndmask_b32 v30, v24, v30, vcc\nv_mov_b32 v31, 0x3f80")
    k.wait_all(vm=False); k("s_barrier")
    k("ds_write_b32 v26, v16\nds_write_b32 v28, v16\nds_write_b32 v27, v17\nds_write_b32 v29, v17\nds_write_b16 v30, v31")
    k("v_lshrrev_b32 v10, 2, v3\nv_and_b32 v11, 3, v3")
    k("v_lshl_add_u32 v12, v4, 3, v10\nv_lshlrev_b32 v12, 8, v12\nv_lshl_add_u32 v12, v11, 3, v12\ns_lshl_b32 s35, s3, 5\nv_add_u32 v12, s35, v12")
    k("v_mul_u32_u24 v13, 240, v11\nv_lshl_add_u32 v13, v10, 11, v13\nv_lshl_add_u32 v13, v4, 4, v13\nv_add_u32 v13, 32768, v13")
    k.wait_all(); k("s_barrier")
    for ts in range(2):
        for s in range(4):
            for h in range(2):
                k(f"ds_read_b64_tr_b16 {V(32+16*ts+4*s+2*h,2)}, v12 offset:{(32*s+4*h)*256+128*ts}")
    for db in range(3):
        for hf in range(2):
            for s in range(4):
                k(f"ds_read_b128 {V(64+32*db+16*hf+4*s,4)}, v13 offset:{db*8192+hf*1024+s*64}")
    k(f"s_mul_i32 s36, s28, 18\ns_mul_i32 s37, s29, 3\ns_add_u32 s36, s36, s37\ns_mul_i32 s36, s36, 7\ns_add_u32 s36, s36, s3\ns_lshl_b32 s36, s36, 10\ns_add_u32 s36, s36, {WF}")
    k(f"s_add_u32 s37, s36, 4096\ns_cmp_lt_u32 s3, 3\ns_cselect_b32 s37, s37, {INV}")
    for db in range(3):
        for s in range(4):
            for hf in range(2):
                for ts in range(2):
                    c = V(160+16*db+8*ts+4*hf, 4)
                    k(MF(c, V(64+32*db+16*hf+4*s,4), V(32+16*ts+4*s,4), c if s else "0"))
    for db in range(3):
        for ts in range(2):
            c = 160+16*db+8*ts; o = 208+8*db+4*ts
            for j in range(4): k(f"v_cvt_pk_bf16_f32 v{o+j}, v{c+2*j}, v{c+2*j+1}")
            k(f"buffer_store_dwordx4 {V(o,4)}, v5, s[16:19], s{36+ts} offen")
        k("s_add_u32 s36, s36, 7168\ns_add_u32 s37, s37, 7168")
    k("s_endpgm")
    k.label("prep_wo")
    srd(k, 20, 10, 663552)
    k("s_sub_u32 s28, s2, 256")
    k("s_mul_i32 s29, s28, 36\ns_sub_u32 s30, s28, 16\ns_mul_i32 s30, s30, 288\ns_add_u32 s30, s30, 16")
    k("s_cmp_lt_u32 s28, 16\ns_cselect_b32 s29, s29, s30\ns_cselect_b32 s30, 18, 36\ns_cselect_b32 s31, 4, 72\ns_cselect_b32 s32, 2, 18")
    k("s_lshr_b32 s33, s3, 1\ns_mul_i32 s33, s33, s30\ns_add_u32 s29, s29, s33\ns_and_b32 s33, s3, 1\ns_mul_i32 s33, s33, s31\ns_lshl_b32 s33, s33, 1\ns_add_u32 s29, s29, s33")
    k("s_mul_i32 s29, s29, 1152\ns_mul_i32 s31, s31, 1152\ns_mul_i32 s32, s32, 1152")
    k("s_lshl_b32 s34, s3, 13")
    for kk in range(8):
        k("s_mov_b32 s35, s29")
        if kk >> 2: k("s_add_u32 s35, s35, s31")
        if (kk & 3) >> 1: k("s_add_u32 s35, s35, s32")
        if kk & 1: k("s_add_u32 s35, s35, 1152")
        k(f"s_add_u32 m0, s34, {kk*1024}\nbuffer_load_dwordx4 v5, s[20:23], s35 offen lds")
    k("v_lshrrev_b32 v7, 5, v1\nv_mul_lo_u32 v7, v7, s31\nv_bfe_u32 v8, v1, 4, 1\nv_mul_lo_u32 v8, v8, s32\nv_bfe_u32 v9, v1, 3, 1\nv_mul_u32_u24 v9, 1152, v9")
    k("v_add3_u32 v7, v7, v8, v9\nv_and_b32 v8, 7, v1\nv_lshl_add_u32 v7, v8, 4, v7")
    k("s_lshl_b32 s34, s3, 10\ns_add_u32 m0, s34, 31744\nbuffer_load_dwordx4 v7, s[20:23], s29 offen offset:1024 lds")
    k("v_lshrrev_b32 v10, 2, v3\nv_and_b32 v11, 3, v3\nv_lshl_add_u32 v12, v4, 2, v10\ns_lshl_b32 s35, s3, 5")
    k("v_lshlrev_b32 v13, 3, v11\nv_add_u32 v13, s35, v13\nv_lshl_add_u32 v14, v12, 10, v13\nv_lshl_add_u32 v15, v12, 7, v13\nv_add_u32 v15, 32768, v15")
    k("s_and_b32 s36, s3, 1\ns_lshl_b32 s37, s36, 4\nv_add_u32 v16, s37, v3\nv_lshlrev_b32 v17, 4, v4\nv_lshl_add_u32 v18, v16, 10, v17\nv_lshl_add_u32 v19, v16, 7, v17\nv_add_u32 v19, 32768, v19")
    for j in range(4): k(f"v_mov_b32 v{20+j}, 0x3f803f80")
    k("v_lshl_add_u32 v24, v10, 4, v4\nv_lshlrev_b32 v24, 4, v24\nv_lshl_add_u32 v24, v11, 1, v24\ns_lshl_b32 s37, s36, 3\nv_add_u32 v24, s37, v24\nv_cmp_gt_u32 vcc, 2, v4\nv_cndmask_b32 v24, v6, v24, vcc")
    k.wait_all(); k("s_barrier")
    for i in range(9):
        for h in range(2):
            if i < 8: k(f"ds_read_b64_tr_b16 {V(32+4*i+2*h,2)}, v14 offset:{h*16384+128*i}")
            else: k(f"ds_read_b64_tr_b16 {V(32+4*i+2*h,2)}, v15 offset:{h*2048}")
    for s in range(18):
        if s < 16: k(f"ds_read_b128 {V(72+4*s,4)}, v18 offset:{64*s}")
        else: k(f"ds_read_b128 {V(72+4*s,4)}, v19 offset:{64*(s-16)}")
    k(f"s_mul_i32 s38, s3, 18\ns_add_u32 s38, s38, s28\ns_lshl_b32 s38, s38, 10\ns_add_u32 s38, s38, {WOF}")
    for i in range(9):
        k(f"buffer_store_dwordx4 {V(32+4*i,4)}, v5, s[16:19], s38 offen\ns_add_u32 s38, s38, {4*18*1024}")
    for s in range(18): k(MF("v[28:31]", "v[20:23]", V(72+4*s,4), "v[28:31]" if s else "0"))
    k("s_mov_b32 s31, 0x3ae38e39\nv_mul_f32 v28, s31, v28")
    bf16r(k, "v29", "v28")
    k("v_sub_f32 v28, v28, v29\nv_cmp_eq_u32 vcc, 0, v4\nv_cndmask_b32 v28, v28, v29, vcc\nv_cvt_pk_bf16_f32 v28, v28, v28")
    k(f"s_lshl_b32 s38, s28, 10\ns_add_u32 s38, s38, {WOF + 36*18*1024}\nbuffer_store_short v28, v24, s[16:19], s38 offen")
    k.label("prep_end")
    k("s_endpgm")
    return k


def a1():
    ROWS = 129024
    k = Kern("attn1_kernel", vgpr=224, lds=159744, block=512, grid=256)
    k("s_cmp_ge_u32 s2, 256\ns_cbranch_scc1 a1_end")
    k("s_load_dwordx2 s[12:13], s[0:1], 80")
    k("v_and_b32 v1, 63, v0\nv_lshrrev_b32 v2, 6, v0\nv_readfirstlane_b32 s3, v2")
    k("v_lshlrev_b32 v5, 4, v1")
    k("s_and_b32 s4, s2, 7\ns_lshr_b32 s5, s2, 3\ns_and_b32 s6, s4, 3\ns_lshl_b32 s6, s6, 2\ns_and_b32 s7, s5, 3\ns_add_u32 s6, s6, s7")
    k("s_lshr_b32 s7, s4, 2\ns_lshl_b32 s7, s7, 3\ns_lshr_b32 s5, s5, 2\ns_add_u32 s7, s7, s5")
    k("s_lshl_b32 s8, s6, 3\ns_add_u32 s8, s8, s3")
    k(f"s_lshl_b32 s9, s3, 10\ns_mul_i32 s10, s7, 129024\ns_add_u32 s10, s10, s9\ns_add_u32 s10, s10, {WF}")
    k(f"s_mul_i32 s11, s8, 18432")
    srd(k, 16, 12, WSSZ)
    LA = int(os.environ.get('A1LA', 6)); GB = int(os.environ.get('A1GB', 2))
    st = dict(di=0, xi=0)
    def ld(upto):
        while st['xi'] <= min(upto, 17):
            ks = st['xi']
            while st['di'] <= (7*ks + 6) // 8:
                di = st['di']
                k(f"s_add_u32 m0, s9, {8192*di}\nbuffer_load_dwordx4 v5, s[16:19], s10 offen lds", tag=f"D{di}")
                k("s_add_u32 s10, s10, 8192"); st['di'] += 1
            k(f"buffer_load_dwordx4 {V(32+4*ks,4)}, v5, s[16:19], s11 offen offset:{1024*(ks%4)}")
            if ks % 4 == 3: k("s_add_u32 s11, s11, 4096")
            st['xi'] += 1
    ld(LA - 1)
    if 'pc' in OPT: pf_code(k, "attn2_kernel", 216, 40)
    if any(o.startswith('a1w') for o in OPT): pf_w(k, '', 218, 44, part=1)
    k("v_and_b32 v3, 15, v1\nv_lshrrev_b32 v4, 4, v1\nv_mov_b32 v6, 0x40000000")
    k("v_lshlrev_b32 v7, 4, v3\nv_lshl_add_u32 v8, v4, 10, v7\nv_lshl_add_u32 v9, v4, 3, v7\nv_cmp_gt_u32 vcc, 2, v4\nv_cndmask_b32 v8, v6, v8, vcc\nv_cndmask_b32 v9, v6, v9, vcc")
    k(f"s_lshl_b32 s20, s8, 5\ns_lshl_b32 s21, s7, 1\ns_add_u32 s20, s20, s21\ns_lshl_b32 s20, s20, 10\ns_add_u32 s20, s20, {PQ}")
    k(f"s_lshl_b32 s21, s8, 4\ns_add_u32 s21, s21, s7\ns_lshl_b32 s21, s21, 8\ns_add_u32 s21, s21, {PQL}")
    k(f"s_mul_i32 s22, s3, 3840\ns_add_u32 s22, s22, {ROWS}\nv_mul_u32_u24 v10, 240, v3\nv_add_u32 v10, s22, v10")
    k("v_mul_u32_u24 v11, 80, v4\nv_add_u32 v11, v11, v10\nv_subrev_u32 v11, 160, v11")
    k("v_lshl_add_u32 v12, v4, 3, v10\nv_mul_u32_u24 v13, 40, v4\nv_add_u32 v13, v13, v10")
    k(f"s_mov_b32 s24, {LOG2E}\ns_mov_b32 s25, {LOG2E | 0x80000000}")
    def reads(ks):
        for t in range(7):
            off = (ks*7 + t) * 1024
            base = "v5" if off < 65536 else "v14"
            k(f"ds_read_b128 {V(104+28*(ks%2)+4*t,4)}, {base} offset:{off % 65536}")
    def mfmas(ks):
        for t in range(7):
            c = V(160+4*t, 4)
            k(MF(c, V(104+28*(ks%2)+4*t,4), V(32+4*ks,4), c if ks else "0"))
    k("v_add_u32 v14, 0x10000, v5")
    for ks in range(18):
        if ks % GB == 0:
            if ks: mfmas(ks-1)
            k.wait_vm(f"D{(7*min(ks+GB-1, 17) + 6) // 8}"); k("s_barrier")
            if ks == 0: k.stamp(1)
            if ks == 8: k.stamp(2)
            reads(ks); ld(ks + LA)
        else:
            reads(ks); ld(ks + LA); mfmas(ks-1)
        if ks == 15:
            for o in OPT:
                if o.startswith('a1w'): pf_w(k, o[3:], 218, 44, part=2)
    mfmas(17)
    k.stamp(3)
    k("v_cvt_pk_bf16_f32 v50, v180, v181\nv_cvt_pk_bf16_f32 v51, v182, v183\nv_cvt_pk_bf16_f32 v52, v184, v185\nv_cvt_pk_bf16_f32 v53, v186, v187")
    k("v_cvt_pk_bf16_f32 v54, v178, v179\nv_mov_b32 v55, 0x3f80")
    k("ds_write_b64 v12, v[50:51] offset:160\nds_write_b64 v12, v[52:53] offset:200")
    k("s_mov_b64 exec, 0xffffffff\nds_write_b64 v13, v[54:55] offset:192\ns_mov_b64 exec, -1")
    k("v_max3_f32 v190, v160, v161, v162\nv_min3_f32 v191, v160, v161, v162")
    for j in range(7): k(f"v_max3_f32 v190, v190, v{163+2*j}, v{164+2*j}\nv_min3_f32 v191, v191, v{163+2*j}, v{164+2*j}")
    k("v_max_f32 v190, v190, v177\nv_min_f32 v191, v191, v177")
    k("v_mul_f32 v192, s25, v190\nv_mul_f32 v193, s24, v191")
    for f in range(18):
        k(f"v_fma_f32 v{196+f}, v{160+f}, s24, v192\nv_fma_f32 v{160+f}, v{160+f}, s25, v193")
        k(f"v_exp_f32 v{196+f}, v{196+f}\nv_exp_f32 v{160+f}, v{160+f}")
        if f == 1: k("v_add_f32 v190, v196, v197\nv_add_f32 v191, v160, v161")
        if f > 1 + 0 and f >= 2: k(f"v_add_f32 v190, v190, v{196+f}\nv_add_f32 v191, v191, v{160+f}")
    k("v_rcp_f32 v190, v190\nv_rcp_f32 v191, v191")
    for j in range(9):
        k(f"v_mul_f32 v{196+2*j}, v{196+2*j}, v190\nv_mul_f32 v{197+2*j}, v{197+2*j}, v190\nv_cvt_pk_bf16_f32 v{32+j}, v{196+2*j}, v{197+2*j}")
    for j in range(9):
        k(f"v_mul_f32 v{160+2*j}, v{160+2*j}, v191\nv_mul_f32 v{161+2*j}, v{161+2*j}, v191\nv_cvt_pk_bf16_f32 v{41+j}, v{160+2*j}, v{161+2*j}")
    k("s_mov_b32 exec_lo, 0")
    for j in range(4): k(f"ds_write_b128 v11, {V(32+4*j,4)} offset:{16*j}")
    k("ds_write_b64 v11, v[48:49] offset:64")
    k("s_mov_b32 exec_lo, -1")
    for j in range(4): k(f"buffer_store_dwordx4 {V(32+4*j,4)}, v8, s[16:19], s20 offen offset:{256*j}")
    k("buffer_store_dwordx2 v[48:49], v9, s[16:19], s21 offen")
    k("s_cmp_ge_u32 s3, 3\ns_cselect_b32 s26, 1, 0\ns_mul_i32 s27, s26, 3\ns_sub_u32 s27, s3, s27")
    k(f"s_mul_i32 s28, s26, 80\ns_lshl_b32 s29, s27, 3\ns_cmp_lt_u32 s27, 2\ns_cselect_b32 s29, s29, 64\ns_cselect_b32 s30, 16, 0\ns_add_u32 s28, s28, s29\ns_add_u32 s28, s28, {ROWS}")
    k(f"s_mul_i32 s29, s26, 40\ns_add_u32 s29, s29, {ROWS+160}")
    k("v_lshrrev_b32 v56, 2, v3\nv_and_b32 v57, 3, v3\nv_lshl_add_u32 v56, v4, 3, v56\nv_mul_u32_u24 v56, 240, v56")
    k("v_mul_u32_u24 v58, s30, v57\nv_add3_u32 v58, v58, v56, s28")
    k("v_add_u32 v60, s29, v56\nv_lshl_add_u32 v59, v57, 3, v60")
    k(f"s_lshl_b32 s31, s7, 4\ns_add_u32 s31, s31, s6\ns_mul_i32 s31, s31, 6400\ns_mul_i32 s32, s26, 3200\ns_add_u32 s31, s31, s32\ns_add_u32 s31, s31, {KVP}")
    k.stamp(4)
    k.wait_all(vm=False); k("s_barrier")
    k.stamp(5)
    k("s_cmp_ge_u32 s3, 6\ns_cbranch_scc1 a1_end")
    for s in range(4):
        for h in range(2):
            o = (32*s + 4*h) * 240
            k(f"ds_read_b64_tr_b16 {V(64+4*s+2*h,2)}, v58 offset:{o}\nds_read_b64_tr_b16 {V(80+4*s+2*h,2)}, v59 offset:{o}\nds_read_b64_tr_b16 {V(96+4*s+2*h,2)}, v60 offset:{o+32}")
    for s in range(4):
        k(MF("v[112:115]", V(64+4*s,4), V(80+4*s,4), "v[112:115]" if s else "0"))
        k(MF("v[116:119]", V(64+4*s,4), V(96+4*s,4), "v[116:119]" if s else "0"))
    k("s_cmp_eq_u32 s27, 2\ns_cbranch_scc1 a1_mt2")
    k("s_lshl_b32 s32, s27, 4\nv_lshl_add_u32 v61, v1, 5, s32")
    k("v_lshl_add_u32 v62, v3, 2, v4\nv_lshl_add_u32 v62, v62, 5, s32\nv_add_u32 v62, 2560, v62\nv_cmp_gt_u32 vcc, 4, v3\nv_cndmask_b32 v62, v6, v62, vcc")
    k("buffer_store_dwordx4 v[112:115], v61, s[16:19], s31 offen\nbuffer_store_dwordx4 v[116:119], v62, s[16:19], s31 offen")
    k("s_endpgm")
    k.label("a1_mt2")
    k("v_xor_b32 v63, s26, v4\nv_lshl_add_u32 v63, v3, 1, v63\nv_lshlrev_b32 v63, 4, v63")
    k("v_add_u32 v61, 2048, v63\nv_add_u32 v62, 3072, v63\nv_cmp_gt_u32 vcc, 2, v4\nv_cndmask_b32 v61, v6, v61, vcc\nv_cndmask_b32 v62, v6, v62, vcc")
    k("v_cmp_gt_u32 vcc, 4, v3\nv_cndmask_b32 v62, v6, v62, vcc")
    k("v_cmp_eq_u32 vcc, 0, v4\ns_nop 7")
    for j in range(8): k(f"v_cndmask_b32 v{112+j}, 0, v{112+j}, vcc")
    k("buffer_store_dwordx4 v[112:115], v61, s[16:19], s31 offen\nbuffer_store_dwordx4 v[116:119], v62, s[16:19], s31 offen")
    k.label("a1_end")
    k("s_endpgm")
    return k

def a2():
    k = Kern("attn2_kernel", vgpr=128, lds=4096, block=512, grid=256)
    k("s_cmp_ge_u32 s2, 256\ns_cbranch_scc1 a2_end")
    k("s_load_dwordx2 s[12:13], s[0:1], 80")
    k("v_and_b32 v1, 63, v0\nv_lshrrev_b32 v2, 6, v0\nv_readfirstlane_b32 s3, v2")
    k("s_and_b32 s7, s2, 15\ns_lshr_b32 s6, s2, 4\ns_lshl_b32 s8, s6, 3\ns_add_u32 s8, s8, s3")
    k("v_mov_b32 v6, 0x40000000\nv_lshlrev_b32 v7, 4, v0\nv_cmp_gt_u32 vcc, 400, v0\nv_cndmask_b32 v7, v6, v7, vcc")
    k(f"s_mul_i32 s9, s7, 102400\ns_add_u32 s9, s9, {KVP}")
    srd(k, 16, 12, WSSZ)
    for j in range(16):
        k(f"buffer_load_dwordx4 {V(32+4*j,4)}, v7, s[16:19], s9 offen\ns_add_u32 s9, s9, 6400")
    k("v_and_b32 v3, 15, v1\nv_lshrrev_b32 v4, 4, v1\nv_lshlrev_b32 v5, 4, v1")
    k("v_cmp_eq_u32 vcc, 0, v4\nv_cndmask_b32 v8, v6, v5, vcc")
    k(f"s_lshl_b32 s20, s8, 5\ns_lshl_b32 s21, s7, 1\ns_add_u32 s20, s20, s21\ns_lshl_b32 s20, s20, 10\ns_add_u32 s20, s20, {PQ}")
    k(f"s_lshl_b32 s21, s8, 4\ns_add_u32 s21, s21, s7\ns_lshl_b32 s21, s21, 8\ns_add_u32 s21, s21, {PQL}")
    k("buffer_load_dwordx4 v[96:99], v5, s[16:19], s20 offen\nbuffer_load_dwordx4 v[100:103], v5, s[16:19], s20 offen offset:1024\nbuffer_load_dwordx4 v[104:107], v8, s[16:19], s21 offen")
    if 'pc' in OPT: pf_code(k, "attn3_kernel", 110, 40)
    for o in OPT:
        if o.startswith('a2w'): pf_w(k, o[3:], 112, 44); k("v_cmp_eq_u32 vcc, 0, v4")
    k("v_mov_b32 v9, 1472\nv_add_u32 v10, 1024, v5\nv_cndmask_b32 v10, v9, v10, vcc")
    k("v_and_b32 v11, 3, v3\nv_lshl_add_u32 v12, v11, 2, v4\nv_lshlrev_b32 v12, 4, v12\nv_lshlrev_b32 v11, 4, v11\nv_add_u32 v11, 1536, v11\nv_cndmask_b32 v11, v9, v11, vcc")
    k("v_lshlrev_b32 v13, 3, v0")
    k(f"s_mul_i32 s22, s8, 18\ns_add_u32 s23, s22, s7\ns_lshl_b32 s23, s23, 10\ns_add_u32 s23, s23, {OF}")
    k(f"s_lshr_b32 s24, s7, 3\ns_add_u32 s22, s22, s24\ns_lshl_b32 s22, s22, 10\ns_bfe_u32 s24, s7, 0x20001\ns_lshl_b32 s24, s24, 8\ns_add_u32 s22, s22, s24\ns_and_b32 s24, s7, 1\ns_lshl_b32 s24, s24, 3\ns_add_u32 s22, s22, s24\ns_add_u32 s22, s22, {OF + 16384}")
    for c in range(4): k(f"v_add_f32 v{32+c}, v{32+c}, v{36+c}")
    for j in range(2, 16):
        for c in range(4): k(f"v_add_f32 v{32+c}, v{32+c}, v{32+4*j+c}")
    k("v_cvt_pk_bf16_f32 v32, v32, v33\nv_cvt_pk_bf16_f32 v33, v34, v35\nds_write_b64 v13, v[32:33]")
    k.stamp(1)
    k.wait_all(vm=False); k("s_barrier")
    k.stamp(2)
    for hh in range(2):
        b = 40 + 16*hh; o = 1600*hh
        k(f"ds_read_b128 {V(b,4)}, v5 offset:{o}\nds_read_b128 {V(b+4,4)}, v12 offset:{o+1280}\nds_read_b128 {V(b+8,4)}, v10 offset:{o}\nds_read_b128 {V(b+12,4)}, v11 offset:{o}")
    for hh in range(2):
        b = 40 + 16*hh; c = 72 + 8*hh; pq = V(96+4*hh, 4)
        k(MF(V(c,4), V(b,4), pq, "0")); k(MF(V(c+4,4), V(b+4,4), pq, "0"))
    for hh in range(2):
        b = 40 + 16*hh; c = 72 + 8*hh
        k(MF(V(c,4), V(b+8,4), "v[104:107]", V(c,4))); k(MF(V(c+4,4), V(b+12,4), "v[104:107]", V(c+4,4)))
    for hh in range(2):
        c = 72 + 8*hh
        bf16r(k, f"v{c+6}", f"v{c+6}")
        k(f"v_add_f32 v{c+6}, 0x358637bd, v{c+6}")
        bf16r(k, f"v{c+6}", f"v{c+6}")
        k(f"v_rcp_f32 v{c+6}, v{c+6}")
    for hh in range(2):
        c = 72 + 8*hh
        for j in range(6): k(f"v_mul_f32 v{c+j}, v{c+j}, v{c+6}")
        k(f"v_cvt_pk_bf16_f32 v{88+2*hh}, v{c}, v{c+1}\nv_cvt_pk_bf16_f32 v{89+2*hh}, v{c+2}, v{c+3}\nv_cvt_pk_bf16_f32 v{92+hh}, v{c+4}, v{c+5}")
    k("buffer_store_dwordx4 v[88:91], v5, s[16:19], s23 offen\nbuffer_store_dwordx2 v[92:93], v8, s[16:19], s22 offen")
    k.label("a2_end")
    k("s_endpgm")
    return k

def a3():
    XO = 40960; MO = XO + 10240
    k = Kern("attn3_kernel", vgpr=256, lds=MO + 128, block=320, grid=256)
    k("s_cmp_ge_u32 s2, 256\ns_cbranch_scc1 a3_end")
    k("s_load_dwordx2 s[12:13], s[0:1], 80\ns_load_dwordx2 s[4:5], s[0:1], 0")
    k("v_and_b32 v1, 63, v0\nv_lshrrev_b32 v2, 6, v0\nv_readfirstlane_b32 s3, v2")
    k("v_lshlrev_b32 v5, 4, v1")
    k("s_and_b32 s7, s2, 3\ns_lshr_b32 s6, s2, 2")
    k(f"s_lshl_b32 s9, s3, 10\ns_mul_i32 s10, s6, 36864\ns_add_u32 s10, s10, s9\ns_add_u32 s10, s10, {OF}")
    srd(k, 16, 12, WSSZ)
    for i in range(8):
        k(f"s_add_u32 m0, s9, {5120*i}\nbuffer_load_dwordx4 v5, s[16:19], s10 offen lds\ns_add_u32 s10, s10, 5120")
    srd(k, 20, 4, 2359296)
    k("s_mul_i32 s11, s6, 36864\ns_mul_i32 s14, s7, 288\ns_add_u32 s11, s11, s14")
    for r in range(2):
        k(f"v_add_u32 v7, {320*r}, v0\nv_mul_u32_u24 v8, 3641, v7\nv_lshrrev_b32 v8, 16, v8\nv_mul_u32_u24 v9, 18, v8\nv_sub_u32 v9, v7, v9\nv_mul_u32_u24 v8, 1152, v8\nv_lshl_add_u32 v8, v9, 4, v8")
        k(f"s_add_u32 m0, s9, {XO + 5120*r}\nbuffer_load_dwordx4 v8, s[20:23], s11 offen lds", tag="DX")
    k("v_and_b32 v3, 15, v1\nv_lshrrev_b32 v4, 4, v1\nv_mov_b32 v6, 0x40000000")
    k("s_and_b32 s14, s7, 1\ns_lshl_b32 s15, s3, 1\ns_add_u32 s15, s15, s14")
    k("s_xor_b32 s24, s14, 1\ns_lshl_b32 s24, s24, 3\ns_cmp_lt_u32 s3, 4\ns_cselect_b32 s15, s15, s24")
    k("s_mul_i32 s24, s7, 9\ns_add_u32 s24, s24, s15\ns_add_u32 s25, s24, 1\ns_cselect_b32 s25, s25, 36".replace("s_add_u32 s25, s24, 1\ns_cselect_b32 s25, s25, 36", "s_add_u32 s25, s24, 1\ns_cmp_lt_u32 s3, 4\ns_cselect_b32 s25, s25, 36"))
    k(f"s_mul_i32 s26, s24, 18432\ns_add_u32 s26, s26, {WOF}\ns_mul_i32 s27, s25, 18432\ns_add_u32 s27, s27, {WOF}")
    k("s_cmp_lt_u32 s3, 4\ns_cselect_b32 s28, 16, 2\nv_cmp_gt_u32 vcc, s28, v3\nv_cndmask_b32 v10, v6, v5, vcc")
    for ks in range(18):
        k(f"buffer_load_dwordx4 {V(64+8*ks,4)}, v5, s[16:19], s26 offen offset:{1024*(ks%4)}\nbuffer_load_dwordx4 {V(68+8*ks,4)}, v10, s[16:19], s27 offen offset:{1024*(ks%4)}")
        if ks % 4 == 3: k("s_add_u32 s26, s26, 4096\ns_add_u32 s27, s27, 4096")
    k(f"v_lshlrev_b32 v11, 2, v3\ns_lshl_b32 s29, s6, 7\ns_add_u32 s29, s29, {MX}\nbuffer_load_dword v12, v11, s[16:19], s29 offen\nbuffer_load_dword v13, v11, s[16:19], s29 offen offset:64")
    if 'pc' in OPT: pf_code(k, "ffn_kernel", 240, 40)
    for o in OPT:
        if o.startswith('a3w'): pf_w(k, o[3:], 242, 44)
    k(f"v_mul_u32_u24 v14, 288, v3\nv_lshl_add_u32 v14, v4, 3, v14\ns_lshl_b32 s30, s15, 5\ns_add_u32 s30, s30, {XO}\nv_add_u32 v14, s30, v14")
    k(f"v_add_u32 v15, {MO}, v11")
    k.stamp(1)
    k.wait_vm("DX"); k("s_barrier")
    k.stamp(2)
    def rd(ks):
        k(f"ds_read_b128 {V(16+8*(ks%3),4)}, v5 offset:{ks*1024}\nds_read_b128 {V(20+8*(ks%3),4)}, v5 offset:{(18+ks)*1024}")
    rd(0); rd(1)
    for tt in range(2):
        for t in range(2): k(f"ds_read_b64 {V(208+4*tt+2*t,2)}, v14 offset:{tt*4608+32*t}")
    for ks in range(18):
        if ks + 2 < 18: rd(ks + 2)
        for t in range(2):
            for tt in range(2):
                c = V(40 + 8*tt + 4*t, 4)
                k(MF(c, V(64+8*ks+4*t,4), V(16+8*(ks%3)+4*tt,4), c if ks else "0"))
    k.stamp(3)
    k("s_cmp_lt_u32 s3, 4\ns_cbranch_scc1 a3_nomean")
    k.skip_begin()
    for tt in range(2):
        k(f"v_add_f32 v{44+8*tt}, v{44+8*tt}, v{45+8*tt}\nv_add_f32 v{44+8*tt}, v{44+8*tt}, v{12+tt}")
        bf16r(k, f"v{44+8*tt}", f"v{44+8*tt}")
    k("s_mov_b64 exec, 0xffff\nds_write_b32 v15, v44\nds_write_b32 v15, v52 offset:64\ns_mov_b64 exec, -1")
    k.wait_all(vm=False)
    k.skip_end("a3_nomean")
    k("s_barrier")
    k.stamp(4)
    k("ds_read_b32 v12, v15\nds_read_b32 v13, v15 offset:64")
    k("s_mov_b32 s31, 0xffff0000")
    for tt in range(2):
        for t in range(2):
            for hf in range(2):
                c = 40 + 8*tt + 4*t + 2*hf; xr = 208 + 4*tt + 2*t + hf; ho = 216 + 4*tt + 2*t + hf; co = 224 + 4*tt + 2*t + hf
                k(f"v_cvt_pk_bf16_f32 v56, v{c}, v{c+1}\nv_lshlrev_b32 v57, 16, v56\nv_and_b32 v56, s31, v56")
                k(f"v_lshlrev_b32 v58, 16, v{xr}\nv_and_b32 v59, s31, v{xr}\nv_add_f32 v57, v57, v58\nv_add_f32 v56, v56, v59")
                k(f"v_cvt_pk_bf16_f32 v{ho}, v57, v56\nv_lshlrev_b32 v57, 16, v{ho}\nv_and_b32 v56, s31, v{ho}")
                k(f"v_sub_f32 v57, v57, v{12+tt}\nv_sub_f32 v56, v56, v{12+tt}\nv_cvt_pk_bf16_f32 v{co}, v57, v56")
                sq = 60 + 2*tt + t
                if hf == 0: k(f"v_mul_f32 v{sq}, v57, v57\nv_fmac_f32 v{sq}, v56, v56")
                else: k(f"v_fmac_f32 v{sq}, v57, v57\nv_fmac_f32 v{sq}, v56, v56")
    k.stamp(5)
    k(f"s_lshl_b32 s32, s6, 1\ns_mul_i32 s32, s32, 18\ns_lshr_b32 s33, s24, 1\ns_add_u32 s32, s32, s33\ns_lshl_b32 s32, s32, 10\ns_add_u32 s33, s32, {HR}\ns_add_u32 s32, s32, {HC}")
    k("s_add_u32 s34, s32, 18432\ns_add_u32 s35, s33, 18432")
    k(f"v_mul_u32_u24 v11, 80, v3\nv_cmp_eq_u32 vcc, 0, v4\nv_cndmask_b32 v11, v6, v11, vcc\ns_mul_i32 s36, s6, 2560\ns_mul_i32 s37, s7, 5\ns_add_u32 s37, s37, s3\ns_lshl_b32 s37, s37, 2\ns_add_u32 s36, s36, s37\ns_add_u32 s36, s36, {SSQ}")
    k("s_cmp_lt_u32 s3, 4\ns_cbranch_scc0 a3_single")
    k("buffer_store_dwordx4 v[224:227], v5, s[16:19], s32 offen\nbuffer_store_dwordx4 v[228:231], v5, s[16:19], s34 offen")
    k("buffer_store_dwordx4 v[216:219], v5, s[16:19], s33 offen\nbuffer_store_dwordx4 v[220:223], v5, s[16:19], s35 offen")
    k("v_add_f32 v60, v60, v61\nv_add_f32 v62, v62, v63\ns_branch a3_ssq")
    k.label("a3_single")
    k("s_and_b32 s37, s24, 1\ns_lshl_b32 s37, s37, 3\nv_add_u32 v10, s37, v5\ns_nop 1")
    k("buffer_store_dwordx2 v[224:225], v10, s[16:19], s32 offen\nbuffer_store_dwordx2 v[228:229], v10, s[16:19], s34 offen")
    k("buffer_store_dwordx2 v[216:217], v10, s[16:19], s33 offen\nbuffer_store_dwordx2 v[220:221], v10, s[16:19], s35 offen")
    k.label("a3_ssq")
    k("s_nop 1")
    for r in (60, 62):
        k(f"v_mov_b32 v{r+1}, v{r}\nv_permlane32_swap_b32 v{r}, v{r+1}\nv_add_f32 v{r}, v{r}, v{r+1}")
        k(f"v_mov_b32 v{r+1}, v{r}\nv_permlane16_swap_b32 v{r}, v{r+1}\nv_add_f32 v{r}, v{r}, v{r+1}")
    k("buffer_store_dword v60, v11, s[16:19], s36 offen\nbuffer_store_dword v62, v11, s[16:19], s36 offen offset:1280")
    k.label("a3_end")
    k("s_endpgm")
    return k

def kernels():
    return [k0(), a1(), a2(), a3(), k3(), k4()]

if __name__ == "__main__":
    if len(sys.argv) > 2: Kern.prof = 0
    ks = kernels()
    print(ks[4].log)
    out = sys.argv[1] if len(sys.argv) > 1 else "cur.s"
    if len(sys.argv) > 2:
        for i, k in enumerate(ks): k.prof = PROF + i * 0x100000
    build_file(ks, out)
    for k in ks: print(k.name, "nops", k.nnops, "waits", k.nwaits)
```

```python
import sys
sys.path.insert(0, 'dev')
from asmlib import *
from wsmap import *
import os
OPT = set(os.environ.get('OPT', '').split(','))

def cost(I): return 8 if I.cls == 'trans' else 4

def k3(G1=int(os.environ.get("G1", 3)), defer=2, store_mod=os.environ.get("SMOD", "")):
    k = Kern("ffn_kernel", vgpr=256, agpr=256, lds=163840, block=256, grid=256)
    PB = 11
    vW, vWH, vW2, vH0, vH1 = 4, 5, 6, 7, 8
    vT = [[9, 10], [11, 12], [13, 14]]; vTH = [15, 16, 17]; vR = [18, 19, 20]; vPW, vPW8 = 21, 22
    vS = [23, 24, 25, 26]; C1 = [27, 28, 29, 30]; C2 = [31, 32, 33, 34]
    AF = [48, 64]; ACC = [80, 144]; HCV = 208; TMP = 240
    sK = lambda ks: f"s{40+ks}"
    sJ = lambda j: f"s{58+j}"
    def hc(ks, tt): return A(16*ks + 4*tt, 4) if ks < 16 else V(HCV + 16*(ks-16) + 4*tt, 4)
    def pf(j, tt): return A(16*j + 4*tt, 4)

    k("s_cmp_ge_u32 s2, 256\ns_cbranch_scc1 ffn_end")
    k("s_load_dwordx4 s[4:7], s[0:1], 40\ns_load_dwordx2 s[8:9], s[0:1], 56\ns_load_dwordx2 s[12:13], s[0:1], 80")
    k("v_and_b32 v1, 63, v0\nv_lshrrev_b32 v2, 6, v0\nv_readfirstlane_b32 s3, v2")
    k("s_and_b32 s10, s2, 7\ns_bfe_u32 s11, s2, 0x10003\ns_lshr_b32 s14, s2, 4")
    k(f"v_lshlrev_b32 v{vH0}, 4, v1\nv_add_u32 v{vH1}, {18432-1024}, v{vH0}")
    k("v_lshrrev_b32 v2, 3, v1\nv_and_b32 v3, 6, v2\nv_and_b32 v35, 7, v1\nv_xor_b32 v3, v3, v35\nv_lshlrev_b32 v3, 4, v3")
    k("s_lshl_b32 s67, s3, 11\ns_lshl_b32 s68, s3, 10\ns_lshl_b32 s15, s3, 3\nv_add_u32 v2, s15, v2")
    k(f"v_mul_u32_u24 v{vW}, 9216, v2\nv_add_u32 v{vW}, v{vW}, v3\nv_mul_u32_u24 v{vW2}, 1152, v2\nv_add_u32 v{vW2}, v{vW2}, v3")
    k(f"s_lshl_b32 s69, s14, 3\ns_lshl_b32 s15, s3, 1\ns_add_u32 s69, s69, s15\ns_mul_i32 s69, s69, 18432\ns_add_u32 s69, s69, {HC}")
    if 'hchot' in OPT: k(f"s_mul_i32 s69, s15, 18432\ns_add_u32 s69, s69, {HC}")
    k("s_mul_i32 s71, s10, 576\ns_mul_i32 s72, s11, 320\ns_add_u32 s72, s72, s71")
    k(f"s_lshl_b32 {sK(0)}, s72, 1")
    for ks in range(1, 18): k(f"s_add_u32 {sK(ks)}, {sK(ks-1)}, 294912")
    srd(k, 16, 12, WSSZ)
    srd(k, 20, 4, 5308416)
    k("s_sub_u32 s24, s6, 1024\ns_subb_u32 s25, s7, 0\ns_mov_b32 s26, 5309440\ns_mov_b32 s27, 0x20000")

    O2 = []
    for n in range(defer): O2 += [(n, j) for j in range(6)]
    for jj in ((6, 7),):
        for n in range(defer): O2 += [(n, j) for j in jj]
    O2 += [(n, 8) for n in range(defer)]
    for n in range(defer, 9): O2 += [(n, j) for j in range(9)]
    S2 = 81
    NS = S2 + (81 + 1) // 2
    sP67 = S2 + 3*defer - 1
    i8 = O2.index((0, 8)); sP8 = S2 + i8 // 2 - 1
    B = set([-1, 0, 1, 2, 3, 4, 5] + list(range(6, 18, 2)) + list(range(18, NS, G1)) + [sP67, sP8, 72])
    B = sorted(b for b in B if b < NS - 1)
    for f in (sP67, sP8):
        for b in (f - 1, f + 1):
            if b in B and b not in (sP67, sP8): B.remove(b)
    pb = lambda r: max(b for b in B if b <= r)
    rb = lambda r: min([b for b in B if b > r] + [10**6])
    units = []
    for s in range(NS):
        if s < 18: units.append(('H', s, s))
        units.append(('W', s, s))
    slot_of = {}
    free = list(range(20)); held = []
    prel = set()
    def pdead(sl):
        if sl < PB or sl in prel: return 10**6
        j = sl - PB
        return 18*(j//2 + 1) if j < 8 else S2
    state = dict(sp=0, nsp=0, m0=None)
    def dma_ops(u, sl):
        kind, s, _ = u
        tag = f"{kind}{s}"; ops = []
        base = sl * 8192
        if kind == 'H':
            ops += [(f"s_add_u32 m0, s67, {base}", None), (f"buffer_load_dwordx4 v{vH0}, s[16:19], s69 offen lds", tag), (f"buffer_load_dwordx4 v{vH1}, s[16:19], s69 offen offset:1024 lds", tag), ("s_add_u32 s69, s69, 1024", None)]
        elif s < 72:
            sp, ks = divmod(s, 18)
            if sp != state['sp']: ops.append((f"v_add_u32 v{vW}, 128, v{vW}", None)); state['sp'] = sp
            ops += [(f"s_add_u32 m0, s67, {base}", None), (f"buffer_load_dwordx4 v{vW}, s[20:23], {sK(ks)} offen lds", tag), (f"buffer_load_dwordx4 v{vW}, s[24:27], {sK(ks)} offen offset:1024 lds", tag)]
        elif s < S2:
            for kp in range(2):
                ops += [(f"s_add_u32 m0, s68, {base + 4096*kp}", None), (f"buffer_load_dwordx4 v{vWH}, s[28:31], {sK(2*(s-72)+kp)} offen lds", tag)]
        else:
            ops.append((f"s_add_u32 m0, s67, {base}", None))
            for par in range(2):
                i = 2*(s - S2) + par
                if i >= 81: continue
                n, j = O2[i]
                if n != state['nsp']:
                    ops.append((f"v_add_u32 v{vW2}, {((n - state['nsp'])*128) & 0xffffffff}, v{vW2}", None)); state['nsp'] = n
                ops.append((f"buffer_load_dwordx4 v{vW2}, s[{32+4*par}:{35+4*par}], {sJ(j)} offen{' offset:1024' if par else ''} lds", tag))
        return ops
    upos = 0
    LA0 = int(os.environ.get('LA0', 6))
    def issue(step, cap):
        nonlocal upos
        ops = []
        while cap > 0 and upos < len(units):
            u = units[upos]; r = rb(u[2] - 1)
            if u[2] > max(step, -1) + (LA0 if step < 18 else 100): break
            cand = [sl for sl in free if pdead(sl) >= r]
            if not cand: break
            sl = max(cand); free.remove(sl); slot_of[(u[0], u[1])] = sl; held.append((r, sl))
            ops += [(o, t, pb(u[2] - 1)) for o, t in dma_ops(u, sl)]; upos += 1; cap -= 1
        return ops
    def reads_for(s):
        ops = []
        sl = slot_of[('W', s)]; reg, off = divmod(sl * 8192, 65536); af = AF[s % 2]
        if s < 18:
            hs = slot_of[('H', s)]; hr, ho = divmod(hs * 8192, 65536)
            hops = [f"ds_read_b128 {hc(s, tt)}, v{vR[hr]} offset:{ho + 1024*tt}" for tt in range(4)]
        else: hops = []
        if 72 <= s < S2:
            for kp in range(2):
                for m in range(2):
                    for h in range(2): ops.append(f"ds_read_b64_tr_b16 {V(af + 8*kp + 4*m + 2*h, 2)}, v{vTH[reg]} offset:{off + 4096*kp + 2048*m + 1024*h}")
        else:
            for m in range(2):
                if s >= S2 and 2*(s - S2) + m >= 81: continue
                for t in range(2):
                    for h in range(2): ops.append(f"ds_read_b64_tr_b16 {V(af + 8*m + 4*t + 2*h, 2)}, v{vT[reg][t]} offset:{off + 1024*m + 4096*h}")
        return ops[:2] + hops + ops[2:]
    acc2 = {}
    accs = [ACC[0] + 32, HCV, ACC[1], ACC[1] + 32]
    for n in range(9): acc2[n] = accs[n % (defer + 1)]
    def mfmas(s):
        af = AF[s % 2]; out = []
        if s < 72:
            sp, ks = divmod(s, 18); a = ACC[sp % 2]
            if sp == 0 and 'nogram' not in OPT:
                for tt in range(4): out.append(MF(V(TMP + 4*tt, 4), hc(ks, tt), hc(ks, tt), V(TMP + 4*tt, 4) if ks else "0"))
            for m in range(4):
                for tt in range(4):
                    c = V(a + 16*m + 4*tt, 4); out.append(MF(c, V(af + 4*m, 4), hc(ks, tt), c if ks else "0"))
        elif s < S2:
            for kp in range(2):
                ks = 2*(s - 72) + kp
                for m in range(2):
                    for tt in range(4):
                        c = V(ACC[0] + 16*m + 4*tt, 4); out.append(MF(c, V(af + 8*kp + 4*m, 4), hc(ks, tt), c if ks else "0"))
        else:
            for par in range(2):
                i = 2*(s - S2) + par
                if i >= 81: continue
                n, j = O2[i]
                for t in range(2):
                    for tt in range(4):
                        c = V(acc2[n] + 16*t + 4*tt, 4); out.append(MF(c, V(af + 8*par + 4*t, 4), pf(j, tt), c if j else "0"))
        return out
    def silu(sp):
        ops = []
        if sp < 4: a = ACC[sp % 2]; nt = 2; bo = 32
        else: a = ACC[0]; nt = 1; bo = 16
        for tt in range(4):
            for t in range(nt):
                ga = a + 16*t + 4*tt; ub = ga + bo
                for r in range(4): ops += [f"v_mul_f32 v{ub+r}, v{ga+r}, v{ub+r}", f"v_mul_f32 v{ga+r}, v{ga+r}, v{C1[tt]}"]
                for r in range(4): ops.append(f"v_exp_f32 v{ga+r}, v{ga+r}")
                for r in range(4): ops.append(f"v_fma_f32 v{ga+r}, v{ga+r}, v{C2[tt]}, v{C2[tt]}")
                for r in range(4): ops.append(f"v_rcp_f32 v{ga+r}, v{ga+r}")
                for r in range(4): ops.append(f"v_mul_f32 v{ub+r}, v{ub+r}, v{ga+r}")
                d = a + 4*tt + 2*t
                ops += [f"v_cvt_pk_bf16_f32 v{d}, v{ub}, v{ub+1}", f"v_cvt_pk_bf16_f32 v{d+1}, v{ub+2}, v{ub+3}"]
            if sp < 4: ops.append(f"ds_write_b128 v{vPW}, {V(a + 4*tt, 4)} offset:{16384*sp + 1024*tt}")
            else: ops.append(f"ds_write_b64 v{vPW8}, {V(a + 4*tt, 2)} offset:{1024*tt}")
        if 'nosilu' in OPT: ops = [o for o in ops if o.startswith('ds_')]
        return [Ins(o, f"silu{sp}") for o in ops]
    def epi(n):
        a = acc2[n]; ops = []
        for tt in range(4):
            d = a + 4*tt
            ops += [f"v_cvt_pk_bf16_f32 v{d}, v{d}, v{d+1}", f"v_cvt_pk_bf16_f32 v{d+1}, v{d+2}, v{d+3}", f"v_cvt_pk_bf16_f32 v{d+2}, v{d+16}, v{d+17}", f"v_cvt_pk_bf16_f32 v{d+3}, v{d+18}, v{d+19}"]
            if 'nostore' not in OPT: ops.append(f"buffer_store_dwordx4 {V(d,4)}, v{vS[tt]}, s[16:19], s70 offen {store_mod}")
        ops.append("s_add_u32 s70, s70, 2048")
        return [Ins(o, f"epi{n}") for o in ops]

    first = issue(-2, 4)
    for o, t, _ in first: k(o, tag=t)
    k(f"v_and_b32 v2, 15, v1\nv_lshrrev_b32 v3, 4, v1\ns_lshr_b32 s73, s3, 1\ns_and_b32 s74, s3, 1")
    for o, t, _ in issue(-2, int(os.environ.get('PRO', 2))): k(o, tag=t)
    k("v_lshrrev_b32 v37, 2, v2\nv_and_b32 v38, 1, v3\nv_lshl_add_u32 v37, v38, 2, v37")
    k("s_lshl_b32 s15, s74, 2\nv_and_b32 v39, 6, v37\nv_xor_b32 v39, s15, v39\nv_lshlrev_b32 v39, 4, v39\nv_lshl_add_u32 v39, v37, 7, v39")
    k(f"v_and_b32 v40, 3, v2\nv_lshl_add_u32 v39, v40, 3, v39\nv_lshrrev_b32 v41, 1, v3\nv_lshl_add_u32 v{vT[0][0]}, v41, 11, v39\nv_xor_b32 v{vT[0][1]}, 32, v{vT[0][0]}")
    k(f"s_lshl_b32 s15, s73, 12\nv_add_u32 v{vR[0]}, s15, v{vH0}")
    for r in (1, 2):
        k(f"v_add_u32 v{vT[r][0]}, {65536*r}, v{vT[0][0]}\nv_add_u32 v{vT[r][1]}, {65536*r}, v{vT[0][1]}\nv_add_u32 v{vR[r]}, {65536*r}, v{vR[0]}")
    late = []
    L = late.append
    L("v_lshrrev_b32 v37, 2, v2"); L("v_lshl_add_u32 v37, v3, 2, v37"); L("v_xor_b32 v39, s74, v38"); L("v_lshlrev_b32 v39, 5, v39"); L("v_lshl_add_u32 v39, v37, 6, v39"); L(f"v_lshl_add_u32 v{vTH[0]}, v40, 3, v39")
    for r in (1, 2): L(f"v_add_u32 v{vTH[r]}, {65536*r}, v{vTH[0]}")
    L("s_lshl_b32 s15, s74, 13"); L(f"s_add_u32 s15, s15, {PB*8192}"); L(f"v_add_u32 v{vPW}, s15, v{vR[0]}")
    L("s_lshl_b32 s15, s74, 3"); L(f"s_add_u32 s15, s15, {(PB+8)*8192}"); L(f"v_add_u32 v{vPW8}, s15, v{vR[0]}")
    for tt in range(4): L(f"v_add_u32 v{vS[tt]}, {18432*tt}, v{vH0}")
    L("v_lshrrev_b32 v37, 2, v1"); L("s_lshl_b32 s15, s74, 4"); L("v_add_u32 v37, s15, v37"); L("v_lshrrev_b32 v39, 3, v1"); L("v_and_b32 v39, 2, v39"); L("v_and_b32 v41, 3, v1"); L("v_xor_b32 v39, v39, v41")
    L(f"v_mul_u32_u24 v{vWH}, 9216, v37"); L(f"v_lshl_add_u32 v{vWH}, v39, 4, v{vWH}")
    L("s_cmp_eq_u32 s73, 0"); L("s_cselect_b32 s28, s4, s6"); L("s_cselect_b32 s29, s5, s7"); L("s_movk_i32 s75, -64"); L("s_cmp_eq_u32 s11, 0"); L("s_cselect_b32 s15, 512, s75"); L("s_cselect_b32 s75, 0, -1"); L("s_add_u32 s28, s28, s15"); L("s_addc_u32 s29, s29, s75")
    L("s_mov_b32 s30, 5308416"); L("s_mov_b32 s31, 0x20000")
    L("s_mov_b32 s32, s8"); L("s_mov_b32 s33, s9"); L("s_mov_b32 s34, 5308416"); L("s_mov_b32 s35, 0x20000")
    L("s_sub_u32 s36, s8, 1024"); L("s_subb_u32 s37, s9, 0"); L("s_mov_b32 s38, 5309440"); L("s_mov_b32 s39, 0x20000")
    L(f"s_mul_i32 {sJ(0)}, s72, 1152")
    for j in range(1, 8): L(f"s_add_u32 {sJ(j)}, {sJ(j-1)}, 36864")
    L("s_lshl_b32 s15, s11, 5"); L("s_add_u32 s15, s15, s71"); L("s_add_u32 s15, s15, 256"); L(f"s_mul_i32 {sJ(8)}, s15, 1152")
    L("s_lshl_b32 s70, s10, 1"); L("s_add_u32 s70, s70, s11"); L("s_lshl_b32 s70, s70, 7"); L("s_lshl_b32 s15, s14, 3"); L("s_add_u32 s70, s70, s15"); L("s_lshl_b32 s15, s73, 2"); L("s_add_u32 s70, s70, s15")
    L("s_mul_i32 s70, s70, 18"); L("s_add_u32 s70, s70, s74"); L("s_lshl_b32 s70, s70, 10"); L(f"s_add_u32 s70, s70, {PART}")
    L("v_and_b32 v37, 1, v2"); L("v_cmp_eq_u32_e64 s[76:77], 1, v37"); L("v_and_b32 v37, 2, v2"); L("v_cmp_eq_u32_e64 s[78:79], 2, v37"); L("v_lshrrev_b32 v37, 2, v2"); L("v_cmp_eq_u32_e64 s[80:81], v37, v3")
    if 'k3w' in OPT:
        L("v_and_b32 v44, 127, v0"); L("v_mul_u32_u24 v45, 13108, v44"); L("v_lshrrev_b32 v45, 16, v45"); L("v_mul_u32_u24 v46, 5, v45"); L("v_sub_u32 v46, v44, v46")
        L("v_mul_u32_u24 v45, 9216, v45"); L("v_lshl_add_u32 v45, v46, 7, v45"); L("v_cmp_lt_u32 vcc, 2, v46"); L("v_cndmask_b32_e64 v46, 0, 1, vcc"); L("v_lshl_add_u32 v45, v46, 8, v45")
        L("v_mov_b32 v46, 0x40000000"); L("v_cmp_gt_u32 vcc, 90, v44"); L("v_cndmask_b32 v44, v46, v45, vcc")
        L("v_lshlrev_b32 v45, 7, v0"); L("v_cmp_gt_u32 vcc, 162, v0"); L("v_cndmask_b32 v45, v46, v45, vcc")
        L("s_lshr_b32 s15, s2, 3"); L(f"s_mul_i32 s100, s15, {18*9216}"); L("s_lshl_b32 s101, s71, 1"); L("s_add_u32 s100, s100, s101"); L("s_add_u32 s100, s100, 256")
        L("s_add_u32 s101, s100, 1024"); L("s_cmp_eq_u32 s73, 0"); L("s_cselect_b32 s100, s100, 0x40000000"); L("s_cselect_b32 s101, 0x40000000, s101")
    for o in late: k(o)
    if 'pc' in OPT: pf_code(k, "red_kernel", 42, 82, s3=15)
    rs = []
    R = rs.append
    for tt in range(4):
        t = TMP + 4*tt; c = C2[tt]; d = C1[tt]
        R(f"v_cndmask_b32_e64 v{t}, v{t}, v{t+1}, s[76:77]"); R(f"v_cndmask_b32_e64 v{t+2}, v{t+2}, v{t+3}, s[76:77]"); R(f"v_cndmask_b32_e64 v{t}, v{t}, v{t+2}, s[78:79]"); R(f"v_cndmask_b32_e64 v{c}, 0, v{t}, s[80:81]")
        R(f"v_mov_b32 v{t}, v{c}"); R(f"v_permlane32_swap_b32 v{c}, v{t}"); R(f"v_add_f32 v{c}, v{c}, v{t}")
        R(f"v_mov_b32 v{t}, v{c}"); R(f"v_permlane16_swap_b32 v{c}, v{t}"); R(f"v_add_f32 v{c}, v{c}, v{t}")
        R(f"v_mul_f32 v{c}, 0x3ae38e39, v{c}"); R(f"v_cvt_pk_bf16_f32 v{c}, v{c}, v{c}"); R(f"v_lshlrev_b32 v{c}, 16, v{c}")
        R(f"v_add_f32 v{c}, 0x3727c5ac, v{c}"); R(f"v_cvt_pk_bf16_f32 v{c}, v{c}, v{c}"); R(f"v_lshlrev_b32 v{c}, 16, v{c}")
        R(f"v_sqrt_f32 v{c}, v{c}"); R(f"v_cvt_pk_bf16_f32 v{c}, v{c}, v{c}"); R(f"v_lshlrev_b32 v{c}, 16, v{c}")
        R(f"v_rcp_f32 v{d}, v{c}"); R(f"v_mul_f32 v{c}, v{c}, v{c}"); R(f"v_mul_f32 v{d}, {LOG2E | 0x80000000}, v{d}")
    fq = []
    def conflicts(I, J):
        return bool((set(I.rd) | set(I.wr)) & set(J.wr)) or bool(set(I.wr) & set(J.rd))
    def take(budget, allow_ds, allow_vm=True):
        for i, I in enumerate(fq[:28]):
            if cost(I) > budget: continue
            if I.cls == 'vmem' and not allow_vm: continue
            if I.cls == 'ds' and not allow_ds: continue
            if any(conflicts(I, J) for J in fq[:i]): continue
            if I.cls == 'vmem' and any(J.cls == 'vmem' for J in fq[:i]): continue
            return fq.pop(i)
        return None
    def flush(tags):
        n = 0
        last = max([i for i, I in enumerate(fq) if I.tag in tags] + [-1])
        for i in range(last + 1): k.add(fq.pop(0)); n += 1
        return n
    def barrier(b):
        for e in list(held):
            if e[0] <= b: held.remove(e); free.append(e[1])
        for j in range(9):
            if b > (73 + j if j < 6 else (sP67 if j < 8 else sP8)): prel.add(PB + j)
        last = max([i for i, e in enumerate(dma) if e[2] <= b] + [-1])
        if last >= 0: log.append((b, "dmaforce", last + 1))
        for i in range(last + 1): o, t, _ = dma.pop(0); k(o, tag=t)
        tags = set(f"{u[0]}{u[1]}" for u in units if pb(u[2] - 1) == b)
        k.wait_both(tags, 'all')
        if 'nobar' not in OPT: k("s_barrier")
    dma = []; log = []
    k.stamp(1)
    barrier(-1)
    k.stamp(2)
    for o in reads_for(0): k(o, tag="rd")
    done2 = set(); gap = 0; lastvm = -100
    VSP0, VSP1, VSP2, DMAC, DSC, PRO = [int(os.environ.get(n, d)) for n, d in (('VSP0', 3), ('VSP1', 7), ('VSP2', 4), ('DMAC', 4), ('DSC', 4), ('PRO', 16))]
    for s in range(NS):
        if s in (18, 36, 54, 72):
            dl = {18: {"late"}, 36: {"silu0"}, 54: {"silu1"}, 72: {"silu2"}}[s]
            n = flush(dl)
            if n: log.append((s, "flush", n))
            fq += silu(s // 18 - 1)
        if s == S2: fq += silu(4)
        if s == sP67: log.append((s, "flush3", flush({"silu3"})))
        if s == sP8: log.append((s, "flush4", flush({"silu4"})))
        if s >= S2:
            for par in range(2):
                i = 2*(s - S2) + par
                if i < 81 and O2[i][1] == 0 and O2[i][0] > defer:
                    n = flush({f"epi{O2[i][0] - defer - 1}"})
                    if n: log.append((s, "flushepi", n))
        if 'k3w' in OPT:
            if s == int(os.environ.get('T13', -1 if ('tw' in OPT or 'a1t' in OPT) else 6)): dma += [("buffer_load_dword v46, v44, s[20:23], s100 offen", None, 1000), ("buffer_load_dword v47, v44, s[24:27], s101 offen", None, 1000)]
            if s == int(os.environ.get('T2', -1 if 'tw2' in OPT else 24)): dma += [("s_lshr_b32 s15, s2, 3", None, 1000), (f"s_mul_i32 s100, s15, {162*128}", None, 1000), ("s_mul_i32 s101, s10, 663552", None, 1000), ("s_add_u32 s100, s100, s101", None, 1000), ("buffer_load_dword v43, v45, s[32:35], s100 offen", None, 1000)]
        if s in (18, 72, S2): k.stamp({18: 3, 72: 4, S2: 5}[s])
        if s in B: barrier(s)
        else: k.wait_lg("rd")
        lds = reads_for(s + 1) if s + 1 < NS else []
        if 73 <= s <= 78: lds += [f"ds_read_b128 {pf(s-73, tt)}, v{vR[((PB+s-73)*8192)//65536]} offset:{((PB+s-73)*8192) % 65536 + 1024*tt}" for tt in range(4)]
        pj = [6, 7] if s == sP67 else ([8] if s == sP8 else [])
        for j in pj: lds = [f"ds_read_b128 {pf(j, tt)}, v{vR[((PB+j)*8192)//65536]} offset:{((PB+j)*8192) % 65536 + 1024*tt}" for tt in range(4)] + lds
        cap = int(os.environ.get('CAP0', 3)) if s < 18 else int(os.environ.get('CAP1', 2))
        dma += issue(s, cap - (sum(1 for e in dma if e[1]) + 1) // 2)
        if 'nodma' in OPT: dma.clear()
        if 'nolds' in OPT: lds = []
        M = mfmas(s)
        for gi, m in enumerate(M):
            k(m)
            if s == 17 and gi == 7: fq += [Ins(o, "rs") for o in rs]
            if s >= S2:
                i = 2*(s - S2) + gi // 8
                if gi % 8 == 7 and O2[i][1] == 8: fq += epi(O2[i][0])
            budget = 8
            if gi == len(M) - 1: budget = 0 if (s + 1) in B else 4
            left = len(M) - gi
            nl = 2 if len(lds) > max(left - 5, 0) else 1
            used_ds = False
            while lds and nl > 0 and (budget >= 4 or gi == len(M) - 1):
                k(lds.pop(0), tag="rd"); budget -= DSC; nl -= 1; used_ds = True
            if gi == len(M) - 1:
                while lds: k(lds.pop(0), tag="rd")
            gap += 1
            space = VSP0 if s < 18 else (VSP1 if s < S2 else VSP2)
            if dma and budget >= 4:
                isv = dma[0][0].startswith('buffer')
                if not isv or gap - lastvm >= space:
                    o, t, _ = dma.pop(0); k(o, tag=t); budget -= (DMAC if isv else 4)
                    if isv: lastvm = gap
            while budget >= 4:
                I = take(budget, allow_ds=(not used_ds and gi < len(M) - 4), allow_vm=(gap - lastvm >= space))
                if I is None: break
                k.add(I); budget -= cost(I)
                if I.cls == 'ds': used_ds = True
                if I.cls == 'vmem': lastvm = gap
    k.stamp(6)
    log.append(("end", "flush", flush({f"epi{n}" for n in range(9)})))
    assert not fq and upos == len(units)
    k.label("ffn_end")
    k("s_endpgm")
    k.log = log
    return k

def k4():
    k = Kern("red_kernel", vgpr=96, lds=0, block=576, grid=256)
    k("s_cmp_ge_u32 s2, 256\ns_cbranch_scc1 red_end")
    k("s_load_dwordx2 s[12:13], s[0:1], 80\ns_load_dwordx2 s[4:5], s[0:1], 64")
    k("v_and_b32 v1, 63, v0\nv_lshrrev_b32 v2, 6, v0\nv_readfirstlane_b32 s3, v2")
    k("v_and_b32 v3, 7, v1\nv_bfe_u32 v4, v1, 3, 1\nv_lshrrev_b32 v5, 4, v1")
    k("v_lshlrev_b32 v6, 4, v3\nv_lshl_add_u32 v6, v4, 10, v6\nv_lshl_add_u32 v6, v5, 8, v6")
    k("s_lshr_b32 s6, s2, 1\ns_mul_i32 s6, s6, 18\ns_lshl_b32 s7, s3, 1\ns_add_u32 s6, s6, s7\ns_lshl_b32 s6, s6, 10\ns_and_b32 s7, s2, 1\ns_lshl_b32 s7, s7, 7\ns_add_u32 s6, s6, s7")
    k(f"s_add_u32 s7, s6, {HR}\ns_add_u32 s6, s6, {PART}")
    srd(k, 16, 12, WSSZ)
    for f in range(16):
        k(f"buffer_load_dwordx4 {V(16+4*f,4)}, v6, s[16:19], s6 offen\ns_add_u32 s6, s6, 2359296")
    k("buffer_load_dwordx4 v[80:83], v6, s[16:19], s7 offen")
    k("v_and_b32 v7, 15, v1\nv_lshrrev_b32 v8, 2, v7\nv_lshlrev_b32 v8, 1, v8\nv_and_b32 v9, 3, v7")
    k("v_and_b32 v10, 1, v9\nv_lshlrev_b32 v10, 4, v10\nv_mov_b32 v11, 0x3f80\nv_lshlrev_b32 v10, v10, v11\nv_lshrrev_b32 v9, 1, v9")
    for t in range(2):
        k(f"v_add_u32 v11, {t}, v8\nv_and_b32 v12, 3, v11\nv_lshrrev_b32 v11, 2, v11\nv_lshl_add_u32 v11, v11, 1, v9")
        k("v_cmp_eq_u32 vcc, v12, v5\nv_cndmask_b32 v12, 0, v10, vcc")
        for d in range(4):
            k(f"v_cmp_eq_u32 vcc, {d}, v11\nv_cndmask_b32 v{84+4*t+d}, 0, v12, vcc")
    srd(k, 20, 4, 2359296)
    k("v_mul_u32_u24 v7, 1152, v3\nv_lshl_add_u32 v7, v4, 6, v7\nv_lshl_add_u32 v7, v5, 4, v7\ns_mul_i32 s8, s2, 9216\ns_lshl_b32 s9, s3, 7\ns_add_u32 s8, s8, s9")
    for f in range(17):
        for t in range(2):
            c = V(8+4*t, 4)
            k(MF(c, V(84+4*t, 4), V(16+4*f, 4), c if f else "0"))
    for j in range(4): k(f"v_cvt_pk_bf16_f32 v{16+j}, v{8+2*j}, v{9+2*j}")
    k("buffer_store_dwordx4 v[16:19], v7, s[20:23], s8 offen")
    k.label("red_end")
    k("s_endpgm")
    return k
```

```python
import sys
sys.path.insert(0, 'dev')
from asmlib import *

from wsmap import *
from gen3 import k3, k4
import os
OPT = set(os.environ.get('OPT', '').split(','))
L0 = [int(c) for c in os.environ.get('L0', '0156')]
L1 = [int(c) for c in os.environ.get('L1', '23478')]

def k0():
    BS = 288; RAW = 128*BS; IS = 1056; DUM = RAW + 24*IS
    k = Kern("prep_kernel", vgpr=256, lds=DUM + 16, block=256, grid=248)
    k("s_load_dwordx8 s[4:11], s[0:1], 0\ns_load_dwordx2 s[12:13], s[0:1], 80")
    k("s_getpc_b64 s[40:41]\nv_lshlrev_b32 v250, 5, v0\nv_min_u32 v250, prep_kernel_codeend-prep_kernel-64, v250\nglobal_load_dword v252, v250, s[40:41]")
    k("v_and_b32 v1, 63, v0\nv_lshrrev_b32 v2, 6, v0\nv_readfirstlane_b32 s3, v2")
    k("v_and_b32 v3, 15, v1\nv_lshrrev_b32 v4, 4, v1")
    k("v_lshlrev_b32 v5, 4, v1")
    k("v_mov_b32 v6, 0x40000000")
    k("s_cmp_ge_u32 s2, 96\ns_cbranch_scc1 prep_notw")
    k("s_lshr_b32 s29, s2, 4\ns_bfe_u32 s28, s2, 0x10003\ns_and_b32 s30, s2, 3\ns_lshl_b32 s30, s30, 1\ns_add_u32 s28, s28, s30\ns_and_b32 s30, s2, 4\ns_lshl_b32 s30, s30, 1\ns_add_u32 s28, s28, s30")
    k("v_mul_u32_u24 v7, 13108, v1\nv_lshrrev_b32 v7, 16, v7")
    k("v_mul_u32_u24 v8, 5, v7\nv_sub_u32 v8, v1, v8")
    k("v_mul_u32_u24 v9, 21846, v7\nv_lshrrev_b32 v9, 16, v9")
    k("v_mul_u32_u24 v10, 3, v9\nv_sub_u32 v10, v7, v10")
    k("v_mul_u32_u24 v9, 3456, v9\nv_mul_u32_u24 v10, 1152, v10\nv_lshlrev_b32 v8, 4, v8\nv_add3_u32 v7, v9, v10, v8")
    k("s_mul_i32 s30, s28, 72\ns_and_b32 s30, s30, 0xfffffff0\ns_mul_i32 s31, s29, 331776\ns_add_u32 s30, s30, s31\ns_mul_i32 s31, s3, 13824\ns_add_u32 s30, s30, s31")
    k(f"s_mul_i32 s32, s3, {IS}\ns_add_u32 s32, s32, {RAW}")
    k("v_lshlrev_b32 v8, 2, v0\ns_mul_i32 s33, s28, 1296")
    k("v_mov_b32 v20, 0\nv_mov_b32 v21, 0\nv_mov_b32 v22, 0\nv_mov_b32 v23, 0\nv_lshlrev_b32 v9, 4, v0")
    for i in range(9): k(f"ds_write_b128 v9, v[20:23] offset:{4096*i}")
    srd(k, 24, 8, 20736); srd(k, 20, 6, 1990656)
    k("buffer_load_dword v16, v8, s[24:27], s33 offen\nbuffer_load_dword v17, v8, s[24:27], s33 offen offset:1024")
    for i in range(6):
        k(f"s_add_u32 m0, s32, {4*IS*i}\nbuffer_load_dwordx4 v7, s[20:23], s30 offen lds\ns_add_u32 s30, s30, {16*3456}")
    srd(k, 16, 12, WSSZ)
    k("s_and_b32 s34, s28, 1\ns_lshl_b32 s34, s34, 2")
    k(f"v_mov_b32 v24, {DUM}")
    for rnd, (e, ad) in enumerate((("v0", 26), ("v25", 27))):
        if rnd: k("v_add_u32 v25, 256, v0")
        k(f"v_cmp_lt_u32 vcc, 161, {e}\nv_cndmask_b32_e64 v10, 0, 1, vcc")
        k(f"v_mul_u32_u24 v11, 162, v10\nv_sub_u32 v11, {e}, v11")
        k("v_mul_u32_u24 v12, 7282, v11\nv_lshrrev_b32 v12, 16, v12")
        k("v_mul_u32_u24 v13, 9, v12\nv_sub_u32 v13, v11, v13")
        k("v_mul_u32_u24 v14, 18, v10\nv_add3_u32 v14, v14, v12, s34")
        k("v_lshrrev_b32 v15, 1, v13\nv_lshlrev_b32 v15, 5, v15\nv_and_b32 v13, 1, v13\nv_lshl_add_u32 v15, v13, 2, v15\nv_lshl_add_u32 v15, v10, 3, v15")
        k(f"v_mul_u32_u24 v14, {BS}, v14\nv_add_u32 v{ad}, v14, v15\nv_add_u32 v{ad+2}, {40*BS+16}, v{ad}")
        if rnd: k(f"v_cmp_gt_u32 vcc, 324, v25\nv_cndmask_b32 v{ad}, v24, v{ad}, vcc\nv_cndmask_b32 v{ad+2}, v24, v{ad+2}, vcc")
    k("v_cmp_lt_u32 vcc, 17, v0\nv_cndmask_b32_e64 v10, 0, 1, vcc\nv_mul_u32_u24 v11, 18, v10\nv_sub_u32 v11, v0, v11")
    k("v_lshl_add_u32 v12, v10, 4, v11\nv_add_u32 v12, 80, v12\nv_lshl_add_u32 v13, v10, 2, v11\nv_add_u32 v13, 50, v13")
    k("v_cmp_gt_u32 vcc, 16, v11\nv_cndmask_b32 v12, v13, v12, vcc")
    k(f"v_add_u32 v13, s34, v0\nv_add_u32 v13, 80, v13\nv_mul_u32_u24 v13, {BS}, v13\nv_lshl_add_u32 v30, v12, 1, v13")
    k("v_cmp_gt_u32 vcc, 36, v0\nv_cndmask_b32 v30, v24, v30, vcc\nv_mov_b32 v31, 0x3f80")
    k.stamp(1)
    k.wait_all(vm=False); k("s_barrier")
    k("ds_write_b16 v30, v31\nds_write_b32 v26, v16\nds_write_b32 v28, v16\nds_write_b32 v27, v17\nds_write_b32 v29, v17")
    k("v_lshrrev_b32 v10, 2, v3\nv_and_b32 v11, 3, v3")
    k(f"v_lshl_add_u32 v12, v4, 3, v10\nv_mul_u32_u24 v12, {BS}, v12\nv_lshl_add_u32 v12, v11, 3, v12\ns_lshl_b32 s35, s3, 5\nv_add_u32 v12, s35, v12")
    k(f"v_mul_u32_u24 v13, 240, v11\nv_mul_u32_u24 v14, {2*IS}, v10\nv_lshl_add_u32 v13, v4, 4, v13\nv_add_u32 v13, v13, v14\nv_add_u32 v13, {RAW}, v13")
    k(f"s_mul_i32 s36, s28, 18\ns_mul_i32 s37, s29, 3\ns_add_u32 s36, s36, s37\ns_mul_i32 s36, s36, 7\ns_add_u32 s36, s36, s3\ns_lshl_b32 s36, s36, 10\ns_add_u32 s36, s36, {WF}")
    k(f"s_add_u32 s37, s36, 4096\ns_cmp_lt_u32 s3, 3\ns_cselect_b32 s37, s37, {INV}")
    k.stamp(2)
    k.wait_all(); k("s_barrier")
    k.stamp(3)
    def rdB(s):
        for ts in range(2):
            for h in range(2):
                k(f"ds_read_b64_tr_b16 {V(32+16*ts+4*s+2*h,2)}, v12 offset:{(32*s+4*h)*BS+128*ts}")
    def rdA(db, s):
        for hf in range(2): k(f"ds_read_b128 {V(64+32*db+16*hf+4*s,4)}, v13 offset:{db*8*IS+hf*IS+s*64}")
    for s in range(4): rdB(s); rdA(0, s)
    for db in range(1, 3):
        for s in range(4): rdA(db, s)
    for db in range(3):
        for s in range(4):
            for hf in range(2):
                for ts in range(2):
                    c = V(160+16*db+8*ts+4*hf, 4)
                    k(MF(c, V(64+32*db+16*hf+4*s,4), V(32+16*ts+4*s,4), c if s else "0"))
        if db:
            for ts in range(2):
                c = 160+16*(db-1)+8*ts; o = 208+8*(db-1)+4*ts
                for j in range(4): k(f"v_cvt_pk_bf16_f32 v{o+j}, v{c+2*j}, v{c+2*j+1}")
                k(f"buffer_store_dwordx4 {V(o,4)}, v5, s[16:19], s{36+ts} offen")
            k("s_add_u32 s36, s36, 7168\ns_add_u32 s37, s37, 7168")
    k.stamp(4)
    for ts in range(2):
        c = 160+32+8*ts; o = 208+16+4*ts
        for j in range(4): k(f"v_cvt_pk_bf16_f32 v{o+j}, v{c+2*j}, v{c+2*j+1}")
        k(f"buffer_store_dwordx4 {V(o,4)}, v5, s[16:19], s{36+ts} offen")
    k("s_endpgm")
    k.label("prep_notw")
    k("s_cmp_lt_u32 s2, 120\ns_cbranch_scc1 prep_wo\ns_cmp_ge_u32 s2, 248\ns_cbranch_scc1 prep_end")
    k("s_sub_u32 s35, s2, 120\ns_lshr_b32 s36, s35, 3\ns_and_b32 s37, s35, 3\ns_lshl_b32 s37, s37, 1\ns_bfe_u32 s38, s35, 0x10002\ns_add_u32 s37, s37, s38\ns_lshl_b32 s37, s37, 4\ns_add_u32 s37, s37, s36")
    k("v_lshrrev_b32 v7, 4, v0")
    k("v_mul_u32_u24 v8, 1152, v7\nv_lshl_add_u32 v8, v3, 4, v8")
    k("v_add_u32 v9, 1024, v8\nv_cmp_gt_u32 vcc, 8, v3\nv_cndmask_b32 v9, v6, v9, vcc")
    k("s_mul_i32 s28, s37, 18432")
    k("s_waitcnt lgkmcnt(0)")
    srd(k, 20, 4, 2359296)
    for j in range(4): k(f"buffer_load_dwordx4 {V(16+4*j,4)}, v8, s[20:23], s28 offen offset:{256*j}")
    k(f"buffer_load_dwordx4 v[32:35], v9, s[20:23], s28 offen")
    srd(k, 16, 12, WSSZ)
    if 'pc' in OPT: pf_code(k, "attn1_kernel", 250, 40)
    k("v_xor_b32 v10, v7, v3\nv_lshlrev_b32 v10, 4, v10\nv_lshl_add_u32 v10, v3, 8, v10")
    k("s_lshl_b32 s29, s3, 2\nv_add_u32 v11, s29, v4\nv_xor_b32 v12, v3, v11\nv_lshlrev_b32 v12, 4, v12\nv_lshl_add_u32 v11, v11, 8, v12")
    k("s_mov_b32 s30, 0xffff0000")
    if 'k0w' in OPT:
        k("s_load_dwordx4 s[44:47], s[0:1], 40")
        pf13_addr(k, 84, "v0", 85, L0, 36, "v6")
        k(f"s_and_b32 s52, s2, 7\ns_mul_i32 s52, s52, 1152\ns_mul_i32 s53, s36, {36*9216}\ns_add_u32 s52, s52, s53")
        k("s_mov_b32 s48, s46\ns_mov_b32 s49, s47\ns_mov_b32 s46, 5308416\ns_mov_b32 s47, 0x20000\ns_mov_b32 s50, 5308416\ns_mov_b32 s51, 0x20000")
    k(f"s_lshl_b32 s33, s3, 10\ns_add_u32 s33, s33, s28\ns_add_u32 s34, s33, 16384\ns_cmp_lt_u32 s3, 2\ns_cselect_b32 s34, s34, {INV}")
    k(f"s_lshl_b32 s32, s37, 6\ns_add_u32 s32, s32, {MX}")
    k("v_lshlrev_b32 v13, 2, v7\nv_cmp_eq_u32 vcc, 0, v3\nv_cndmask_b32 v13, v6, v13, vcc")
    k("s_mov_b32 s31, 0x3ae38e39")
    for i in range(20):
        k(f"v_lshlrev_b32 v{40+2*i}, 16, v{16+i}\nv_and_b32 v{41+2*i}, s30, v{16+i}")
        if i == 1: k("v_add_f32 v80, v40, v41\nv_mul_f32 v82, v40, v40\nv_mul_f32 v83, v41, v41\nv_add_f32 v81, v42, v43\nv_fmac_f32 v82, v42, v42\nv_fmac_f32 v83, v43, v43")
        if i >= 2:
            a = 80 + (i % 2)
            k(f"v_add_f32 v{a}, v{a}, v{40+2*i}\nv_fmac_f32 v82, v{40+2*i}, v{40+2*i}\nv_add_f32 v{a^1}, v{a^1}, v{41+2*i}\nv_fmac_f32 v83, v{41+2*i}, v{41+2*i}")
    k("v_add_f32 v80, v80, v81\nv_add_f32 v82, v82, v83")
    for r in (8, 4, 2, 1):
        k(f"v_add_f32_dpp v80, v80, v80 row_ror:{r} row_mask:0xf bank_mask:0xf\nv_add_f32_dpp v82, v82, v82 row_ror:{r} row_mask:0xf bank_mask:0xf")
    k("v_mul_f32 v80, s31, v80\nv_mul_f32 v82, s31, v82\nv_fma_f32 v82, -v80, v80, v82\nv_max_f32 v82, 0, v82")
    k.stamp(1)
    bf16r(k, "v81", "v80"); bf16r(k, "v82", "v82")
    k("v_add_f32 v82, 0x3727c5ac, v82"); bf16r(k, "v82", "v82")
    k("v_sqrt_f32 v82, v82"); bf16r(k, "v82", "v82")
    k("v_rcp_f32 v82, v82\nv_mul_f32 v81, v81, v82")
    for i in range(20):
        k(f"v_fma_f32 v{40+2*i}, v{40+2*i}, v82, -v81\nv_fma_f32 v{41+2*i}, v{41+2*i}, v82, -v81\nv_cvt_pk_bf16_f32 v{16+i}, v{40+2*i}, v{41+2*i}")
        if i % 4 == 3: k(f"ds_write_b128 v10, {V(13+i,4)} offset:{4096*(i//4)}")
    k("buffer_store_dword v80, v13, s[16:19], s32 offen")
    k.stamp(2)
    k.wait_all(vm=False); k("s_barrier")
    for i in range(5): k(f"ds_read_b128 {V(16+4*i,4)}, v11 offset:{4096*i}")
    for i in range(4):
        k(f"buffer_store_dwordx4 {V(16+4*i,4)}, v5, s[16:19], s33 offen")
        k("s_add_u32 s33, s33, 4096")
    k("buffer_store_dwordx4 v[32:35], v5, s[16:19], s34 offen")
    if 'k0w' in OPT:
        k("buffer_load_dword v87, v84, s[44:47], s52 offen\nbuffer_load_dword v88, v84, s[48:51], s52 offen")
    k("s_endpgm")
    RS = 1056; TB = 32*RS
    k.label("prep_wo")
    k("s_cmp_ge_u32 s2, 114\ns_cbranch_scc1 prep_end")
    k("s_sub_u32 s28, s2, 96")
    k("s_mul_i32 s29, s28, 36\ns_sub_u32 s30, s28, 16\ns_mul_i32 s30, s30, 288\ns_add_u32 s30, s30, 16")
    k("s_cmp_lt_u32 s28, 16\ns_cselect_b32 s29, s29, s30\ns_cselect_b32 s30, 18, 36\ns_cselect_b32 s31, 4, 72\ns_cselect_b32 s32, 2, 18")
    k("s_lshr_b32 s33, s3, 1\ns_mul_i32 s33, s33, s30\ns_add_u32 s29, s29, s33\ns_and_b32 s33, s3, 1\ns_mul_i32 s33, s33, s31\ns_lshl_b32 s33, s33, 1\ns_add_u32 s29, s29, s33")
    k("s_mul_i32 s29, s29, 1152\ns_mul_i32 s31, s31, 1152\ns_mul_i32 s32, s32, 1152")
    k(f"s_mul_i32 s34, s3, {8*RS}")
    k("s_waitcnt lgkmcnt(0)")
    srd(k, 20, 10, 663552)
    for kk in range(8):
        k("s_mov_b32 s35, s29")
        if kk >> 2: k("s_add_u32 s35, s35, s31")
        if (kk & 3) >> 1: k("s_add_u32 s35, s35, s32")
        if kk & 1: k("s_add_u32 s35, s35, 1152")
        k(f"s_add_u32 m0, s34, {kk*RS}\nbuffer_load_dwordx4 v5, s[20:23], s35 offen lds")
    k("v_lshrrev_b32 v7, 5, v1\nv_mul_lo_u32 v7, v7, s31\nv_bfe_u32 v8, v1, 4, 1\nv_mul_lo_u32 v8, v8, s32\nv_bfe_u32 v9, v1, 3, 1\nv_mul_u32_u24 v9, 1152, v9")
    k("v_add3_u32 v7, v7, v8, v9\nv_and_b32 v8, 7, v1\nv_lshl_add_u32 v7, v8, 4, v7")
    k(f"s_lshl_b32 s34, s3, 10\ns_add_u32 m0, s34, {TB-1024}\nbuffer_load_dwordx4 v7, s[20:23], s29 offen offset:1024 lds")
    srd(k, 16, 12, WSSZ)
    k("v_lshrrev_b32 v10, 2, v3\nv_and_b32 v11, 3, v3\nv_lshl_add_u32 v12, v4, 2, v10\ns_lshl_b32 s35, s3, 5")
    k(f"v_lshlrev_b32 v13, 3, v11\nv_add_u32 v13, s35, v13\nv_mul_u32_u24 v14, {RS}, v12\nv_add_u32 v14, v14, v13\nv_lshl_add_u32 v15, v12, 7, v13\nv_add_u32 v15, {TB}, v15")
    k(f"s_and_b32 s36, s3, 1\ns_lshl_b32 s37, s36, 4\nv_add_u32 v16, s37, v3\nv_lshlrev_b32 v17, 4, v4\nv_mul_u32_u24 v18, {RS}, v16\nv_add_u32 v18, v18, v17\nv_lshl_add_u32 v19, v16, 7, v17\nv_add_u32 v19, {TB}, v19")
    for j in range(4): k(f"v_mov_b32 v{20+j}, 0x3f803f80")
    k("v_lshl_add_u32 v24, v10, 4, v4\nv_lshlrev_b32 v24, 4, v24\nv_lshl_add_u32 v24, v11, 1, v24\ns_lshl_b32 s37, s36, 3\nv_add_u32 v24, s37, v24\nv_cmp_gt_u32 vcc, 2, v4\nv_cndmask_b32 v24, v6, v24, vcc")
    k(f"s_mul_i32 s38, s3, 18\ns_add_u32 s38, s38, s28\ns_lshl_b32 s38, s38, 10\ns_add_u32 s38, s38, {WOF}")
    k.stamp(1)
    k.wait_all(); k("s_barrier")
    k.stamp(2)
    for i in range(9):
        for h in range(2):
            if i < 8: k(f"ds_read_b64_tr_b16 {V(32+4*i+2*h,2)}, v14 offset:{h*16*RS+128*i}")
            else: k(f"ds_read_b64_tr_b16 {V(32+4*i+2*h,2)}, v15 offset:{h*2048}")
    for s in range(18):
        if s < 16: k(f"ds_read_b128 {V(72+4*s,4)}, v18 offset:{64*s}")
        else: k(f"ds_read_b128 {V(72+4*s,4)}, v19 offset:{64*(s-16)}")
    for i in range(9):
        k(f"buffer_store_dwordx4 {V(32+4*i,4)}, v5, s[16:19], s38 offen\ns_add_u32 s38, s38, {4*18*1024}")
    for s in range(18): k(MF(V(28 if s % 2 else 20+4+0, 4) if False else "v[28:31]", "v[20:23]", V(72+4*s,4), "v[28:31]" if s else "0"))
    k("s_mov_b32 s31, 0x3ae38e39\nv_mul_f32 v28, s31, v28")
    bf16r(k, "v29", "v28")
    k("v_sub_f32 v28, v28, v29\nv_cmp_eq_u32 vcc, 0, v4\nv_cndmask_b32 v28, v28, v29, vcc\nv_cvt_pk_bf16_f32 v28, v28, v28")
    k(f"s_lshl_b32 s38, s28, 10\ns_add_u32 s38, s38, {WOF + 36*18*1024}\nbuffer_store_short v28, v24, s[16:19], s38 offen")
    k.label("prep_end")
    k("s_endpgm")
    return k


def a1():
    ROWS = 129024
    XR = 16; NX = 6; WB = 40; AC = 96; EP = 40; PK = 60; VV = 78
    TW = 'tw' in OPT
    k = Kern("attn1_kernel", vgpr=128, lds=159744, block=576 if TW else 512, grid=256)
    k("s_cmp_ge_u32 s2, 256\ns_cbranch_scc1 a1_end")
    k("s_load_dwordx2 s[12:13], s[0:1], 80")
    if TW or 'a1t' in OPT: k("s_load_dwordx4 s[44:47], s[0:1], 40\ns_load_dwordx2 s[52:53], s[0:1], 56")
    k("v_and_b32 v1, 63, v0\nv_lshrrev_b32 v2, 6, v0\nv_readfirstlane_b32 s3, v2")
    k("v_lshlrev_b32 v5, 4, v1")
    k("s_and_b32 s4, s2, 7\ns_lshr_b32 s5, s2, 3")
    if TW: k("s_cmp_eq_u32 s3, 8\ns_cbranch_scc1 a1_tw")
    k("s_and_b32 s6, s4, 3\ns_lshl_b32 s6, s6, 2\ns_and_b32 s7, s5, 3\ns_add_u32 s6, s6, s7")
    k("s_lshr_b32 s7, s4, 2\ns_lshl_b32 s7, s7, 3\ns_lshr_b32 s5, s5, 2\ns_add_u32 s7, s7, s5")
    k("s_lshl_b32 s8, s6, 3\ns_add_u32 s8, s8, s3")
    k(f"s_lshl_b32 s9, s3, 10\ns_mul_i32 s10, s7, 129024\ns_add_u32 s10, s10, {WF}")
    k(f"s_mul_i32 s11, s8, 18432")
    ROT = 'rot' in OPT
    if ROT:
        k("s_and_b32 s14, s6, 3\ns_mul_i32 s14, s14, 9\ns_lshr_b32 s14, s14, 1\ns_mul_i32 s15, s5, 9\ns_lshr_b32 s15, s15, 2\ns_add_u32 s14, s14, s15\ns_sub_u32 s15, s14, 18\ns_cmp_ge_u32 s14, 18\ns_cselect_b32 s14, s15, s14")
        k("s_add_u32 s33, s10, 129024\ns_add_u32 s34, s11, 18432\ns_mul_i32 s15, s14, 7168\ns_add_u32 s10, s10, s15\ns_lshl_b32 s15, s14, 10\ns_add_u32 s11, s11, s15")
    k("s_add_u32 s10, s10, s9")
    wrapw = "\ns_sub_u32 s14, s10, 129024\ns_cmp_ge_u32 s10, s33\ns_cselect_b32 s10, s14, s10" if ROT else ""
    if ROT: k(wrapw)
    srd(k, 16, 12, WSSZ)
    LA = int(os.environ.get('A1LA', 4)); GB = int(os.environ.get('A1GB', 2))
    assert LA < NX
    st = dict(di=0, xi=0)
    def ld(upto):
        ops = []
        while st['xi'] <= min(upto, 17):
            ks = st['xi']
            while st['di'] <= (7*min(ks + 1, 17) + 6) // 8:
                di = st['di']
                ops.append((f"s_add_u32 m0, s9, {8192*di}\nbuffer_load_dwordx4 v5, s[16:19], s10 offen lds\ns_add_u32 s10, s10, 8192" + wrapw, f"D{di}")); st['di'] += 1
            if ROT: ops.append((f"buffer_load_dwordx4 {V(XR+4*(ks%NX),4)}, v5, s[16:19], s11 offen\ns_add_u32 s11, s11, 1024\ns_sub_u32 s15, s11, 18432\ns_cmp_ge_u32 s11, s34\ns_cselect_b32 s11, s15, s11", None))
            else: ops.append((f"buffer_load_dwordx4 {V(XR+4*(ks%NX),4)}, v5, s[16:19], s11 offen offset:{1024*(ks%4)}" + ("\ns_add_u32 s11, s11, 4096" if ks % 4 == 3 else ""), None))
            st['xi'] += 1
        return ops
    for o, t in ld(LA - 1): k(o, tag=t)
    if 'pc' in OPT and not TW: pf_code(k, "attn2_kernel", 124, 40)
    if 'a1t' in OPT:
        k("s_and_b32 s48, s3, 3\nv_lshl_add_u32 v123, v1, 2, s48\nv_mov_b32 v122, 0x40000000")
        pf13_addr(k, 127, "v123", 120, L1, 18, "v122")
        k(f"s_mul_i32 s48, s4, 1152\ns_lshr_b32 s49, s2, 3\ns_mul_i32 s49, s49, {18*9216}\ns_add_u32 s48, s48, s49")
        k("s_cmp_lt_u32 s3, 4\ns_cselect_b32 s44, s44, s46\ns_cselect_b32 s45, s45, s47\ns_mov_b32 s46, 5308416\ns_mov_b32 s47, 0x20000")
    k("v_and_b32 v3, 15, v1\nv_lshrrev_b32 v4, 4, v1\nv_mov_b32 v6, 0x40000000")
    k("v_lshlrev_b32 v7, 4, v3\nv_lshl_add_u32 v8, v4, 10, v7\nv_lshl_add_u32 v9, v4, 3, v7\nv_cmp_gt_u32 vcc, 2, v4\nv_cndmask_b32 v8, v6, v8, vcc\nv_cndmask_b32 v9, v6, v9, vcc")
    k(f"s_lshl_b32 s20, s8, 5\ns_lshl_b32 s21, s7, 1\ns_add_u32 s20, s20, s21\ns_lshl_b32 s20, s20, 10\ns_add_u32 s20, s20, {PQ}")
    k(f"s_lshl_b32 s21, s8, 4\ns_add_u32 s21, s21, s7\ns_lshl_b32 s21, s21, 8\ns_add_u32 s21, s21, {PQL}")
    k(f"s_mul_i32 s22, s3, 3840\ns_add_u32 s22, s22, {ROWS}\nv_mul_u32_u24 v10, 240, v3\nv_add_u32 v10, s22, v10")
    k("v_mul_u32_u24 v11, 80, v4\nv_add_u32 v11, v11, v10\nv_subrev_u32 v11, 160, v11")
    k("v_lshl_add_u32 v12, v4, 3, v10\nv_mul_u32_u24 v13, 40, v4\nv_add_u32 v13, v13, v10")
    k(f"s_mov_b32 s24, {LOG2E}\ns_mov_b32 s25, {LOG2E | 0x80000000}")
    k("s_cmp_ge_u32 s3, 3\ns_cselect_b32 s26, 1, 0\ns_mul_i32 s27, s26, 3\ns_sub_u32 s27, s3, s27")
    k(f"s_mul_i32 s28, s26, 80\ns_lshl_b32 s29, s27, 3\ns_cmp_lt_u32 s27, 2\ns_cselect_b32 s29, s29, 64\ns_cselect_b32 s30, 16, 0\ns_add_u32 s28, s28, s29\ns_add_u32 s28, s28, {ROWS}")
    k(f"s_mul_i32 s29, s26, 40\ns_add_u32 s29, s29, {ROWS+160}")
    k("v_lshrrev_b32 v7, 2, v3\nv_and_b32 v10, 3, v3\nv_lshl_add_u32 v7, v4, 3, v7\nv_mul_u32_u24 v7, 240, v7")
    k("v_mul_u32_u24 v124, s30, v10\nv_add3_u32 v124, v124, v7, s28")
    k("v_add_u32 v126, s29, v7\nv_lshl_add_u32 v125, v10, 3, v126")
    k(f"s_lshl_b32 s31, s7, 4\ns_add_u32 s31, s31, s6\ns_mul_i32 s31, s31, 6400\ns_mul_i32 s32, s26, 3200\ns_add_u32 s31, s31, s32\ns_add_u32 s31, s31, {KVP}")
    def reads(ks):
        out = []
        for t in range(7):
            off = (ks*7 + t) * 1024
            base = "v5" if off < 65536 else "v14"
            out.append(f"ds_read_b128 {V(WB+28*(ks%2)+4*t,4)}, {base} offset:{off % 65536}")
        return out
    def mfmas(ks):
        return [MF(V(AC+4*t, 4), V(WB+28*(ks%2)+4*t,4), V(XR+4*(ks%NX),4), V(AC+4*t, 4) if ks else "0") for t in range(7)]
    k("v_add_u32 v14, 0x10000, v5")
    nbar = 0
    def bar(upto):
        nonlocal nbar
        k.wait_vm(f"D{(7*min(upto, 17) + 6) // 8}"); k("s_barrier"); nbar += 1
    bar(0)
    k.stamp(1)
    for o in reads(0): k(o)
    for ks in range(18):
        if ks % GB == 0 and ks + 1 < 18: bar(ks + GB)
        if ks == 8: k.stamp(2)
        if ks == int(os.environ.get('A1T', 16)) and 'a1t' in OPT: k("buffer_load_dword v15, v127, s[44:47], s48 offen")
        R = reads(ks + 1) if ks + 1 < 18 else []
        L = ld(ks + LA)
        M = mfmas(ks)
        for o in R[:2]: k(o)
        R = R[2:]
        for i, m in enumerate(M):
            k(m)
            if R: k(R.pop(0))
            if L and i >= 2: o, t = L.pop(0); k(o, tag=t)
        for o, t in L: k(o, tag=t)
    k.stamp(3)
    A = lambda i: f"v{AC+i}"
    k(f"v_cvt_pk_bf16_f32 v{VV}, {A(20)}, {A(21)}\nv_cvt_pk_bf16_f32 v{VV+1}, {A(22)}, {A(23)}\nv_cvt_pk_bf16_f32 v{VV+2}, {A(24)}, {A(25)}\nv_cvt_pk_bf16_f32 v{VV+3}, {A(26)}, {A(27)}")
    k(f"v_cvt_pk_bf16_f32 v{VV+4}, {A(18)}, {A(19)}\nv_mov_b32 v{VV+5}, 0x3f80")
    k(f"ds_write_b64 v12, {V(VV,2)} offset:160\nds_write_b64 v12, {V(VV+2,2)} offset:200")
    k(f"s_mov_b64 exec, 0xffffffff\nds_write_b64 v13, {V(VV+4,2)} offset:192\ns_mov_b64 exec, -1")
    k(f"v_max3_f32 v84, {A(0)}, {A(1)}, {A(2)}\nv_min3_f32 v85, {A(0)}, {A(1)}, {A(2)}")
    for j in range(7): k(f"v_max3_f32 v84, v84, {A(3+2*j)}, {A(4+2*j)}\nv_min3_f32 v85, v85, {A(3+2*j)}, {A(4+2*j)}")
    k(f"v_max_f32 v84, v84, {A(17)}\nv_min_f32 v85, v85, {A(17)}")
    k("v_mul_f32 v86, s25, v84\nv_mul_f32 v87, s24, v85")
    for f in range(18):
        k(f"v_fma_f32 v{EP+f}, {A(f)}, s24, v86\nv_fma_f32 {A(f)}, {A(f)}, s25, v87")
        k(f"v_exp_f32 v{EP+f}, v{EP+f}\nv_exp_f32 {A(f)}, {A(f)}")
        if f == 1: k(f"v_add_f32 v84, v{EP}, v{EP+1}\nv_add_f32 v85, {A(0)}, {A(1)}")
        if f >= 2: k(f"v_add_f32 v84, v84, v{EP+f}\nv_add_f32 v85, v85, {A(f)}")
    k("v_rcp_f32 v84, v84\nv_rcp_f32 v85, v85")
    for j in range(9):
        k(f"v_mul_f32 v{EP+2*j}, v{EP+2*j}, v84\nv_mul_f32 v{EP+1+2*j}, v{EP+1+2*j}, v84\nv_cvt_pk_bf16_f32 v{PK+j}, v{EP+2*j}, v{EP+1+2*j}")
    for j in range(9):
        k(f"v_mul_f32 {A(2*j)}, {A(2*j)}, v85\nv_mul_f32 {A(2*j+1)}, {A(2*j+1)}, v85\nv_cvt_pk_bf16_f32 v{PK+9+j}, {A(2*j)}, {A(2*j+1)}")
    k("s_mov_b32 exec_lo, 0")
    for j in range(4): k(f"ds_write_b128 v11, {V(PK+4*j,4)} offset:{16*j}")
    k(f"ds_write_b64 v11, {V(PK+16,2)} offset:64")
    k("s_mov_b32 exec_lo, -1")
    for j in range(4): k(f"buffer_store_dwordx4 {V(PK+4*j,4)}, v8, s[16:19], s20 offen offset:{256*j}")
    k(f"buffer_store_dwordx2 {V(PK+16,2)}, v9, s[16:19], s21 offen")
    k.stamp(4)
    k.wait_all(vm=False); k("s_barrier"); nbar += 1
    k.stamp(5)
    k("s_cmp_ge_u32 s3, 6\ns_cbranch_scc1 a1_end")
    FA, FB, FX, C0 = 16, 80, 96, 112
    for s in range(4):
        for h in range(2):
            o = (32*s + 4*h) * 240
            k(f"ds_read_b64_tr_b16 {V(FA+4*s+2*h,2)}, v124 offset:{o}\nds_read_b64_tr_b16 {V(FB+4*s+2*h,2)}, v125 offset:{o}\nds_read_b64_tr_b16 {V(FX+4*s+2*h,2)}, v126 offset:{o+32}")
    for s in range(4):
        k(MF("v[112:115]", V(FA+4*s,4), V(FB+4*s,4), "v[112:115]" if s else "0"))
        k(MF("v[116:119]", V(FA+4*s,4), V(FX+4*s,4), "v[116:119]" if s else "0"))
    k("s_cmp_eq_u32 s27, 2\ns_cbranch_scc1 a1_mt2")
    k("s_lshl_b32 s32, s27, 4\nv_lshl_add_u32 v41, v1, 5, s32")
    k("v_lshl_add_u32 v42, v3, 2, v4\nv_lshl_add_u32 v42, v42, 5, s32\nv_add_u32 v42, 2560, v42\nv_cmp_gt_u32 vcc, 4, v3\nv_cndmask_b32 v42, v6, v42, vcc")
    k("buffer_store_dwordx4 v[112:115], v41, s[16:19], s31 offen\nbuffer_store_dwordx4 v[116:119], v42, s[16:19], s31 offen")
    k("s_endpgm")
    k.label("a1_mt2")
    k("v_xor_b32 v43, s26, v4\nv_lshl_add_u32 v43, v3, 1, v43\nv_lshlrev_b32 v43, 4, v43")
    k("v_add_u32 v41, 2048, v43\nv_add_u32 v42, 3072, v43\nv_cmp_gt_u32 vcc, 2, v4\nv_cndmask_b32 v41, v6, v41, vcc\nv_cndmask_b32 v42, v6, v42, vcc")
    k("v_cmp_gt_u32 vcc, 4, v3\nv_cndmask_b32 v42, v6, v42, vcc")
    k("v_cmp_eq_u32 vcc, 0, v4\ns_nop 7")
    for j in range(8): k(f"v_cndmask_b32 v{112+j}, 0, v{112+j}, vcc")
    k("buffer_store_dwordx4 v[112:115], v41, s[16:19], s31 offen\nbuffer_store_dwordx4 v[116:119], v42, s[16:19], s31 offen")
    k("s_endpgm")
    if TW:
        k.label("a1_tw")
        T = []
        k("v_mov_b32 v6, 0x40000000\nv_add_u32 v7, 64, v1\nv_add_u32 v8, 128, v1\nv_lshlrev_b32 v9, 7, v1")
        n1 = (18*len(L1) + 63) // 64
        for j in range(n1): pf13_addr(k, 16 + j, ["v1", "v7", "v8"][j], 20, L1, 18, "v6")
        k(f"s_mul_i32 s54, s4, 1152\ns_mul_i32 s55, s5, {18*9216}\ns_add_u32 s54, s54, s55")
        k(f"s_mul_i32 s55, s4, 663552\ns_mul_i32 s56, s5, {162*128}\ns_add_u32 s55, s55, s56\ns_add_u32 s56, s55, 8192\ns_add_u32 s57, s55, 16384")
        k("v_cmp_gt_u32 vcc, 34, v1\nv_cndmask_b32 v10, v6, v9, vcc")
        k(f"s_mul_i32 s58, s5, {168*128}\ns_add_u32 s58, s58, {WOF}\ns_add_u32 s59, s58, 8192\ns_add_u32 s60, s58, 16384\nv_cmp_gt_u32 vcc, 40, v1\nv_cndmask_b32 v11, v6, v9, vcc")
        k("s_waitcnt lgkmcnt(0)")
        srd(k, 16, 12, WSSZ); srd(k, 48, 46, 5308416); srd(k, 20, 44, 5308416); srd(k, 24, 52, 5308416)
        for j in range(n1): T += [f"v{16+j}, s[20:23], s54", f"v{16+j}, s[48:51], s54"]
        if 'tw2' in OPT: T += ["v9, s[24:27], s55", "v9, s[24:27], s56", "v10, s[24:27], s57"]
        if 'wof' in OPT: T += ["v9, s[16:19], s58", "v9, s[16:19], s59", "v11, s[16:19], s60"]
        T0 = int(os.environ.get('TW0', 1))
        for b in range(nbar):
            if b == nbar - 1 and 'pc' in OPT: pf_code(k, "attn2_kernel", 124, 40)
            k("s_barrier")
            n = 0 if b < T0 else -(-len(T) // (nbar - 1 - b)) if b < nbar - 1 else len(T)
            for j in range(n): k(f"buffer_load_dword v{32 + len(T)}, {T.pop(0)} offen")
        assert not T
    k.label("a1_end")
    k("s_endpgm")
    return k

def a2():
    k = Kern("attn2_kernel", vgpr=128, lds=4096, block=512, grid=256)
    k("s_cmp_ge_u32 s2, 256\ns_cbranch_scc1 a2_end")
    k("s_load_dwordx2 s[12:13], s[0:1], 80")
    k("v_and_b32 v1, 63, v0\nv_lshrrev_b32 v2, 6, v0\nv_readfirstlane_b32 s3, v2")
    k("s_and_b32 s4, s2, 7\ns_lshr_b32 s5, s2, 3\ns_and_b32 s6, s4, 3\ns_lshl_b32 s6, s6, 2\ns_and_b32 s7, s5, 3\ns_add_u32 s6, s6, s7")
    k("s_lshr_b32 s7, s4, 2\ns_lshl_b32 s7, s7, 3\ns_lshr_b32 s5, s5, 2\ns_add_u32 s7, s7, s5")
    k("s_lshl_b32 s8, s6, 3\ns_add_u32 s8, s8, s3")
    k("v_mov_b32 v6, 0x40000000\nv_lshlrev_b32 v7, 4, v0\nv_cmp_gt_u32 vcc, 400, v0\nv_cndmask_b32 v7, v6, v7, vcc")
    k(f"s_mul_i32 s9, s7, 102400\ns_add_u32 s9, s9, {KVP}")
    srd(k, 16, 12, WSSZ)
    for j in range(16):
        k(f"buffer_load_dwordx4 {V(32+4*j,4)}, v7, s[16:19], s9 offen\ns_add_u32 s9, s9, 6400")
    k("v_and_b32 v3, 15, v1\nv_lshrrev_b32 v4, 4, v1\nv_lshlrev_b32 v5, 4, v1")
    k("v_cmp_eq_u32 vcc, 0, v4\nv_cndmask_b32 v8, v6, v5, vcc")
    k(f"s_lshl_b32 s20, s8, 5\ns_lshl_b32 s21, s7, 1\ns_add_u32 s20, s20, s21\ns_lshl_b32 s20, s20, 10\ns_add_u32 s20, s20, {PQ}")
    k(f"s_lshl_b32 s21, s8, 4\ns_add_u32 s21, s21, s7\ns_lshl_b32 s21, s21, 8\ns_add_u32 s21, s21, {PQL}")
    k("buffer_load_dwordx4 v[96:99], v5, s[16:19], s20 offen\nbuffer_load_dwordx4 v[100:103], v5, s[16:19], s20 offen offset:1024\nbuffer_load_dwordx4 v[104:107], v8, s[16:19], s21 offen")
    if 'pc' in OPT: pf_code(k, "attn3_kernel", 110, 40)
    for o in OPT:
        if o.startswith('a2w'): pf_w(k, o[3:], 112, 44); k("v_cmp_eq_u32 vcc, 0, v4")
    k("v_mov_b32 v9, 1472\nv_add_u32 v10, 1024, v5\nv_cndmask_b32 v10, v9, v10, vcc")
    k("v_and_b32 v11, 3, v3\nv_lshl_add_u32 v12, v11, 2, v4\nv_lshlrev_b32 v12, 4, v12\nv_lshlrev_b32 v11, 4, v11\nv_add_u32 v11, 1536, v11\nv_cndmask_b32 v11, v9, v11, vcc")
    k("v_lshlrev_b32 v13, 3, v0")
    k(f"s_mul_i32 s22, s8, 18\ns_add_u32 s23, s22, s7\ns_lshl_b32 s23, s23, 10\ns_add_u32 s23, s23, {OF}")
    k(f"s_lshr_b32 s24, s7, 3\ns_add_u32 s22, s22, s24\ns_lshl_b32 s22, s22, 10\ns_bfe_u32 s24, s7, 0x20001\ns_lshl_b32 s24, s24, 8\ns_add_u32 s22, s22, s24\ns_and_b32 s24, s7, 1\ns_lshl_b32 s24, s24, 3\ns_add_u32 s22, s22, s24\ns_add_u32 s22, s22, {OF + 16384}")
    for c in range(4): k(f"v_add_f32 v{32+c}, v{32+c}, v{36+c}")
    for j in range(2, 16):
        for c in range(4): k(f"v_add_f32 v{32+c}, v{32+c}, v{32+4*j+c}")
    k("v_cvt_pk_bf16_f32 v32, v32, v33\nv_cvt_pk_bf16_f32 v33, v34, v35\nds_write_b64 v13, v[32:33]")
    k.stamp(1)
    k.wait_all(vm=False); k("s_barrier")
    k.stamp(2)
    for hh in range(2):
        b = 40 + 16*hh; o = 1600*hh
        k(f"ds_read_b128 {V(b,4)}, v5 offset:{o}\nds_read_b128 {V(b+4,4)}, v12 offset:{o+1280}\nds_read_b128 {V(b+8,4)}, v10 offset:{o}\nds_read_b128 {V(b+12,4)}, v11 offset:{o}")
    for hh in range(2):
        b = 40 + 16*hh; c = 72 + 8*hh; pq = V(96+4*hh, 4)
        k(MF(V(c,4), V(b,4), pq, "0")); k(MF(V(c+4,4), V(b+4,4), pq, "0"))
    for hh in range(2):
        b = 40 + 16*hh; c = 72 + 8*hh
        k(MF(V(c,4), V(b+8,4), "v[104:107]", V(c,4))); k(MF(V(c+4,4), V(b+12,4), "v[104:107]", V(c+4,4)))
    for hh in range(2):
        c = 72 + 8*hh
        bf16r(k, f"v{c+6}", f"v{c+6}")
        k(f"v_add_f32 v{c+6}, 0x358637bd, v{c+6}")
        bf16r(k, f"v{c+6}", f"v{c+6}")
        k(f"v_rcp_f32 v{c+6}, v{c+6}")
    for hh in range(2):
        c = 72 + 8*hh
        for j in range(6): k(f"v_mul_f32 v{c+j}, v{c+j}, v{c+6}")
        k(f"v_cvt_pk_bf16_f32 v{88+2*hh}, v{c}, v{c+1}\nv_cvt_pk_bf16_f32 v{89+2*hh}, v{c+2}, v{c+3}\nv_cvt_pk_bf16_f32 v{92+hh}, v{c+4}, v{c+5}")
    k("buffer_store_dwordx4 v[88:91], v5, s[16:19], s23 offen\nbuffer_store_dwordx2 v[92:93], v8, s[16:19], s22 offen")
    k.label("a2_end")
    k("s_endpgm")
    return k

def a3():
    XO = 40960; MO = XO + 10240
    LA = int(os.environ.get('A3LA', 4))
    k = Kern("attn3_kernel", vgpr=256, lds=MO + 128, block=320, grid=256)
    k("s_cmp_ge_u32 s2, 256\ns_cbranch_scc1 a3_end")
    k("s_load_dwordx2 s[12:13], s[0:1], 80\ns_load_dwordx2 s[4:5], s[0:1], 0")
    k("v_and_b32 v1, 63, v0\nv_lshrrev_b32 v2, 6, v0\nv_readfirstlane_b32 s3, v2")
    k("v_lshlrev_b32 v5, 4, v1")
    k("s_bfe_u32 s7, s2, 0x20003\ns_and_b32 s6, s2, 3\ns_lshl_b32 s6, s6, 1\ns_bfe_u32 s38, s2, 0x10002\ns_add_u32 s6, s6, s38\ns_lshl_b32 s6, s6, 3\ns_lshr_b32 s8, s2, 5\ns_add_u32 s6, s6, s8")
    k(f"s_lshl_b32 s9, s3, 10\ns_mul_i32 s10, s6, 36864\ns_add_u32 s10, s10, s9\ns_add_u32 s10, s10, {OF}")
    k("v_and_b32 v3, 15, v1\nv_lshrrev_b32 v4, 4, v1\nv_mov_b32 v6, 0x40000000")
    k("s_and_b32 s14, s7, 1\ns_lshl_b32 s15, s3, 1\ns_add_u32 s15, s15, s14")
    k("s_xor_b32 s24, s14, 1\ns_lshl_b32 s24, s24, 3\ns_cmp_lt_u32 s3, 4\ns_cselect_b32 s15, s15, s24")
    k("s_mul_i32 s24, s7, 9\ns_add_u32 s24, s24, s15\ns_add_u32 s25, s24, 1\ns_cmp_lt_u32 s3, 4\ns_cselect_b32 s25, s25, 36")
    k(f"s_mul_i32 s26, s24, 18432\ns_add_u32 s26, s26, {WOF}\ns_mul_i32 s27, s25, 18432\ns_add_u32 s27, s27, {WOF}")
    k("s_cmp_lt_u32 s3, 4\ns_cselect_b32 s28, 16, 2\nv_cmp_gt_u32 vcc, s28, v3\nv_cndmask_b32 v10, v6, v5, vcc")
    srd(k, 16, 12, WSSZ)
    for i in (0, 4, 1, 3, 5, 2, 6, 7):
        k(f"s_add_u32 m0, s9, {5120*i}\ns_add_u32 s8, s10, {5120*i}\nbuffer_load_dwordx4 v5, s[16:19], s8 offen lds", tag="DO")
    st = dict(w=0)
    def ldw(upto):
        while st['w'] <= min(upto, 17):
            ks = st['w']
            k(f"buffer_load_dwordx4 {V(64+8*ks,4)}, v5, s[16:19], s26 offen offset:{1024*(ks%4)}\nbuffer_load_dwordx4 {V(68+8*ks,4)}, v10, s[16:19], s27 offen offset:{1024*(ks%4)}")
            if ks % 4 == 3: k("s_add_u32 s26, s26, 4096\ns_add_u32 s27, s27, 4096")
            st['w'] += 1
    ldw(LA - 1)
    srd(k, 20, 4, 2359296)
    k("s_mul_i32 s11, s6, 36864\ns_mul_i32 s14, s7, 288\ns_add_u32 s11, s11, s14")
    for r in range(2):
        k(f"v_add_u32 v7, {320*r}, v0\nv_mul_u32_u24 v8, 3641, v7\nv_lshrrev_b32 v8, 16, v8\nv_mul_u32_u24 v9, 18, v8\nv_sub_u32 v9, v7, v9\nv_mul_u32_u24 v8, 1152, v8\nv_lshl_add_u32 v{232+r}, v9, 4, v8")
    k(f"v_lshlrev_b32 v11, 2, v3\ns_lshl_b32 s29, s6, 7\ns_add_u32 s29, s29, {MX}")
    def ldx():
        for r in range(2): k(f"s_add_u32 m0, s9, {XO + 5120*r}\nbuffer_load_dwordx4 v{232+r}, s[20:23], s11 offen lds", tag="DX")
        k("buffer_load_dword v12, v11, s[16:19], s29 offen\nbuffer_load_dword v13, v11, s[16:19], s29 offen offset:64")
    k(f"v_mul_u32_u24 v14, 288, v3\nv_lshl_add_u32 v14, v4, 3, v14\ns_lshl_b32 s30, s15, 5\ns_add_u32 s30, s30, {XO}\nv_add_u32 v14, s30, v14")
    k(f"v_add_u32 v15, {MO}, v11")
    k(f"s_lshl_b32 s32, s6, 1\ns_mul_i32 s32, s32, 18\ns_lshr_b32 s33, s24, 1\ns_add_u32 s32, s32, s33\ns_lshl_b32 s32, s32, 10\ns_add_u32 s33, s32, {HR}\ns_add_u32 s32, s32, {HC}")
    k("s_add_u32 s34, s32, 18432\ns_add_u32 s35, s33, 18432")
    k("s_mov_b32 s31, 0xffff0000")
    k.stamp(1)
    k.wait_vm("DO"); k("s_barrier")
    k.stamp(2)
    def rd(ks):
        k(f"ds_read_b128 {V(16+8*(ks%3),4)}, v5 offset:{ks*1024}\nds_read_b128 {V(20+8*(ks%3),4)}, v5 offset:{(18+ks)*1024}")
    rd(0); rd(1)
    XS = int(os.environ.get('A3XS', 6))
    for ks in range(18):
        if ks + 2 < 18: rd(ks + 2)
        ldw(ks + LA)
        if ks == XS: ldx()
        if ks == 14 and 'pc' in OPT: pf_code(k, "ffn_kernel", 240, 40)
        for t in (1, 0):
            for tt in range(2):
                c = V(40 + 8*tt + 4*t, 4)
                k(MF(c, V(64+8*ks+4*t,4), V(16+8*(ks%3)+4*tt,4), c if ks else "0"))
    k.stamp(3)
    k("s_cmp_lt_u32 s3, 4\ns_cbranch_scc1 a3_nomean")
    k.skip_begin()
    for tt in range(2):
        k(f"v_add_f32 v{44+8*tt}, v{44+8*tt}, v{45+8*tt}\nv_add_f32 v{44+8*tt}, v{44+8*tt}, v{12+tt}")
        bf16r(k, f"v{44+8*tt}", f"v{44+8*tt}")
    k("s_mov_b64 exec, 0xffff\nds_write_b32 v15, v44\nds_write_b32 v15, v52 offset:64\ns_mov_b64 exec, -1")
    k.wait_all(vm=False)
    k.skip_end("a3_nomean")
    k.wait_vm("DX")
    k("s_barrier")
    k.stamp(4)
    for tt in range(2):
        for t in range(2): k(f"ds_read_b64 {V(208+4*tt+2*t,2)}, v14 offset:{tt*4608+32*t}")
    k("ds_read_b32 v12, v15\nds_read_b32 v13, v15 offset:64")
    for tt in range(2):
        for t in range(2):
            for hf in range(2):
                c = 40 + 8*tt + 4*t + 2*hf
                k(f"v_cvt_pk_bf16_f32 v{c+1}, v{c}, v{c+1}\nv_lshlrev_b32 v{c}, 16, v{c+1}\nv_and_b32 v{c+1}, s31, v{c+1}")
    for tt in range(2):
        for t in range(2):
            for hf in range(2):
                c = 40 + 8*tt + 4*t + 2*hf; xr = 208 + 4*tt + 2*t + hf; ho = 216 + 4*tt + 2*t + hf; co = 224 + 4*tt + 2*t + hf
                k(f"v_lshlrev_b32 v58, 16, v{xr}\nv_and_b32 v59, s31, v{xr}\nv_add_f32 v{c}, v{c}, v58\nv_add_f32 v{c+1}, v{c+1}, v59")
                k(f"v_cvt_pk_bf16_f32 v{ho}, v{c}, v{c+1}\nv_lshlrev_b32 v57, 16, v{ho}\nv_and_b32 v56, s31, v{ho}")
                k(f"v_sub_f32 v57, v57, v{12+tt}\nv_sub_f32 v56, v56, v{12+tt}\nv_cvt_pk_bf16_f32 v{co}, v57, v56")
    k.stamp(5)
    k("s_cmp_lt_u32 s3, 4\ns_cbranch_scc0 a3_single")
    k("buffer_store_dwordx4 v[224:227], v5, s[16:19], s32 offen\nbuffer_store_dwordx4 v[228:231], v5, s[16:19], s34 offen")
    k("buffer_store_dwordx4 v[216:219], v5, s[16:19], s33 offen\nbuffer_store_dwordx4 v[220:223], v5, s[16:19], s35 offen")
    k("s_endpgm")
    k.label("a3_single")
    k("s_and_b32 s37, s24, 1\ns_lshl_b32 s37, s37, 3\nv_add_u32 v10, s37, v5\ns_nop 1")
    k("buffer_store_dwordx2 v[224:225], v10, s[16:19], s32 offen\nbuffer_store_dwordx2 v[228:229], v10, s[16:19], s34 offen")
    k("buffer_store_dwordx2 v[216:217], v10, s[16:19], s33 offen\nbuffer_store_dwordx2 v[220:221], v10, s[16:19], s35 offen")
    k.label("a3_end")
    k("s_endpgm")
    return k

def kernels():
    return [k0(), a1(), a2(), a3(), k3(), k4()]

if __name__ == "__main__":
    if len(sys.argv) > 2: Kern.prof = 0
    ks = kernels()
    print(ks[4].log)
    out = sys.argv[1] if len(sys.argv) > 1 else "cur.s"
    if len(sys.argv) > 2:
        for i, k in enumerate(ks): k.prof = PROF + i * 0x100000
    build_file(ks, out)
    for k in ks: print(k.name, "nops", k.nnops, "waits", k.nwaits)
```

```python
XN   = 0x0000000
WF   = 0x0240000
WOF  = 0x0440000
MX   = 0x0500000
SSQ  = 0x0508000
KVP  = 0x0540000
PQL  = 0x06D0000
PQ   = 0x0800000
OF   = 0x0C00000
HC   = 0x0E80000
HR   = 0x1100000
PART = 0x1400000
XN2  = 0x3800000
PROF = 0x8000000
WSSZ = 0x10000000
INV  = 0x40000000
LOG2E = 0x3fb8aa3b

def srd(k, d, p, size):
    k(f"s_mov_b32 s{d}, s{p}\ns_mov_b32 s{d+1}, s{p+1}\ns_mov_b32 s{d+2}, {size}\ns_mov_b32 s{d+3}, 0x20000")

def bf16r(k, dst, src):
    k(f"v_cvt_pk_bf16_f32 {dst}, {src}, {src}\nv_lshlrev_b32 {dst}, 16, {dst}")

def V(a, n=1): return f"v{a}" if n == 1 else f"v[{a}:{a+n-1}]"
def A(a, n=1): return f"a{a}" if n == 1 else f"a[{a}:{a+n-1}]"
def MF(d, a, b, c): return f"v_mfma_f32_16x16x32_bf16 {d}, {a}, {b}, {c}"


CODE_SZ = {"attn1_kernel": 8192, "attn2_kernel": 4096, "attn3_kernel": 4096, "ffn_kernel": 40960, "red_kernel": 4096}
def pf_code(k, target, vt, st, nb=None, s3=None):
    nb = nb or CODE_SZ[target]
    n = (nb // 128 + 31) // 32
    lab = f"{k.name}_pc_{target}"
    s3 = st + 2 if s3 is None else s3
    k(f"s_getpc_b64 s[{st}:{st+1}]")
    k.raw(f"{lab}:")
    k(f"s_add_u32 s{st}, s{st}, {target}-{lab}\ns_addc_u32 s{st+1}, s{st+1}, 0")
    k(f"s_bfe_u32 s{s3}, s2, 0x50003\ns_mul_i32 s{s3}, s{s3}, {n*128}\nv_min_u32 v{vt}, {n-1}, v0\nv_lshlrev_b32 v{vt}, 7, v{vt}\nv_add_u32 v{vt}, s{s3}, v{vt}\nv_min_u32 v{vt}, {target}_codeend-{target}-4, v{vt}")
    k(f"global_load_dword v{vt+1}, v{vt}, s[{st}:{st+1}]")

def pf_w(k, which, vt, st, mod="", part=3):
    if part & 1: pf_w_setup(k, vt, st)
    if part & 2: pf_w_issue(k, which, vt, st, mod)
def pf_w_setup(k, vt, st):
    k(f"s_load_dwordx4 s[{st}:{st+3}], s[0:1], 40\ns_load_dwordx2 s[{st+8}:{st+9}], s[0:1], 56")
    k(f"v_mul_u32_u24 v{vt}, 7282, v0\nv_lshrrev_b32 v{vt}, 16, v{vt}\nv_mul_u32_u24 v{vt+1}, {9216-1152}, v{vt}\nv_lshl_add_u32 v{vt}, v0, 7, v{vt+1}\nv_lshlrev_b32 v{vt+1}, 7, v0")
    k(f"v_mov_b32 v{vt+2}, {INV}\nv_cmp_gt_u32 vcc, 162, v0\nv_cndmask_b32 v{vt}, v{vt+2}, v{vt}, vcc\nv_cndmask_b32 v{vt+1}, v{vt+2}, v{vt+1}, vcc")
    k(f"s_mov_b32 s{st+4}, s{st+2}\ns_mov_b32 s{st+5}, s{st+3}")
    for b in (0, 4, 8): k(f"s_mov_b32 s{st+b+2}, 5308416\ns_mov_b32 s{st+b+3}, 0x20000")
    k(f"s_and_b32 s{st+12}, s2, 7\ns_bfe_u32 s{st+13}, s2, 0x50003\ns_mul_i32 s{st+14}, s{st+13}, {18*9216}\ns_mul_i32 s{st+15}, s{st+12}, 1152\ns_add_u32 s{st+14}, s{st+14}, s{st+15}")
    k(f"s_mul_i32 s{st+15}, s{st+12}, 663552\ns_mul_i32 s{st+13}, s{st+13}, {162*128}\ns_add_u32 s{st+15}, s{st+15}, s{st+13}")
def pf_w_issue(k, which, vt, st, mod=""):
    if '1' in which: k(f"buffer_load_dword v{vt+3}, v{vt}, s[{st}:{st+3}], s{st+14} offen {mod}")
    if '3' in which: k(f"buffer_load_dword v{vt+4}, v{vt}, s[{st+4}:{st+7}], s{st+14} offen {mod}")
    if '2' in which: k(f"buffer_load_dword v{vt+5}, v{vt+1}, s[{st+8}:{st+11}], s{st+15} offen {mod}")

def pf13_addr(k, vd, vu, vt, L, rows, vinv):
    n = len(L); pack = sum(l << (4*i) for i, l in enumerate(L))
    k(f"v_mul_u32_u24 v{vd}, {65536 // n + 1}, {vu}\nv_lshrrev_b32 v{vd}, 16, v{vd}\nv_mul_u32_u24 v{vt}, {n}, v{vd}\nv_sub_u32 v{vt}, {vu}, v{vt}\nv_lshlrev_b32 v{vt}, 2, v{vt}")
    k(f"v_lshrrev_b32 v{vt}, v{vt}, {pack}".replace(f", {pack}", f", v{vt+1}").replace("v_lshrrev_b32", f"v_mov_b32 v{vt+1}, {pack}\nv_lshrrev_b32"))
    k(f"v_and_b32 v{vt}, 15, v{vt}\nv_mul_u32_u24 v{vd}, 9216, v{vd}\nv_lshl_add_u32 v{vd}, v{vt}, 7, v{vd}\nv_cmp_gt_u32 vcc, {rows*n}, {vu}\nv_cndmask_b32 v{vd}, {vinv}, v{vd}, vcc")
```

```python
import re, os

REG_RE = re.compile(r'\b([vas])(\d+)\b|\b([vas])\[(\d+):(\d+)\]|\b(vcc|exec|m0|scc)\b|\b(vcc_lo|vcc_hi|exec_lo|exec_hi)\b')

def regs_of(op):
    out = []
    for m in REG_RE.finditer(op):
        if m.group(1): out.append((m.group(1), int(m.group(2))))
        elif m.group(3):
            out += [(m.group(3), i) for i in range(int(m.group(4)), int(m.group(5)) + 1)]
        elif m.group(6): out.append((m.group(6), 0))
        elif m.group(7): out.append((m.group(7)[:-3], 0))
    return out

def split_ops(s):
    ops = []; depth = 0; cur = ''
    for ch in s:
        if ch == '[': depth += 1
        if ch == ']': depth -= 1
        if ch == ',' and depth == 0:
            ops.append(cur.strip()); cur = ''
        else: cur += ch
    if cur.strip(): ops.append(cur.strip())
    return ops

TRANS = ('v_exp_f32', 'v_log_f32', 'v_rcp_f32', 'v_rsq_f32', 'v_sqrt_f32', 'v_sin_f32', 'v_cos_f32', 'v_rcp_iflag_f32')
NODST_S = ('s_cmp', 's_cbranch', 's_branch', 's_waitcnt', 's_barrier', 's_nop', 's_endpgm', 's_setprio', 's_sleep', 's_bitcmp')

class Ins:
    __slots__ = ('text', 'op', 'cls', 'wr', 'rd', 'tag', 'srcc', 'srcab', 'dpp', 'wide_store', 'data', 'cost', 'lds_dma', 'sgpr_rd', 'opt', 'meta')
    def __init__(self, text, tag=None):
        self.text = text; self.tag = tag; self.opt = False; self.meta = None
        t = text.split(';')[0].strip()
        sp = t.split(None, 1)
        self.op = op = sp[0]
        rest = sp[1] if len(sp) > 1 else ''
        ops = split_ops(rest)
        self.wr = []; self.rd = []; self.srcc = []; self.srcab = []; self.dpp = False
        self.wide_store = False; self.data = []; self.lds_dma = False
        R = [regs_of(o) for o in ops]
        allr = [r for x in R for r in x]
        if op.startswith('v_mfma'):
            self.cls = 'mfma'; self.wr = R[0]; self.srcab = R[1] + R[2]; self.srcc = R[3]; self.rd = self.srcab + self.srcc
        elif op.startswith('v_cmp'):
            self.cls = 'valu'; self.wr = R[0]; self.rd = [r for x in R[1:] for r in x]
        elif op.startswith('v_permlane') and 'swap' in op:
            self.cls = 'valu'; self.wr = allr; self.rd = allr
        elif op.startswith('v_'):
            self.cls = 'trans' if op.replace('_e32', '').replace('_e64', '') in TRANS else ('dot' if op.startswith('v_dot') else 'valu')
            self.wr = R[0]; self.rd = [r for x in R[1:] for r in x]
            if re.search(r'row_|quad_perm|wave_|bcast', rest):
                self.dpp = True; self.rd += R[0]
            if re.match(r'v_(fmac|mac|dot2c|dot4c|pk_fmac)', op) or 'op_sel' in rest and 'cvt' in op: self.rd += R[0]
            if op.startswith('v_cndmask') and len(ops) == 3: self.rd.append(('vcc', 0))
            if op.startswith('v_writelane'): self.rd += R[0]
        elif op.startswith('buffer_load') or op.startswith('global_load'):
            self.cls = 'vmem'
            if re.search(r'\blds\b', rest) or '_lds_' in op:
                self.lds_dma = True; self.rd = allr + [('m0', 0)]
            else:
                self.wr = R[0]; self.rd = [r for x in R[1:] for r in x]
                if 'd16' in op: self.rd += R[0]
        elif op.startswith('buffer_store') or op.startswith('global_store') or 'atomic' in op:
            self.cls = 'vmem'; self.rd = allr
            self.data = R[0] if op.startswith('buffer') else R[1]
            self.wide_store = 'x3' in op or 'x4' in op
            if 'atomic' in op and re.search(r'\bsc0\b', rest):
                self.wr = R[0]
        elif op.startswith('ds_'):
            self.cls = 'ds'
            if op.startswith('ds_write') or op.startswith('ds_add') or op.startswith('ds_max') :
                self.rd = allr
            else:
                self.wr = R[0]; self.rd = [r for x in R[1:] for r in x]
                if 'd16' in op: self.rd += R[0]
        elif op.startswith('s_load') or op.startswith('s_memtime') or op.startswith('s_memrealtime') or op.startswith('s_buffer_load'):
            self.cls = 'smem'; self.wr = R[0]; self.rd = [r for x in R[1:] for r in x]
        elif op.startswith('s_'):
            self.cls = 'salu'
            if op.startswith(NODST_S): self.rd = allr
            else:
                self.wr = R[0]; self.rd = [r for x in R[1:] for r in x]
                if 'saveexec' in op: self.wr = self.wr + [('exec', 0)]; self.rd += [('exec', 0)]
        else:
            raise ValueError('unknown op ' + text)

class Kern:
    def __init__(self, name, vgpr=256, agpr=0, lds=0, block=256, grid=256):
        self.name = name; self.items = []; self.vgpr = vgpr; self.agpr = agpr; self.lds = lds; self.block = block; self.grid = grid
    def __call__(self, text, tag=None):
        for line in text.strip().split('\n'):
            line = line.strip()
            if not line or line.startswith(';'): continue
            self.items.append(Ins(line, tag))
    def add(self, ins): self.items.append(ins)
    def label(self, name, reset=True): self.items.append(('label', name, reset))
    def wait_vm(self, tag): self.items.append(('waitvm', tag))
    def wait_lg(self, tag): self.items.append(('waitlg', tag))
    def wait_both(self, vtag, ltag): self.items.append(('waitboth', vtag, ltag))
    def wait_all(self, vm=True, lgkm=True): self.items.append(('waitall', vm, lgkm))
    def skip_begin(self): self.items.append(('skipb',))
    def skip_end(self, label): self.items.append(('skipe', label))
    def raw(self, text): self.items.append(('raw', text))
    prof = None
    def stamp(self, n):
        if self.prof is not None:
            import os
            op = 's_memtime' if os.environ.get('CYC') else 's_memrealtime'
            self.items.append(('raw', f'  {op} s[{84+2*n}:{85+2*n}]'))

    def finalize(self):
        out = []
        t = 0
        vmq = []; lgq = []; smem = set()
        lastw = {}
        cread = {}
        sdata = {}
        skip_stack = []
        self.nnops = 0; self.nwaits = 0
        def emit(s):
            out.append('  ' + s)
        def do_wait(vm=None, lg=None):
            nonlocal t, vmq, lgq, smem
            parts = []
            if vm is not None:
                n = sum(1 for e in vmq[vm + 1:] if not e[2])
                parts.append(f'vmcnt({min(n, 63)})')
                vmq = vmq[vm + 1:]
            if lg is not None:
                if lg == 'all' or smem:
                    parts.append('lgkmcnt(0)'); lgq = []; smem = set()
                else:
                    n = sum(1 for e in lgq[lg + 1:] if not e[2])
                    parts.append(f'lgkmcnt({min(n, 15)})')
                    lgq = lgq[lg + 1:]
            if parts:
                emit('s_waitcnt ' + ' '.join(parts)); t += 1; self.nwaits += 1
        pend_wait = None
        for it in self.items:
            if isinstance(it, tuple):
                k = it[0]
                if k == 'label':
                    out.append(f'{it[1]}:')
                    if it[2]:
                        vmq = []; lgq = []; smem = set(); lastw = {}; cread = {}; sdata = {}
                elif k == 'waitvm':
                    idx = [i for i, e in enumerate(vmq) if e[1] == it[1]]
                    if idx: do_wait(vm=idx[-1])
                elif k == 'waitlg':
                    idx = [i for i, e in enumerate(lgq) if e[1] == it[1]]
                    if idx: do_wait(lg=idx[-1])
                elif k == 'waitboth':
                    idx = [i for i, e in enumerate(vmq) if e[1] in it[1]]
                    do_wait(vm=(idx[-1] if idx else None), lg=('all' if (lgq or smem) else None))
                elif k == 'waitall':
                    do_wait(vm=(len(vmq) - 1 if (it[1] and vmq) else None), lg=('all' if (it[2] and (lgq or smem)) else None))
                elif k == 'skipb':
                    skip_stack.append((t, list(vmq), list(lgq), set(smem)))
                elif k == 'skipe':
                    t0, sv, sl, ss = skip_stack.pop()
                    d = t - t0
                    for r in list(lastw):
                        if lastw[r][0] < t0: lastw[r] = (lastw[r][0] + d,) + lastw[r][1:]
                    for dd in (cread, sdata):
                        for r in list(dd):
                            if dd[r] < t0: dd[r] += d
                    nv = [e for e in vmq if not any(e is x for x in sv)]
                    nl = [e for e in lgq if not any(e is x for x in sl)]
                    for e in nv + nl: e[2] = True
                    vmq = sv + nv; lgq = sl + nl; smem = smem | ss
                    out.append(f'{it[1]}:')
                elif k == 'raw':
                    out.append(it[1])
                continue
            I = it
            touched = set(I.rd) | set(I.wr)
            vm = None; lg = None
            for i, e in enumerate(vmq):
                if e[0] & touched: vm = i
            for i, e in enumerate(lgq):
                if e[0] & touched: lg = i
            if smem & touched: lg = 'all'
            if vm is not None or lg is not None: do_wait(vm, lg)
            need = 0
            def req(tp, n):
                nonlocal need
                need = max(need, n - (t - tp - 1))
            isvalu = I.cls in ('valu', 'trans', 'dot')
            for r in I.rd:
                if r in lastw:
                    tp, pc, P = lastw[r]
                    pv = pc in ('valu', 'trans', 'dot')
                    if pc == 'mfma':
                        if I.cls == 'mfma':
                            if r in I.srcab: req(tp, 8)
                            elif P.wr == I.srcc: pass
                            else: req(tp, 6)
                        else: req(tp, 8)
                    if pv and r[0] in 'va':
                        if I.cls == 'mfma': req(tp, 2)
                        if I.dpp: req(tp, 2)
                        if I.op.startswith('v_permlane'): req(tp, 2)
                        if I.op.startswith('v_readlane') or I.op.startswith('v_readfirstlane'): req(tp, 1)
                        if pc == 'trans' and (I.cls != 'trans'): req(tp, 1)
                        if pc == 'dot' and P.op != I.op: req(tp, 3)
                        if 'op_sel' in P.text or 'sdwa' in P.text: req(tp, 1)
                    if pv and r[0] in ('s', 'vcc', 'exec'):
                        if I.cls == 'vmem': req(tp, 5)
                        if isvalu or I.cls == 'mfma': req(tp, 5 if (r[0] == 'exec') else 2)
                        if I.cls in ('salu', 'smem', 'ds'): req(tp, 2)
                    if r[0] == 'm0' and pc == 'salu' and I.lds_dma: req(tp, 1)
            for r in I.wr:
                if r in lastw and lastw[r][1] == 'mfma' and not (I.cls == 'mfma' and lastw[r][2].wr == I.wr):
                    req(lastw[r][0], 8)
                if r in lastw and lastw[r][1] == 'dot' and I.op != lastw[r][2].op: req(lastw[r][0], 3)
                if isvalu and r in cread: req(cread[r], 3)
                if r in sdata: req(sdata[r], 2)
            if need > 0:
                while need > 0:
                    n = min(need, 16); emit(f's_nop {n - 1}'); t += n; need -= n; self.nnops += 1
            emit(I.text)
            if I.op == 's_nop': t += int(I.text.split()[1]) + 1
            else: t += 1
            tt = t - 1
            if I.op == 's_waitcnt':
                m = re.search(r'vmcnt\((\d+)\)', I.text)
                if m and int(m.group(1)) == 0: vmq = []
                m = re.search(r'lgkmcnt\((\d+)\)', I.text)
                if m and int(m.group(1)) == 0: lgq = []; smem = set()
            for r in I.wr: lastw[r] = (tt, I.cls, I)
            if I.cls == 'mfma':
                for r in I.srcc: cread[r] = tt
            if I.wide_store:
                for r in I.data: sdata[r] = tt
            if I.cls == 'vmem': vmq.append([set(I.wr), I.tag, False])
            elif I.cls == 'ds': lgq.append([set(I.wr), I.tag, False])
            elif I.cls == 'smem': smem |= set(I.wr)
        return out

    def align(self, body):
        mode = os.environ.get('ALIGN', '0')
        if mode == '0': return body
        import subprocess
        idx = [i for i, l in enumerate(body) if l.startswith('  ')]
        src = "\n".join(re.sub(r'[A-Za-z_][A-Za-z_0-9]*_(kernel|codeend|pc_\w+)\S*', '0x12345', body[i]) if ('_kernel' in body[i] and 'branch' not in body[i]) else re.sub(r'(s_c?branch\w*)\s+\S+', r'\1 4', body[i]) for i in idx)
        r = subprocess.run(['llvm-mc', '-triple=amdgcn-amd-amdhsa', '-mcpu=gfx950', '-show-encoding'], input=src, capture_output=True, text=True)
        assert r.returncode == 0, r.stderr[:2000]
        enc = [l for l in r.stdout.split('\n') if 'encoding:' in l]
        assert len(enc) == len(idx), (len(enc), len(idx))
        size = {i: e.split('encoding:')[1].count(',') + 1 for i, e in zip(idx, enc)}
        e32 = {i: e.split()[0].endswith('_e32') for i, e in zip(idx, enc)}
        out = []; off = 4 if mode == '-1' else 0; run = []; self.nal = [0, 0, 0]
        for i, l in enumerate(body):
            if i not in size:
                out.append(l); continue
            if size[i] == 4:
                if e32[i] and not re.search(r'_e32|_e64', l.split()[0]): run.append(len(out))
                out.append(l); off += 4; continue
            if off % 8:
                if run:
                    j = run[-1]; t = out[j].split(None, 1); out[j] = f"  {t[0]}_e64 {t[1]}"; off += 4; self.nal[0] += 1
                elif mode in ('1', '-1') or (mode == '2' and 'mfma' in l):
                    out.append('  s_nop 0'); off += 4; self.nal[1] += 1
                else: self.nal[2] += 1
            run = []
            out.append(l); off += size[i]
        print(self.name, 'align: widened, nops, left', self.nal)
        return out

    pads = None
    def add_pads(self, body):
        PADB, S = self.pads
        import subprocess
        lines = []
        for l in body: lines += l.split('\n')
        body = lines
        idx = [i for i, l in enumerate(body) if l.startswith('  ') and l.strip()]
        src = "\n".join(re.sub(r'[A-Za-z_][A-Za-z_0-9]*_(kernel|codeend|pc_\w+)\S*', '0x12345', body[i]) if ('_kernel' in body[i] and 'branch' not in body[i]) else re.sub(r'(s_c?branch\w*)\s+\S+', r'\1 4', body[i]) for i in idx)
        r = subprocess.run(['llvm-mc', '-triple=amdgcn-amd-amdhsa', '-mcpu=gfx950', '-show-encoding'], input=src, capture_output=True, text=True)
        assert r.returncode == 0, r.stderr[:2000]
        enc = [l for l in r.stdout.split('\n') if 'encoding:' in l]
        assert len(enc) == len(idx), (len(enc), len(idx))
        size = {i: e.split('encoding:')[1].count(',') + 1 for i, e in zip(idx, enc)}
        def load(i):
            if 'v_mfma' not in body[i]: return 9
            n = 0; j = i + 1
            while j < len(body) and 'v_mfma' not in body[j] and n < 9:
                n += 2 if re.search(r'v_exp|v_rcp|v_sqrt|s_barrier|s_waitcnt|buffer_', body[j]) else 1; j += 1
            return n
        out = []; off = 0; pos = []; i = 0; n = len(body)
        while i < n:
            blk = off // PADB; j = i; o = off; cand = []
            while j < n:
                o2 = o + size.get(j, 0)
                if o2 + 4 <= (blk + 1) * PADB and j in size and not re.search(r's_getpc|s_endpgm|s_branch', body[j]): cand.append((load(j), j))
                if o2 >= (blk + 1) * PADB - 4: break
                o = o2; j += 1
            best = min(cand)[1] if cand else None
            while i < n:
                out.append(body[i]); off += size.get(i, 0)
                if i == best: pos.append(len(out)); out.append(None); off += 4
                i += 1
                if off // PADB != blk: break
        N = len(pos); self.npads = N
        starts = [c * N // S for c in range(S)]
        for q, p in enumerate(pos):
            tgt = f"{self.name}_wend" if (q + 1 == N or q + 1 in starts) else f"{self.name}_pad{q+1}"
            out[p] = (f"{self.name}_ws{starts.index(q)}:\n" if q in starts else "") + f"{self.name}_pad{q}:\n  s_cbranch_execz {tgt}"
        return out + [f"{self.name}_wend:", "  s_endpgm"]
    def text(self):
        body = self.finalize()
        if self.name.split('_')[0] in os.environ.get('SC1', '').split(','):
            body = [(l + ' sc1' if ('buffer_store' in l and 'sc1' not in l) else l) for l in body]
        if self.prof is not None:
            body = ['  s_mov_b64 s[%d:%d], 0' % (86+2*i, 87+2*i) for i in range(6)] + ['  %s s[84:85]' % ('s_memtime' if os.environ.get('CYC') else 's_memrealtime')] + [(f'  s_branch {self.name}_prof' if l.strip() == 's_endpgm' else l) for l in body]
            body += [f'{self.name}_prof:', '  s_waitcnt vmcnt(0) lgkmcnt(0)', '  %s s[98:99]' % ('s_memtime' if os.environ.get('CYC') else 's_memrealtime'), '  s_load_dwordx2 s[76:77], s[0:1], 80', '  s_mov_b64 exec, 1',
                     '  v_lshrrev_b32 v1, 6, v0', '  v_lshlrev_b32 v1, 6, v1', '  s_lshl_b32 s80, s2, 10', f'  s_add_u32 s80, s80, {self.prof}', '  s_mov_b32 s78, 0x10000000', '  s_mov_b32 s79, 0x20000', '  s_waitcnt lgkmcnt(0)']
            for i in range(8):
                body += [f'  v_mov_b32 v2, s{84+2*i}', f'  v_mov_b32 v3, s{85+2*i}', f'  buffer_store_dwordx2 v[2:3], v1, s[76:79], s80 offen offset:{8*i}', '  s_nop 1']
            body += ['  s_endpgm']
        body = self.align(body)
        if self.pads: body = self.add_pads(body); print(self.name, 'pads', self.npads)
        hdr = f".globl {self.name}\n.p2align 8\n.type {self.name},@function\n{self.name}:\n"
        nv = self.vgpr + self.agpr
        kd = f""".section .rodata,"a"
.p2align 6
.amdhsa_kernel {self.name}
  .amdhsa_next_free_vgpr {nv}
  .amdhsa_next_free_sgpr 102
  .amdhsa_accum_offset {self.vgpr}
  .amdhsa_group_segment_fixed_size 0
  .amdhsa_kernarg_size 88
  .amdhsa_user_sgpr_count 2
  .amdhsa_user_sgpr_kernarg_segment_ptr 1
  .amdhsa_system_sgpr_workgroup_id_x 1
.end_amdhsa_kernel
.text
"""
        return hdr + '\n'.join(body) + f'\n{self.name}_codeend:\n' + kd
    def launch_line(self):
        return f"; @launch kernel={self.name} grid=({self.grid},1,1) block=({self.block},1,1) lds={self.lds}"

def build_file(kerns, path, header=''):
    s = header + '\n'.join(k.launch_line() for k in kerns) + '\n'
    s += '.amdgcn_target "amdgcn-amd-amdhsa--gfx950"\n.text\n'
    seen = set()
    for k in kerns:
        if k.name in seen: continue
        seen.add(k.name); s += k.text()
    open(path, 'w').write(s)
    return s
```

```python
import sys
sys.path.insert(0, 'dev')
from asmlib import *

from wsmap import *
from gen3 import k3, k4
import os
OPT = set(os.environ.get('OPT', '').split(','))
L0 = [int(c) for c in os.environ.get('L0', '0156')]
L1 = [int(c) for c in os.environ.get('L1', '23478')]
LA2, LA2W, LA3, LA3W = [[int(c) for c in os.environ.get(n, '')] for n in ('LA2', 'LA2W', 'LA3', 'LA3W')]

def k0():
    BS = 288; RAW = 128*BS; IS = 1056; DUM = RAW + 24*IS
    k = Kern("prep_kernel", vgpr=256, lds=DUM + 16, block=256, grid=248)
    k("s_load_dwordx8 s[4:11], s[0:1], 0\ns_load_dwordx2 s[12:13], s[0:1], 80")
    k("s_getpc_b64 s[40:41]\nv_lshlrev_b32 v250, 5, v0\nv_min_u32 v250, prep_kernel_codeend-prep_kernel-64, v250\nglobal_load_dword v252, v250, s[40:41]")
    k("v_and_b32 v1, 63, v0\nv_lshrrev_b32 v2, 6, v0\nv_readfirstlane_b32 s3, v2")
    k("v_and_b32 v3, 15, v1\nv_lshrrev_b32 v4, 4, v1")
    k("v_lshlrev_b32 v5, 4, v1")
    k("v_mov_b32 v6, 0x40000000")
    k("s_cmp_ge_u32 s2, 96\ns_cbranch_scc1 prep_notw")
    k("s_lshr_b32 s29, s2, 4\ns_bfe_u32 s28, s2, 0x10003\ns_and_b32 s30, s2, 3\ns_lshl_b32 s30, s30, 1\ns_add_u32 s28, s28, s30\ns_and_b32 s30, s2, 4\ns_lshl_b32 s30, s30, 1\ns_add_u32 s28, s28, s30")
    k("v_mul_u32_u24 v7, 13108, v1\nv_lshrrev_b32 v7, 16, v7")
    k("v_mul_u32_u24 v8, 5, v7\nv_sub_u32 v8, v1, v8")
    k("v_mul_u32_u24 v9, 21846, v7\nv_lshrrev_b32 v9, 16, v9")
    k("v_mul_u32_u24 v10, 3, v9\nv_sub_u32 v10, v7, v10")
    k("v_mul_u32_u24 v9, 3456, v9\nv_mul_u32_u24 v10, 1152, v10\nv_lshlrev_b32 v8, 4, v8\nv_add3_u32 v7, v9, v10, v8")
    k("s_mul_i32 s30, s28, 72\ns_and_b32 s30, s30, 0xfffffff0\ns_mul_i32 s31, s29, 331776\ns_add_u32 s30, s30, s31\ns_mul_i32 s31, s3, 13824\ns_add_u32 s30, s30, s31")
    k(f"s_mul_i32 s32, s3, {IS}\ns_add_u32 s32, s32, {RAW}")
    k("v_lshlrev_b32 v8, 2, v0\ns_mul_i32 s33, s28, 1296")
    k("v_mov_b32 v20, 0\nv_mov_b32 v21, 0\nv_mov_b32 v22, 0\nv_mov_b32 v23, 0\nv_lshlrev_b32 v9, 4, v0")
    for i in range(9): k(f"ds_write_b128 v9, v[20:23] offset:{4096*i}")
    srd(k, 24, 8, 20736); srd(k, 20, 6, 1990656)
    k("buffer_load_dword v16, v8, s[24:27], s33 offen\nbuffer_load_dword v17, v8, s[24:27], s33 offen offset:1024")
    for i in range(6):
        k(f"s_add_u32 m0, s32, {4*IS*i}\nbuffer_load_dwordx4 v7, s[20:23], s30 offen lds\ns_add_u32 s30, s30, {16*3456}")
    srd(k, 16, 12, WSSZ)
    k("s_and_b32 s34, s28, 1\ns_lshl_b32 s34, s34, 2")
    k(f"v_mov_b32 v24, {DUM}")
    for rnd, (e, ad) in enumerate((("v0", 26), ("v25", 27))):
        if rnd: k("v_add_u32 v25, 256, v0")
        k(f"v_cmp_lt_u32 vcc, 161, {e}\nv_cndmask_b32_e64 v10, 0, 1, vcc")
        k(f"v_mul_u32_u24 v11, 162, v10\nv_sub_u32 v11, {e}, v11")
        k("v_mul_u32_u24 v12, 7282, v11\nv_lshrrev_b32 v12, 16, v12")
        k("v_mul_u32_u24 v13, 9, v12\nv_sub_u32 v13, v11, v13")
        k("v_mul_u32_u24 v14, 18, v10\nv_add3_u32 v14, v14, v12, s34")
        k("v_lshrrev_b32 v15, 1, v13\nv_lshlrev_b32 v15, 5, v15\nv_and_b32 v13, 1, v13\nv_lshl_add_u32 v15, v13, 2, v15\nv_lshl_add_u32 v15, v10, 3, v15")
        k(f"v_mul_u32_u24 v14, {BS}, v14\nv_add_u32 v{ad}, v14, v15\nv_add_u32 v{ad+2}, {40*BS+16}, v{ad}")
        if rnd: k(f"v_cmp_gt_u32 vcc, 324, v25\nv_cndmask_b32 v{ad}, v24, v{ad}, vcc\nv_cndmask_b32 v{ad+2}, v24, v{ad+2}, vcc")
    k("v_cmp_lt_u32 vcc, 17, v0\nv_cndmask_b32_e64 v10, 0, 1, vcc\nv_mul_u32_u24 v11, 18, v10\nv_sub_u32 v11, v0, v11")
    k("v_lshl_add_u32 v12, v10, 4, v11\nv_add_u32 v12, 80, v12\nv_lshl_add_u32 v13, v10, 2, v11\nv_add_u32 v13, 50, v13")
    k("v_cmp_gt_u32 vcc, 16, v11\nv_cndmask_b32 v12, v13, v12, vcc")
    k(f"v_add_u32 v13, s34, v0\nv_add_u32 v13, 80, v13\nv_mul_u32_u24 v13, {BS}, v13\nv_lshl_add_u32 v30, v12, 1, v13")
    k("v_cmp_gt_u32 vcc, 36, v0\nv_cndmask_b32 v30, v24, v30, vcc\nv_mov_b32 v31, 0x3f80")
    k.stamp(1)
    k.wait_all(vm=False); k("s_barrier")
    k("ds_write_b16 v30, v31\nds_write_b32 v26, v16\nds_write_b32 v28, v16\nds_write_b32 v27, v17\nds_write_b32 v29, v17")
    k("v_lshrrev_b32 v10, 2, v3\nv_and_b32 v11, 3, v3")
    k(f"v_lshl_add_u32 v12, v4, 3, v10\nv_mul_u32_u24 v12, {BS}, v12\nv_lshl_add_u32 v12, v11, 3, v12\ns_lshl_b32 s35, s3, 5\nv_add_u32 v12, s35, v12")
    k(f"v_mul_u32_u24 v13, 240, v11\nv_mul_u32_u24 v14, {2*IS}, v10\nv_lshl_add_u32 v13, v4, 4, v13\nv_add_u32 v13, v13, v14\nv_add_u32 v13, {RAW}, v13")
    k(f"s_mul_i32 s36, s28, 18\ns_mul_i32 s37, s29, 3\ns_add_u32 s36, s36, s37\ns_mul_i32 s36, s36, 7\ns_add_u32 s36, s36, s3\ns_lshl_b32 s36, s36, 10\ns_add_u32 s36, s36, {WF}")
    k(f"s_add_u32 s37, s36, 4096\ns_cmp_lt_u32 s3, 3\ns_cselect_b32 s37, s37, {INV}")
    k.stamp(2)
    k.wait_all(); k("s_barrier")
    k.stamp(3)
    def rdB(s):
        for ts in range(2):
            for h in range(2):
                k(f"ds_read_b64_tr_b16 {V(32+16*ts+4*s+2*h,2)}, v12 offset:{(32*s+4*h)*BS+128*ts}")
    def rdA(db, s):
        for hf in range(2): k(f"ds_read_b128 {V(64+32*db+16*hf+4*s,4)}, v13 offset:{db*8*IS+hf*IS+s*64}")
    for s in range(4): rdB(s); rdA(0, s)
    for db in range(1, 3):
        for s in range(4): rdA(db, s)
    for db in range(3):
        for s in range(4):
            for hf in range(2):
                for ts in range(2):
                    c = V(160+16*db+8*ts+4*hf, 4)
                    k(MF(c, V(64+32*db+16*hf+4*s,4), V(32+16*ts+4*s,4), c if s else "0"))
        if db:
            for ts in range(2):
                c = 160+16*(db-1)+8*ts; o = 208+8*(db-1)+4*ts
                for j in range(4): k(f"v_cvt_pk_bf16_f32 v{o+j}, v{c+2*j}, v{c+2*j+1}")
                k(f"buffer_store_dwordx4 {V(o,4)}, v5, s[16:19], s{36+ts} offen")
            k("s_add_u32 s36, s36, 7168\ns_add_u32 s37, s37, 7168")
    k.stamp(4)
    for ts in range(2):
        c = 160+32+8*ts; o = 208+16+4*ts
        for j in range(4): k(f"v_cvt_pk_bf16_f32 v{o+j}, v{c+2*j}, v{c+2*j+1}")
        k(f"buffer_store_dwordx4 {V(o,4)}, v5, s[16:19], s{36+ts} offen")
    k("s_endpgm")
    k.label("prep_notw")
    k("s_cmp_lt_u32 s2, 120\ns_cbranch_scc1 prep_wo\ns_cmp_ge_u32 s2, 248\ns_cbranch_scc1 prep_end")
    k("s_sub_u32 s35, s2, 120\ns_lshr_b32 s36, s35, 3\ns_and_b32 s37, s35, 3\ns_lshl_b32 s37, s37, 1\ns_bfe_u32 s38, s35, 0x10002\ns_add_u32 s37, s37, s38\ns_lshl_b32 s37, s37, 4\ns_add_u32 s37, s37, s36")
    k("v_lshrrev_b32 v7, 4, v0")
    k("v_mul_u32_u24 v8, 1152, v7\nv_lshl_add_u32 v8, v3, 4, v8")
    k("v_add_u32 v9, 1024, v8\nv_cmp_gt_u32 vcc, 8, v3\nv_cndmask_b32 v9, v6, v9, vcc")
    k("s_mul_i32 s28, s37, 18432")
    k("s_waitcnt lgkmcnt(0)")
    srd(k, 20, 4, 2359296)
    for j in range(4): k(f"buffer_load_dwordx4 {V(16+4*j,4)}, v8, s[20:23], s28 offen offset:{256*j}")
    k(f"buffer_load_dwordx4 v[32:35], v9, s[20:23], s28 offen")
    srd(k, 16, 12, WSSZ)
    if 'pc' in OPT: pf_code(k, "attn1_kernel", 250, 40)
    k("v_xor_b32 v10, v7, v3\nv_lshlrev_b32 v10, 4, v10\nv_lshl_add_u32 v10, v3, 8, v10")
    k("s_lshl_b32 s29, s3, 2\nv_add_u32 v11, s29, v4\nv_xor_b32 v12, v3, v11\nv_lshlrev_b32 v12, 4, v12\nv_lshl_add_u32 v11, v11, 8, v12")
    k("s_mov_b32 s30, 0xffff0000")
    if 'k0w' in OPT:
        k("s_load_dwordx4 s[44:47], s[0:1], 40")
        pf13_addr(k, 84, "v0", 85, L0, 36, "v6")
        k(f"s_and_b32 s52, s2, 7\ns_mul_i32 s52, s52, 1152\ns_mul_i32 s53, s36, {36*9216}\ns_add_u32 s52, s52, s53")
        k("s_mov_b32 s48, s46\ns_mov_b32 s49, s47\ns_mov_b32 s46, 5308416\ns_mov_b32 s47, 0x20000\ns_mov_b32 s50, 5308416\ns_mov_b32 s51, 0x20000")
    k(f"s_lshl_b32 s33, s3, 10\ns_add_u32 s33, s33, s28\ns_add_u32 s34, s33, 16384\ns_cmp_lt_u32 s3, 2\ns_cselect_b32 s34, s34, {INV}")
    k(f"s_lshl_b32 s32, s37, 6\ns_add_u32 s32, s32, {MX}")
    k("v_lshlrev_b32 v13, 2, v7\nv_cmp_eq_u32 vcc, 0, v3\nv_cndmask_b32 v13, v6, v13, vcc")
    k("s_mov_b32 s31, 0x3ae38e39")
    for i in range(20):
        k(f"v_lshlrev_b32 v{40+2*i}, 16, v{16+i}\nv_and_b32 v{41+2*i}, s30, v{16+i}")
        if i == 1: k("v_add_f32 v80, v40, v41\nv_mul_f32 v82, v40, v40\nv_mul_f32 v83, v41, v41\nv_add_f32 v81, v42, v43\nv_fmac_f32 v82, v42, v42\nv_fmac_f32 v83, v43, v43")
        if i >= 2:
            a = 80 + (i % 2)
            k(f"v_add_f32 v{a}, v{a}, v{40+2*i}\nv_fmac_f32 v82, v{40+2*i}, v{40+2*i}\nv_add_f32 v{a^1}, v{a^1}, v{41+2*i}\nv_fmac_f32 v83, v{41+2*i}, v{41+2*i}")
    k("v_add_f32 v80, v80, v81\nv_add_f32 v82, v82, v83")
    for r in (8, 4, 2, 1):
        k(f"v_add_f32_dpp v80, v80, v80 row_ror:{r} row_mask:0xf bank_mask:0xf\nv_add_f32_dpp v82, v82, v82 row_ror:{r} row_mask:0xf bank_mask:0xf")
    k("v_mul_f32 v80, s31, v80\nv_mul_f32 v82, s31, v82\nv_fma_f32 v82, -v80, v80, v82\nv_max_f32 v82, 0, v82")
    k.stamp(1)
    bf16r(k, "v81", "v80"); bf16r(k, "v82", "v82")
    k("v_add_f32 v82, 0x3727c5ac, v82"); bf16r(k, "v82", "v82")
    k("v_sqrt_f32 v82, v82"); bf16r(k, "v82", "v82")
    k("v_rcp_f32 v82, v82\nv_mul_f32 v81, v81, v82")
    for i in range(20):
        k(f"v_fma_f32 v{40+2*i}, v{40+2*i}, v82, -v81\nv_fma_f32 v{41+2*i}, v{41+2*i}, v82, -v81\nv_cvt_pk_bf16_f32 v{16+i}, v{40+2*i}, v{41+2*i}")
        if i % 4 == 3: k(f"ds_write_b128 v10, {V(13+i,4)} offset:{4096*(i//4)}")
    k("buffer_store_dword v80, v13, s[16:19], s32 offen")
    k.stamp(2)
    k.wait_all(vm=False); k("s_barrier")
    for i in range(5): k(f"ds_read_b128 {V(16+4*i,4)}, v11 offset:{4096*i}")
    for i in range(4):
        k(f"buffer_store_dwordx4 {V(16+4*i,4)}, v5, s[16:19], s33 offen")
        k("s_add_u32 s33, s33, 4096")
    k("buffer_store_dwordx4 v[32:35], v5, s[16:19], s34 offen")
    if 'k0w' in OPT:
        k("buffer_load_dword v87, v84, s[44:47], s52 offen\nbuffer_load_dword v88, v84, s[48:51], s52 offen")
    k("s_endpgm")
    RS = 1056; TB = 32*RS
    k.label("prep_wo")
    k("s_cmp_ge_u32 s2, 114\ns_cbranch_scc1 prep_zero")
    k("s_sub_u32 s28, s2, 96")
    k("s_mul_i32 s29, s28, 36\ns_sub_u32 s30, s28, 16\ns_mul_i32 s30, s30, 288\ns_add_u32 s30, s30, 16")
    k("s_cmp_lt_u32 s28, 16\ns_cselect_b32 s29, s29, s30\ns_cselect_b32 s30, 18, 36\ns_cselect_b32 s31, 4, 72\ns_cselect_b32 s32, 2, 18")
    k("s_lshr_b32 s33, s3, 1\ns_mul_i32 s33, s33, s30\ns_add_u32 s29, s29, s33\ns_and_b32 s33, s3, 1\ns_mul_i32 s33, s33, s31\ns_lshl_b32 s33, s33, 1\ns_add_u32 s29, s29, s33")
    k("s_mul_i32 s29, s29, 1152\ns_mul_i32 s31, s31, 1152\ns_mul_i32 s32, s32, 1152")
    k(f"s_mul_i32 s34, s3, {8*RS}")
    k("s_waitcnt lgkmcnt(0)")
    srd(k, 20, 10, 663552)
    for kk in range(8):
        k("s_mov_b32 s35, s29")
        if kk >> 2: k("s_add_u32 s35, s35, s31")
        if (kk & 3) >> 1: k("s_add_u32 s35, s35, s32")
        if kk & 1: k("s_add_u32 s35, s35, 1152")
        k(f"s_add_u32 m0, s34, {kk*RS}\nbuffer_load_dwordx4 v5, s[20:23], s35 offen lds")
    k("v_lshrrev_b32 v7, 5, v1\nv_mul_lo_u32 v7, v7, s31\nv_bfe_u32 v8, v1, 4, 1\nv_mul_lo_u32 v8, v8, s32\nv_bfe_u32 v9, v1, 3, 1\nv_mul_u32_u24 v9, 1152, v9")
    k("v_add3_u32 v7, v7, v8, v9\nv_and_b32 v8, 7, v1\nv_lshl_add_u32 v7, v8, 4, v7")
    k(f"s_lshl_b32 s34, s3, 10\ns_add_u32 m0, s34, {TB-1024}\nbuffer_load_dwordx4 v7, s[20:23], s29 offen offset:1024 lds")
    srd(k, 16, 12, WSSZ)
    k("v_lshrrev_b32 v10, 2, v3\nv_and_b32 v11, 3, v3\nv_lshl_add_u32 v12, v4, 2, v10\ns_lshl_b32 s35, s3, 5")
    k(f"v_lshlrev_b32 v13, 3, v11\nv_add_u32 v13, s35, v13\nv_mul_u32_u24 v14, {RS}, v12\nv_add_u32 v14, v14, v13\nv_lshl_add_u32 v15, v12, 7, v13\nv_add_u32 v15, {TB}, v15")
    k(f"s_and_b32 s36, s3, 1\ns_lshl_b32 s37, s36, 4\nv_add_u32 v16, s37, v3\nv_lshlrev_b32 v17, 4, v4\nv_mul_u32_u24 v18, {RS}, v16\nv_add_u32 v18, v18, v17\nv_lshl_add_u32 v19, v16, 7, v17\nv_add_u32 v19, {TB}, v19")
    for j in range(4): k(f"v_mov_b32 v{20+j}, 0x3f803f80")
    k("v_lshl_add_u32 v24, v10, 4, v4\nv_lshlrev_b32 v24, 4, v24\nv_lshl_add_u32 v24, v11, 1, v24\ns_lshl_b32 s37, s36, 3\nv_add_u32 v24, s37, v24\nv_cmp_gt_u32 vcc, 2, v4\nv_cndmask_b32 v24, v6, v24, vcc")
    k(f"s_mul_i32 s38, s3, 18\ns_add_u32 s38, s38, s28\ns_lshl_b32 s38, s38, 10\ns_add_u32 s38, s38, {WOF}")
    k.stamp(1)
    k.wait_all(); k("s_barrier")
    k.stamp(2)
    for i in range(9):
        for h in range(2):
            if i < 8: k(f"ds_read_b64_tr_b16 {V(32+4*i+2*h,2)}, v14 offset:{h*16*RS+128*i}")
            else: k(f"ds_read_b64_tr_b16 {V(32+4*i+2*h,2)}, v15 offset:{h*2048}")
    for s in range(18):
        if s < 16: k(f"ds_read_b128 {V(72+4*s,4)}, v18 offset:{64*s}")
        else: k(f"ds_read_b128 {V(72+4*s,4)}, v19 offset:{64*(s-16)}")
    for i in range(9):
        k(f"buffer_store_dwordx4 {V(32+4*i,4)}, v5, s[16:19], s38 offen\ns_add_u32 s38, s38, {4*18*1024}")
    for s in range(18): k(MF(V(28 if s % 2 else 20+4+0, 4) if False else "v[28:31]", "v[20:23]", V(72+4*s,4), "v[28:31]" if s else "0"))
    k("s_mov_b32 s31, 0x3ae38e39\nv_mul_f32 v28, s31, v28")
    bf16r(k, "v29", "v28")
    k("v_sub_f32 v28, v28, v29\nv_cmp_eq_u32 vcc, 0, v4\nv_cndmask_b32 v28, v28, v29, vcc\nv_cvt_pk_bf16_f32 v28, v28, v28")
    k(f"s_lshl_b32 s38, s28, 10\ns_add_u32 s38, s38, {WOF + 36*18*1024}\nbuffer_store_short v28, v24, s[16:19], s38 offen")
    k("s_endpgm")
    k.label("prep_zero")
    k("s_cmp_ge_u32 s2, 116\ns_cbranch_scc1 prep_end")
    k(f"s_sub_u32 s28, s2, 114\ns_lshl_b32 s28, s28, 12\ns_add_u32 s28, s28, {FLG}\nv_lshlrev_b32 v7, 4, v0\nv_mov_b32 v8, 0\nv_mov_b32 v9, 0\nv_mov_b32 v10, 0\nv_mov_b32 v11, 0\ns_waitcnt lgkmcnt(0)")
    srd(k, 16, 12, WSSZ)
    k("buffer_store_dwordx4 v[8:11], v7, s[16:19], s28 offen")
    k.label("prep_end")
    k("s_endpgm")
    return k


def a1():
    ROWS = 129024
    XR = 16; NX = 6; WB = 40; AC = 96; EP = 40; PK = 60; VV = 78
    TW = 'tw' in OPT
    k = Kern("attn1_kernel", vgpr=128, lds=159744, block=576 if TW else 512, grid=256)
    k("s_cmp_ge_u32 s2, 256\ns_cbranch_scc1 a1_end")
    k("s_load_dwordx2 s[12:13], s[0:1], 80")
    if TW or 'a1t' in OPT: k("s_load_dwordx4 s[44:47], s[0:1], 40\ns_load_dwordx2 s[52:53], s[0:1], 56")
    k("v_and_b32 v1, 63, v0\nv_lshrrev_b32 v2, 6, v0\nv_readfirstlane_b32 s3, v2")
    k("v_lshlrev_b32 v5, 4, v1")
    k("s_and_b32 s4, s2, 7\ns_lshr_b32 s5, s2, 3")
    if TW: k("s_cmp_eq_u32 s3, 8\ns_cbranch_scc1 a1_tw")
    k("s_and_b32 s6, s4, 3\ns_lshl_b32 s6, s6, 2\ns_and_b32 s7, s5, 3\ns_add_u32 s6, s6, s7")
    k("s_lshr_b32 s7, s4, 2\ns_lshl_b32 s7, s7, 3\ns_lshr_b32 s5, s5, 2\ns_add_u32 s7, s7, s5")
    k("s_lshl_b32 s8, s6, 3\ns_add_u32 s8, s8, s3")
    k(f"s_lshl_b32 s9, s3, 10\ns_mul_i32 s10, s7, 129024\ns_add_u32 s10, s10, {WF}")
    k(f"s_mul_i32 s11, s8, 18432")
    ROT = 'rot' in OPT
    if ROT:
        k("s_and_b32 s14, s6, 3\ns_mul_i32 s14, s14, 9\ns_lshr_b32 s14, s14, 1\ns_mul_i32 s15, s5, 9\ns_lshr_b32 s15, s15, 2\ns_add_u32 s14, s14, s15\ns_sub_u32 s15, s14, 18\ns_cmp_ge_u32 s14, 18\ns_cselect_b32 s14, s15, s14")
        k("s_add_u32 s33, s10, 129024\ns_add_u32 s34, s11, 18432\ns_mul_i32 s15, s14, 7168\ns_add_u32 s10, s10, s15\ns_lshl_b32 s15, s14, 10\ns_add_u32 s11, s11, s15")
    k("s_add_u32 s10, s10, s9")
    wrapw = "\ns_sub_u32 s14, s10, 129024\ns_cmp_ge_u32 s10, s33\ns_cselect_b32 s10, s14, s10" if ROT else ""
    if ROT: k(wrapw)
    srd(k, 16, 12, WSSZ)
    LA = int(os.environ.get('A1LA', 4)); GB = int(os.environ.get('A1GB', 2))
    assert LA < NX
    st = dict(di=0, xi=0)
    def ld(upto):
        ops = []
        while st['xi'] <= min(upto, 17):
            ks = st['xi']
            while st['di'] <= (7*min(ks + 1, 17) + 6) // 8:
                di = st['di']
                ops.append((f"s_add_u32 m0, s9, {8192*di}\nbuffer_load_dwordx4 v5, s[16:19], s10 offen lds\ns_add_u32 s10, s10, 8192" + wrapw, f"D{di}")); st['di'] += 1
            if ROT: ops.append((f"buffer_load_dwordx4 {V(XR+4*(ks%NX),4)}, v5, s[16:19], s11 offen\ns_add_u32 s11, s11, 1024\ns_sub_u32 s15, s11, 18432\ns_cmp_ge_u32 s11, s34\ns_cselect_b32 s11, s15, s11", None))
            else: ops.append((f"buffer_load_dwordx4 {V(XR+4*(ks%NX),4)}, v5, s[16:19], s11 offen offset:{1024*(ks%4)}" + ("\ns_add_u32 s11, s11, 4096" if ks % 4 == 3 else ""), None))
            st['xi'] += 1
        return ops
    for o, t in ld(LA - 1): k(o, tag=t)
    if 'pc' in OPT and not TW: pf_code(k, "attn2_kernel", 124, 40)
    if 'a1t' in OPT:
        k("s_and_b32 s48, s3, 3\nv_lshl_add_u32 v123, v1, 2, s48\nv_mov_b32 v122, 0x40000000")
        pf13_addr(k, 127, "v123", 120, L1, 18, "v122")
        k(f"s_mul_i32 s48, s4, 1152\ns_lshr_b32 s49, s2, 3\ns_mul_i32 s49, s49, {18*9216}\ns_add_u32 s48, s48, s49")
        k("s_cmp_lt_u32 s3, 4\ns_cselect_b32 s44, s44, s46\ns_cselect_b32 s45, s45, s47\ns_mov_b32 s46, 5308416\ns_mov_b32 s47, 0x20000")
    k("v_and_b32 v3, 15, v1\nv_lshrrev_b32 v4, 4, v1\nv_mov_b32 v6, 0x40000000")
    k("v_lshlrev_b32 v7, 4, v3\nv_lshl_add_u32 v8, v4, 10, v7\nv_lshl_add_u32 v9, v4, 3, v7\nv_cmp_gt_u32 vcc, 2, v4\nv_cndmask_b32 v8, v6, v8, vcc\nv_cndmask_b32 v9, v6, v9, vcc")
    k(f"s_lshl_b32 s20, s8, 5\ns_lshl_b32 s21, s7, 1\ns_add_u32 s20, s20, s21\ns_lshl_b32 s20, s20, 10\ns_add_u32 s20, s20, {PQ}")
    k(f"s_lshl_b32 s21, s8, 4\ns_add_u32 s21, s21, s7\ns_lshl_b32 s21, s21, 8\ns_add_u32 s21, s21, {PQL}")
    k(f"s_mul_i32 s22, s3, 3840\ns_add_u32 s22, s22, {ROWS}\nv_mul_u32_u24 v10, 240, v3\nv_add_u32 v10, s22, v10")
    k("v_mul_u32_u24 v11, 80, v4\nv_add_u32 v11, v11, v10\nv_subrev_u32 v11, 160, v11")
    k("v_lshl_add_u32 v12, v4, 3, v10\nv_mul_u32_u24 v13, 40, v4\nv_add_u32 v13, v13, v10")
    k(f"s_mov_b32 s24, {LOG2E}\ns_mov_b32 s25, {LOG2E | 0x80000000}")
    k("s_cmp_ge_u32 s3, 3\ns_cselect_b32 s26, 1, 0\ns_mul_i32 s27, s26, 3\ns_sub_u32 s27, s3, s27")
    k(f"s_mul_i32 s28, s26, 80\ns_lshl_b32 s29, s27, 3\ns_cmp_lt_u32 s27, 2\ns_cselect_b32 s29, s29, 64\ns_cselect_b32 s30, 16, 0\ns_add_u32 s28, s28, s29\ns_add_u32 s28, s28, {ROWS}")
    k(f"s_mul_i32 s29, s26, 40\ns_add_u32 s29, s29, {ROWS+160}")
    k("v_lshrrev_b32 v7, 2, v3\nv_and_b32 v10, 3, v3\nv_lshl_add_u32 v7, v4, 3, v7\nv_mul_u32_u24 v7, 240, v7")
    k("v_mul_u32_u24 v124, s30, v10\nv_add3_u32 v124, v124, v7, s28")
    k("v_add_u32 v126, s29, v7\nv_lshl_add_u32 v125, v10, 3, v126")
    k(f"s_lshl_b32 s31, s7, 4\ns_add_u32 s31, s31, s6\ns_mul_i32 s31, s31, 6400\ns_mul_i32 s32, s26, 3200\ns_add_u32 s31, s31, s32\ns_add_u32 s31, s31, {KVP}")
    def reads(ks):
        out = []
        for t in range(7):
            off = (ks*7 + t) * 1024
            base = "v5" if off < 65536 else "v14"
            out.append(f"ds_read_b128 {V(WB+28*(ks%2)+4*t,4)}, {base} offset:{off % 65536}")
        return out
    def mfmas(ks):
        return [MF(V(AC+4*t, 4), V(WB+28*(ks%2)+4*t,4), V(XR+4*(ks%NX),4), V(AC+4*t, 4) if ks else "0") for t in range(7)]
    k("v_add_u32 v14, 0x10000, v5")
    nbar = 0
    def bar(upto):
        nonlocal nbar
        k.wait_vm(f"D{(7*min(upto, 17) + 6) // 8}"); k("s_barrier"); nbar += 1
    bar(0)
    k.stamp(1)
    for o in reads(0): k(o)
    for ks in range(18):
        if ks % GB == 0 and ks + 1 < 18: bar(ks + GB)
        if ks == 8: k.stamp(2)
        if ks == int(os.environ.get('A1T', 16)) and 'a1t' in OPT: k("buffer_load_dword v15, v127, s[44:47], s48 offen")
        R = reads(ks + 1) if ks + 1 < 18 else []
        L = ld(ks + LA)
        M = mfmas(ks)
        for o in R[:2]: k(o)
        R = R[2:]
        for i, m in enumerate(M):
            k(m)
            if R: k(R.pop(0))
            if L and i >= 2: o, t = L.pop(0); k(o, tag=t)
        for o, t in L: k(o, tag=t)
    k.stamp(3)
    A = lambda i: f"v{AC+i}"
    k(f"v_cvt_pk_bf16_f32 v{VV}, {A(20)}, {A(21)}\nv_cvt_pk_bf16_f32 v{VV+1}, {A(22)}, {A(23)}\nv_cvt_pk_bf16_f32 v{VV+2}, {A(24)}, {A(25)}\nv_cvt_pk_bf16_f32 v{VV+3}, {A(26)}, {A(27)}")
    k(f"v_cvt_pk_bf16_f32 v{VV+4}, {A(18)}, {A(19)}\nv_mov_b32 v{VV+5}, 0x3f80")
    k(f"ds_write_b64 v12, {V(VV,2)} offset:160\nds_write_b64 v12, {V(VV+2,2)} offset:200")
    k(f"s_mov_b64 exec, 0xffffffff\nds_write_b64 v13, {V(VV+4,2)} offset:192\ns_mov_b64 exec, -1")
    k(f"v_max3_f32 v84, {A(0)}, {A(1)}, {A(2)}\nv_min3_f32 v85, {A(0)}, {A(1)}, {A(2)}")
    for j in range(7): k(f"v_max3_f32 v84, v84, {A(3+2*j)}, {A(4+2*j)}\nv_min3_f32 v85, v85, {A(3+2*j)}, {A(4+2*j)}")
    k(f"v_max_f32 v84, v84, {A(17)}\nv_min_f32 v85, v85, {A(17)}")
    k("v_mul_f32 v86, s25, v84\nv_mul_f32 v87, s24, v85")
    for f in range(18):
        k(f"v_fma_f32 v{EP+f}, {A(f)}, s24, v86\nv_fma_f32 {A(f)}, {A(f)}, s25, v87")
        k(f"v_exp_f32 v{EP+f}, v{EP+f}\nv_exp_f32 {A(f)}, {A(f)}")
        if f == 1: k(f"v_add_f32 v84, v{EP}, v{EP+1}\nv_add_f32 v85, {A(0)}, {A(1)}")
        if f >= 2: k(f"v_add_f32 v84, v84, v{EP+f}\nv_add_f32 v85, v85, {A(f)}")
    k("v_rcp_f32 v84, v84\nv_rcp_f32 v85, v85")
    for j in range(9):
        k(f"v_mul_f32 v{EP+2*j}, v{EP+2*j}, v84\nv_mul_f32 v{EP+1+2*j}, v{EP+1+2*j}, v84\nv_cvt_pk_bf16_f32 v{PK+j}, v{EP+2*j}, v{EP+1+2*j}")
    for j in range(9):
        k(f"v_mul_f32 {A(2*j)}, {A(2*j)}, v85\nv_mul_f32 {A(2*j+1)}, {A(2*j+1)}, v85\nv_cvt_pk_bf16_f32 v{PK+9+j}, {A(2*j)}, {A(2*j+1)}")
    k("s_mov_b32 exec_lo, 0")
    for j in range(4): k(f"ds_write_b128 v11, {V(PK+4*j,4)} offset:{16*j}")
    k(f"ds_write_b64 v11, {V(PK+16,2)} offset:64")
    k("s_mov_b32 exec_lo, -1")
    for j in range(4): k(f"buffer_store_dwordx4 {V(PK+4*j,4)}, v8, s[16:19], s20 offen offset:{256*j}")
    k(f"buffer_store_dwordx2 {V(PK+16,2)}, v9, s[16:19], s21 offen")
    k.stamp(4)
    k.wait_all(vm=False); k("s_barrier"); nbar += 1
    k.stamp(5)
    k("s_cmp_ge_u32 s3, 6\ns_cbranch_scc1 a1_end")
    FA, FB, FX, C0 = 16, 80, 96, 112
    for s in range(4):
        for h in range(2):
            o = (32*s + 4*h) * 240
            k(f"ds_read_b64_tr_b16 {V(FA+4*s+2*h,2)}, v124 offset:{o}\nds_read_b64_tr_b16 {V(FB+4*s+2*h,2)}, v125 offset:{o}\nds_read_b64_tr_b16 {V(FX+4*s+2*h,2)}, v126 offset:{o+32}")
    for s in range(4):
        k(MF("v[112:115]", V(FA+4*s,4), V(FB+4*s,4), "v[112:115]" if s else "0"))
        k(MF("v[116:119]", V(FA+4*s,4), V(FX+4*s,4), "v[116:119]" if s else "0"))
    k("s_cmp_eq_u32 s27, 2\ns_cbranch_scc1 a1_mt2")
    k("s_lshl_b32 s32, s27, 4\nv_lshl_add_u32 v41, v1, 5, s32")
    k("v_lshl_add_u32 v42, v3, 2, v4\nv_lshl_add_u32 v42, v42, 5, s32\nv_add_u32 v42, 2560, v42\nv_cmp_gt_u32 vcc, 4, v3\nv_cndmask_b32 v42, v6, v42, vcc")
    k("buffer_store_dwordx4 v[112:115], v41, s[16:19], s31 offen\nbuffer_store_dwordx4 v[116:119], v42, s[16:19], s31 offen")
    k("s_endpgm")
    k.label("a1_mt2")
    k("v_xor_b32 v43, s26, v4\nv_lshl_add_u32 v43, v3, 1, v43\nv_lshlrev_b32 v43, 4, v43")
    k("v_add_u32 v41, 2048, v43\nv_add_u32 v42, 3072, v43\nv_cmp_gt_u32 vcc, 2, v4\nv_cndmask_b32 v41, v6, v41, vcc\nv_cndmask_b32 v42, v6, v42, vcc")
    k("v_cmp_gt_u32 vcc, 4, v3\nv_cndmask_b32 v42, v6, v42, vcc")
    k("v_cmp_eq_u32 vcc, 0, v4\ns_nop 7")
    for j in range(8): k(f"v_cndmask_b32 v{112+j}, 0, v{112+j}, vcc")
    k("buffer_store_dwordx4 v[112:115], v41, s[16:19], s31 offen\nbuffer_store_dwordx4 v[116:119], v42, s[16:19], s31 offen")
    k("s_endpgm")
    if TW:
        k.label("a1_tw")
        T = []
        k("v_mov_b32 v6, 0x40000000\nv_add_u32 v7, 64, v1\nv_add_u32 v8, 128, v1\nv_lshlrev_b32 v9, 7, v1")
        n1 = (18*len(L1) + 63) // 64
        for j in range(n1): pf13_addr(k, 16 + j, ["v1", "v7", "v8"][j], 20, L1, 18, "v6")
        k(f"s_mul_i32 s54, s4, 1152\ns_mul_i32 s55, s5, {18*9216}\ns_add_u32 s54, s54, s55")
        k(f"s_mul_i32 s55, s4, 663552\ns_mul_i32 s56, s5, {162*128}\ns_add_u32 s55, s55, s56\ns_add_u32 s56, s55, 8192\ns_add_u32 s57, s55, 16384")
        k("v_cmp_gt_u32 vcc, 34, v1\nv_cndmask_b32 v10, v6, v9, vcc")
        k(f"s_mul_i32 s58, s5, {168*128}\ns_add_u32 s58, s58, {WOF}\ns_add_u32 s59, s58, 8192\ns_add_u32 s60, s58, 16384\nv_cmp_gt_u32 vcc, 40, v1\nv_cndmask_b32 v11, v6, v9, vcc")
        k("s_waitcnt lgkmcnt(0)")
        srd(k, 16, 12, WSSZ); srd(k, 48, 46, 5308416); srd(k, 20, 44, 5308416); srd(k, 24, 52, 5308416)
        for j in range(n1): T += [f"v{16+j}, s[20:23], s54", f"v{16+j}, s[48:51], s54"]
        if 'tw2' in OPT: T += ["v9, s[24:27], s55", "v9, s[24:27], s56", "v10, s[24:27], s57"]
        if 'wof' in OPT: T += ["v9, s[16:19], s58", "v9, s[16:19], s59", "v11, s[16:19], s60"]
        T0 = int(os.environ.get('TW0', 1))
        for b in range(nbar):
            if b == nbar - 1 and 'pc' in OPT: pf_code(k, "attn2_kernel", 124, 40)
            k("s_barrier")
            n = 0 if b < T0 else -(-len(T) // (nbar - 1 - b)) if b < nbar - 1 else len(T)
            for j in range(n): k(f"buffer_load_dword v{32 + len(T)}, {T.pop(0)} offen")
        assert not T
    k.label("a1_end")
    k("s_endpgm")
    return k

def a2():
    k = Kern("attn2_kernel", vgpr=128, lds=4096, block=512, grid=256)
    k("s_cmp_ge_u32 s2, 256\ns_cbranch_scc1 a2_end")
    k("s_load_dwordx2 s[12:13], s[0:1], 80")
    if LA2 or LA2W: touch_load(k, 44)
    k("v_and_b32 v1, 63, v0\nv_lshrrev_b32 v2, 6, v0\nv_readfirstlane_b32 s3, v2")
    k("s_and_b32 s4, s2, 7\ns_lshr_b32 s5, s2, 3\ns_and_b32 s6, s4, 3\ns_lshl_b32 s6, s6, 2\ns_and_b32 s7, s5, 3\ns_add_u32 s6, s6, s7")
    k("s_lshr_b32 s7, s4, 2\ns_lshl_b32 s7, s7, 3\ns_lshr_b32 s5, s5, 2\ns_add_u32 s7, s7, s5")
    k("s_lshl_b32 s8, s6, 3\ns_add_u32 s8, s8, s3")
    k("v_mov_b32 v6, 0x40000000\nv_lshlrev_b32 v7, 4, v0\nv_cmp_gt_u32 vcc, 400, v0\nv_cndmask_b32 v7, v6, v7, vcc")
    k(f"s_mul_i32 s9, s7, 102400\ns_add_u32 s9, s9, {KVP}")
    srd(k, 16, 12, WSSZ)
    for j in range(16):
        k(f"buffer_load_dwordx4 {V(32+4*j,4)}, v7, s[16:19], s9 offen\ns_add_u32 s9, s9, 6400")
    k("v_and_b32 v3, 15, v1\nv_lshrrev_b32 v4, 4, v1\nv_lshlrev_b32 v5, 4, v1")
    k("v_cmp_eq_u32 vcc, 0, v4\nv_cndmask_b32 v8, v6, v5, vcc")
    k(f"s_lshl_b32 s20, s8, 5\ns_lshl_b32 s21, s7, 1\ns_add_u32 s20, s20, s21\ns_lshl_b32 s20, s20, 10\ns_add_u32 s20, s20, {PQ}")
    k(f"s_lshl_b32 s21, s8, 4\ns_add_u32 s21, s21, s7\ns_lshl_b32 s21, s21, 8\ns_add_u32 s21, s21, {PQL}")
    k("buffer_load_dwordx4 v[96:99], v5, s[16:19], s20 offen\nbuffer_load_dwordx4 v[100:103], v5, s[16:19], s20 offen offset:1024\nbuffer_load_dwordx4 v[104:107], v8, s[16:19], s21 offen")
    if 'pc' in OPT: pf_code(k, "attn3_kernel", 110, 40)
    if LA2 or LA2W: touch_setup(k, LA2, LA2W, 112, 44); touch_issue(k, LA2, LA2W, 112, 44); k("v_cmp_eq_u32 vcc, 0, v4")
    for o in OPT:
        if o.startswith('a2w'): pf_w(k, o[3:], 112, 44); k("v_cmp_eq_u32 vcc, 0, v4")
    k("v_mov_b32 v9, 1472\nv_add_u32 v10, 1024, v5\nv_cndmask_b32 v10, v9, v10, vcc")
    k("v_and_b32 v11, 3, v3\nv_lshl_add_u32 v12, v11, 2, v4\nv_lshlrev_b32 v12, 4, v12\nv_lshlrev_b32 v11, 4, v11\nv_add_u32 v11, 1536, v11\nv_cndmask_b32 v11, v9, v11, vcc")
    k("v_lshlrev_b32 v13, 3, v0")
    k(f"s_mul_i32 s22, s8, 18\ns_add_u32 s23, s22, s7\ns_lshl_b32 s23, s23, 10\ns_add_u32 s23, s23, {OF}")
    k(f"s_lshr_b32 s24, s7, 3\ns_add_u32 s22, s22, s24\ns_lshl_b32 s22, s22, 10\ns_bfe_u32 s24, s7, 0x20001\ns_lshl_b32 s24, s24, 8\ns_add_u32 s22, s22, s24\ns_and_b32 s24, s7, 1\ns_lshl_b32 s24, s24, 3\ns_add_u32 s22, s22, s24\ns_add_u32 s22, s22, {OF + 16384}")
    for c in range(4): k(f"v_add_f32 v{32+c}, v{32+c}, v{36+c}")
    for j in range(2, 16):
        for c in range(4): k(f"v_add_f32 v{32+c}, v{32+c}, v{32+4*j+c}")
    k("v_cvt_pk_bf16_f32 v32, v32, v33\nv_cvt_pk_bf16_f32 v33, v34, v35\nds_write_b64 v13, v[32:33]")
    k.stamp(1)
    k.wait_all(vm=False); k("s_barrier")
    k.stamp(2)
    for hh in range(2):
        b = 40 + 16*hh; o = 1600*hh
        k(f"ds_read_b128 {V(b,4)}, v5 offset:{o}\nds_read_b128 {V(b+4,4)}, v12 offset:{o+1280}\nds_read_b128 {V(b+8,4)}, v10 offset:{o}\nds_read_b128 {V(b+12,4)}, v11 offset:{o}")
    for hh in range(2):
        b = 40 + 16*hh; c = 72 + 8*hh; pq = V(96+4*hh, 4)
        k(MF(V(c,4), V(b,4), pq, "0")); k(MF(V(c+4,4), V(b+4,4), pq, "0"))
    for hh in range(2):
        b = 40 + 16*hh; c = 72 + 8*hh
        k(MF(V(c,4), V(b+8,4), "v[104:107]", V(c,4))); k(MF(V(c+4,4), V(b+12,4), "v[104:107]", V(c+4,4)))
    for hh in range(2):
        c = 72 + 8*hh
        bf16r(k, f"v{c+6}", f"v{c+6}")
        k(f"v_add_f32 v{c+6}, 0x358637bd, v{c+6}")
        bf16r(k, f"v{c+6}", f"v{c+6}")
        k(f"v_rcp_f32 v{c+6}, v{c+6}")
    for hh in range(2):
        c = 72 + 8*hh
        for j in range(6): k(f"v_mul_f32 v{c+j}, v{c+j}, v{c+6}")
        k(f"v_cvt_pk_bf16_f32 v{88+2*hh}, v{c}, v{c+1}\nv_cvt_pk_bf16_f32 v{89+2*hh}, v{c+2}, v{c+3}\nv_cvt_pk_bf16_f32 v{92+hh}, v{c+4}, v{c+5}")
    k("buffer_store_dwordx4 v[88:91], v5, s[16:19], s23 offen\nbuffer_store_dwordx2 v[92:93], v8, s[16:19], s22 offen")
    k.label("a2_end")
    k("s_endpgm")
    return k

def a3():
    XO = 40960; MO = XO + 10240
    LA = int(os.environ.get('A3LA', 4))
    k = Kern("attn3_kernel", vgpr=256, lds=MO + 128, block=320, grid=256)
    k("s_cmp_ge_u32 s2, 256\ns_cbranch_scc1 a3_end")
    k("s_load_dwordx2 s[12:13], s[0:1], 80\ns_load_dwordx2 s[4:5], s[0:1], 0")
    if LA3 or LA3W: touch_load(k, 44)
    k("v_and_b32 v1, 63, v0\nv_lshrrev_b32 v2, 6, v0\nv_readfirstlane_b32 s3, v2")
    k("v_lshlrev_b32 v5, 4, v1")
    k("s_bfe_u32 s7, s2, 0x20003\ns_and_b32 s6, s2, 3\ns_lshl_b32 s6, s6, 1\ns_bfe_u32 s38, s2, 0x10002\ns_add_u32 s6, s6, s38\ns_lshl_b32 s6, s6, 3\ns_lshr_b32 s8, s2, 5\ns_add_u32 s6, s6, s8")
    k(f"s_lshl_b32 s9, s3, 10\ns_mul_i32 s10, s6, 36864\ns_add_u32 s10, s10, s9\ns_add_u32 s10, s10, {OF}")
    k("v_and_b32 v3, 15, v1\nv_lshrrev_b32 v4, 4, v1\nv_mov_b32 v6, 0x40000000")
    k("s_and_b32 s14, s7, 1\ns_lshl_b32 s15, s3, 1\ns_add_u32 s15, s15, s14")
    k("s_xor_b32 s24, s14, 1\ns_lshl_b32 s24, s24, 3\ns_cmp_lt_u32 s3, 4\ns_cselect_b32 s15, s15, s24")
    k("s_mul_i32 s24, s7, 9\ns_add_u32 s24, s24, s15\ns_add_u32 s25, s24, 1\ns_cmp_lt_u32 s3, 4\ns_cselect_b32 s25, s25, 36")
    k(f"s_mul_i32 s26, s24, 18432\ns_add_u32 s26, s26, {WOF}\ns_mul_i32 s27, s25, 18432\ns_add_u32 s27, s27, {WOF}")
    k("s_cmp_lt_u32 s3, 4\ns_cselect_b32 s28, 16, 2\nv_cmp_gt_u32 vcc, s28, v3\nv_cndmask_b32 v10, v6, v5, vcc")
    srd(k, 16, 12, WSSZ)
    for i in (0, 4, 1, 3, 5, 2, 6, 7):
        k(f"s_add_u32 m0, s9, {5120*i}\ns_add_u32 s8, s10, {5120*i}\nbuffer_load_dwordx4 v5, s[16:19], s8 offen lds", tag="DO")
    st = dict(w=0)
    def ldw(upto):
        while st['w'] <= min(upto, 17):
            ks = st['w']
            k(f"buffer_load_dwordx4 {V(64+8*ks,4)}, v5, s[16:19], s26 offen offset:{1024*(ks%4)}\nbuffer_load_dwordx4 {V(68+8*ks,4)}, v10, s[16:19], s27 offen offset:{1024*(ks%4)}")
            if ks % 4 == 3: k("s_add_u32 s26, s26, 4096\ns_add_u32 s27, s27, 4096")
            st['w'] += 1
    ldw(LA - 1)
    srd(k, 20, 4, 2359296)
    k("s_mul_i32 s11, s6, 36864\ns_mul_i32 s14, s7, 288\ns_add_u32 s11, s11, s14")
    for r in range(2):
        k(f"v_add_u32 v7, {320*r}, v0\nv_mul_u32_u24 v8, 3641, v7\nv_lshrrev_b32 v8, 16, v8\nv_mul_u32_u24 v9, 18, v8\nv_sub_u32 v9, v7, v9\nv_mul_u32_u24 v8, 1152, v8\nv_lshl_add_u32 v{232+r}, v9, 4, v8")
    k(f"v_lshlrev_b32 v11, 2, v3\ns_lshl_b32 s29, s6, 7\ns_add_u32 s29, s29, {MX}")
    def ldx():
        for r in range(2): k(f"s_add_u32 m0, s9, {XO + 5120*r}\nbuffer_load_dwordx4 v{232+r}, s[20:23], s11 offen lds", tag="DX")
        k("buffer_load_dword v12, v11, s[16:19], s29 offen\nbuffer_load_dword v13, v11, s[16:19], s29 offen offset:64")
    k(f"v_mul_u32_u24 v14, 288, v3\nv_lshl_add_u32 v14, v4, 3, v14\ns_lshl_b32 s30, s15, 5\ns_add_u32 s30, s30, {XO}\nv_add_u32 v14, s30, v14")
    k(f"v_add_u32 v15, {MO}, v11")
    k(f"s_lshl_b32 s32, s6, 1\ns_mul_i32 s32, s32, 18\ns_lshr_b32 s33, s24, 1\ns_add_u32 s32, s32, s33\ns_lshl_b32 s32, s32, 10\ns_add_u32 s33, s32, {HR}\ns_add_u32 s32, s32, {HC}")
    k("s_add_u32 s34, s32, 18432\ns_add_u32 s35, s33, 18432")
    k("s_mov_b32 s31, 0xffff0000")
    if LA3 or LA3W: touch_setup(k, LA3, LA3W, 244, 44)
    k.stamp(1)
    k.wait_vm("DO"); k("s_barrier")
    k.stamp(2)
    def rd(ks):
        k(f"ds_read_b128 {V(16+8*(ks%3),4)}, v5 offset:{ks*1024}\nds_read_b128 {V(20+8*(ks%3),4)}, v5 offset:{(18+ks)*1024}")
    rd(0); rd(1)
    XS = int(os.environ.get('A3XS', 6))
    for ks in range(18):
        if ks + 2 < 18: rd(ks + 2)
        ldw(ks + LA)
        if ks == XS: ldx()
        if ks == 14 and 'pc' in OPT: pf_code(k, "ffn_kernel", 240, 40)
        if ks == int(os.environ.get('A3T', 14)) and (LA3 or LA3W): touch_issue(k, LA3, LA3W, 244, 44)
        for t in (1, 0):
            for tt in range(2):
                c = V(40 + 8*tt + 4*t, 4)
                k(MF(c, V(64+8*ks+4*t,4), V(16+8*(ks%3)+4*tt,4), c if ks else "0"))
    k.stamp(3)
    k("s_cmp_lt_u32 s3, 4\ns_cbranch_scc1 a3_nomean")
    k.skip_begin()
    for tt in range(2):
        k(f"v_add_f32 v{44+8*tt}, v{44+8*tt}, v{45+8*tt}\nv_add_f32 v{44+8*tt}, v{44+8*tt}, v{12+tt}")
        bf16r(k, f"v{44+8*tt}", f"v{44+8*tt}")
    k("s_mov_b64 exec, 0xffff\nds_write_b32 v15, v44\nds_write_b32 v15, v52 offset:64\ns_mov_b64 exec, -1")
    k.wait_all(vm=False)
    k.skip_end("a3_nomean")
    k.wait_vm("DX")
    k("s_barrier")
    k.stamp(4)
    for tt in range(2):
        for t in range(2): k(f"ds_read_b64 {V(208+4*tt+2*t,2)}, v14 offset:{tt*4608+32*t}")
    k("ds_read_b32 v12, v15\nds_read_b32 v13, v15 offset:64")
    for tt in range(2):
        for t in range(2):
            for hf in range(2):
                c = 40 + 8*tt + 4*t + 2*hf
                k(f"v_cvt_pk_bf16_f32 v{c+1}, v{c}, v{c+1}\nv_lshlrev_b32 v{c}, 16, v{c+1}\nv_and_b32 v{c+1}, s31, v{c+1}")
    for tt in range(2):
        for t in range(2):
            for hf in range(2):
                c = 40 + 8*tt + 4*t + 2*hf; xr = 208 + 4*tt + 2*t + hf; ho = 216 + 4*tt + 2*t + hf; co = 224 + 4*tt + 2*t + hf
                k(f"v_lshlrev_b32 v58, 16, v{xr}\nv_and_b32 v59, s31, v{xr}\nv_add_f32 v{c}, v{c}, v58\nv_add_f32 v{c+1}, v{c+1}, v59")
                k(f"v_cvt_pk_bf16_f32 v{ho}, v{c}, v{c+1}\nv_lshlrev_b32 v57, 16, v{ho}\nv_and_b32 v56, s31, v{ho}")
                k(f"v_sub_f32 v57, v57, v{12+tt}\nv_sub_f32 v56, v56, v{12+tt}\nv_cvt_pk_bf16_f32 v{co}, v57, v56")
    k.stamp(5)
    k("s_cmp_lt_u32 s3, 4\ns_cbranch_scc0 a3_single")
    k("buffer_store_dwordx4 v[224:227], v5, s[16:19], s32 offen\nbuffer_store_dwordx4 v[228:231], v5, s[16:19], s34 offen")
    k("buffer_store_dwordx4 v[216:219], v5, s[16:19], s33 offen\nbuffer_store_dwordx4 v[220:223], v5, s[16:19], s35 offen")
    k("s_endpgm")
    k.label("a3_single")
    k("s_and_b32 s37, s24, 1\ns_lshl_b32 s37, s37, 3\nv_add_u32 v10, s37, v5\ns_nop 1")
    k("buffer_store_dwordx2 v[224:225], v10, s[16:19], s32 offen\nbuffer_store_dwordx2 v[228:229], v10, s[16:19], s34 offen")
    k("buffer_store_dwordx2 v[216:217], v10, s[16:19], s33 offen\nbuffer_store_dwordx2 v[220:221], v10, s[16:19], s35 offen")
    k.label("a3_end")
    k("s_endpgm")
    return k

def warm(S):
    k = Kern("warm_kernel", vgpr=8, lds=0, block=64*S, grid=256)
    k.prof = None
    k("v_lshrrev_b32 v2, 6, v0\nv_readfirstlane_b32 s3, v2\ns_mov_b64 exec, 0")
    for c in range(S): k(f"s_cmp_eq_u32 s3, {c}\ns_cbranch_scc1 ffn_kernel_ws{c}")
    k("s_endpgm")
    return k

def kernels():
    if 'PADB' in os.environ:
        S = int(os.environ.get('PADS', 16)); f = k3(); f.pads = (int(os.environ['PADB']), S)
        if 'nowarm' in OPT: return [k0(), a1(), a2(), a3(), f, k4()]
        return [k0(), a1(), a2(), a3(), warm(S), f, k4()]
    if 'fuse' in OPT: return [k0(), a1(), a2(), a3(), k3()]
    return [k0(), a1(), a2(), a3(), k3(), k4()]

if __name__ == "__main__":
    if len(sys.argv) > 2: Kern.prof = 0
    ks = kernels()
    print([k for k in ks if k.name == 'ffn_kernel'][0].log)
    out = sys.argv[1] if len(sys.argv) > 1 else "cur.s"
    if len(sys.argv) > 2:
        for i, k in enumerate(ks): k.prof = PROF + i * 0x100000 if k.name != 'warm_kernel' else None
    build_file(ks, out)
    for k in ks: print(k.name, "nops", k.nnops, "waits", k.nwaits)
```

```python
import sys
sys.path.insert(0, 'dev')
from asmlib import *
from wsmap import *
import os
OPT = set(os.environ.get('OPT', '').split(','))

def cost(I): return 8 if I.cls == 'trans' else 4

def k3(G1=int(os.environ.get("G1", 3)), defer=2, store_mod=os.environ.get("SMOD", "")):
    k = Kern("ffn_kernel", vgpr=256, agpr=256, lds=163840, block=256, grid=256)
    PB = 11
    vW, vWH, vW2, vH0, vH1 = 4, 5, 6, 7, 8
    vT = [[9, 10], [11, 12], [13, 14]]; vTH = [15, 16, 17]; vR = [18, 19, 20]; vPW, vPW8 = 21, 22
    vS = [23, 24, 25, 26]; C1 = [27, 28, 29, 30]; C2 = [31, 32, 33, 34]
    AF = [48, 64]; ACC = [80, 144]; HCV = 208; TMP = 240
    sK = lambda ks: f"s{40+ks}"
    sJ = lambda j: f"s{58+j}"
    def hc(ks, tt): return A(16*ks + 4*tt, 4) if ks < 16 else V(HCV + 16*(ks-16) + 4*tt, 4)
    def pf(j, tt): return A(16*j + 4*tt, 4)

    k("s_cmp_ge_u32 s2, 256\ns_cbranch_scc1 ffn_end")
    k("s_load_dwordx4 s[4:7], s[0:1], 40\ns_load_dwordx2 s[8:9], s[0:1], 56\ns_load_dwordx2 s[12:13], s[0:1], 80")
    k("v_and_b32 v1, 63, v0\nv_lshrrev_b32 v2, 6, v0\nv_readfirstlane_b32 s3, v2")
    k("s_and_b32 s10, s2, 7\ns_bfe_u32 s11, s2, 0x10003\ns_lshr_b32 s14, s2, 4")
    k(f"v_lshlrev_b32 v{vH0}, 4, v1\nv_add_u32 v{vH1}, {18432-1024}, v{vH0}")
    k("v_lshrrev_b32 v2, 3, v1\nv_and_b32 v3, 6, v2\nv_and_b32 v35, 7, v1\nv_xor_b32 v3, v3, v35\nv_lshlrev_b32 v3, 4, v3")
    k("s_lshl_b32 s67, s3, 11\ns_lshl_b32 s68, s3, 10\ns_lshl_b32 s15, s3, 3\nv_add_u32 v2, s15, v2")
    k(f"v_mul_u32_u24 v{vW}, 9216, v2\nv_add_u32 v{vW}, v{vW}, v3\nv_mul_u32_u24 v{vW2}, 1152, v2\nv_add_u32 v{vW2}, v{vW2}, v3")
    k(f"s_lshl_b32 s69, s14, 3\ns_lshl_b32 s15, s3, 1\ns_add_u32 s69, s69, s15\ns_mul_i32 s69, s69, 18432\ns_add_u32 s69, s69, {HC}")
    if 'hchot' in OPT: k(f"s_mul_i32 s69, s15, 18432\ns_add_u32 s69, s69, {HC}")
    k("s_mul_i32 s71, s10, 576\ns_mul_i32 s72, s11, 320\ns_add_u32 s72, s72, s71")
    k(f"s_lshl_b32 {sK(0)}, s72, 1")
    for ks in range(1, 18): k(f"s_add_u32 {sK(ks)}, {sK(ks-1)}, {0 if 'whot' in OPT else 294912}")
    srd(k, 16, 12, WSSZ)
    srd(k, 20, 4, 5308416)
    k("s_sub_u32 s24, s6, 1024\ns_subb_u32 s25, s7, 0\ns_mov_b32 s26, 5309440\ns_mov_b32 s27, 0x20000")

    O2 = []
    for n in range(defer): O2 += [(n, j) for j in range(6)]
    for jj in ((6, 7),):
        for n in range(defer): O2 += [(n, j) for j in jj]
    O2 += [(n, 8) for n in range(defer)]
    for n in range(defer, 9): O2 += [(n, j) for j in range(9)]
    S2 = 81
    NS = S2 + (81 + 1) // 2
    sP67 = S2 + 3*defer - 1
    i8 = O2.index((0, 8)); sP8 = S2 + i8 // 2 - 1
    B = set([-1, 0, 1, 2, 3, 4, 5] + list(range(6, 18, 2)) + list(range(18, NS, G1)) + [sP67, sP8, 72])
    B = sorted(b for b in B if b < NS - 1)
    for f in (sP67, sP8):
        for b in (f - 1, f + 1):
            if b in B and b not in (sP67, sP8): B.remove(b)
    pb = lambda r: max(b for b in B if b <= r)
    rb = lambda r: min([b for b in B if b > r] + [10**6])
    units = []
    for s in range(NS):
        if s < 18: units.append(('H', s, s))
        units.append(('W', s, s))
    slot_of = {}
    free = list(range(20)); held = []
    prel = set()
    def pdead(sl):
        if sl < PB or sl in prel: return 10**6
        j = sl - PB
        return 18*(j//2 + 1) if j < 8 else S2
    state = dict(sp=0, nsp=0, m0=None)
    def dma_ops(u, sl):
        kind, s, _ = u
        tag = f"{kind}{s}"; ops = []
        base = sl * 8192
        if kind == 'H':
            ops += [(f"s_add_u32 m0, s67, {base}", None), (f"buffer_load_dwordx4 v{vH0}, s[16:19], s69 offen lds", tag), (f"buffer_load_dwordx4 v{vH1}, s[16:19], s69 offen offset:1024 lds", tag), ("s_add_u32 s69, s69, 1024", None)]
        elif s < 72:
            sp, ks = divmod(s, 18)
            if sp != state['sp']: ops.append((f"v_add_u32 v{vW}, {0 if 'whot' in OPT else 128}, v{vW}", None)); state['sp'] = sp
            ops += [(f"s_add_u32 m0, s67, {base}", None), (f"buffer_load_dwordx4 v{vW}, s[20:23], {sK(ks)} offen lds", tag), (f"buffer_load_dwordx4 v{vW}, s[24:27], {sK(ks)} offen offset:1024 lds", tag)]
        elif s < S2:
            for kp in range(2):
                ops += [(f"s_add_u32 m0, s68, {base + 4096*kp}", None), (f"buffer_load_dwordx4 v{vWH}, s[28:31], {sK(2*(s-72)+kp)} offen lds", tag)]
        else:
            ops.append((f"s_add_u32 m0, s67, {base}", None))
            for par in range(2):
                i = 2*(s - S2) + par
                if i >= 81: continue
                n, j = O2[i]
                if n != state['nsp']:
                    ops.append((f"v_add_u32 v{vW2}, {((n - state['nsp'])*128) & 0xffffffff}, v{vW2}", None)); state['nsp'] = n
                ops.append((f"buffer_load_dwordx4 v{vW2}, s[{32+4*par}:{35+4*par}], {sJ(j)} offen{' offset:1024' if par else ''} lds", tag))
        return ops
    upos = 0
    LA0 = int(os.environ.get('LA0', 6))
    def issue(step, cap):
        nonlocal upos
        ops = []
        while cap > 0 and upos < len(units):
            u = units[upos]; r = rb(u[2] - 1)
            if u[2] > max(step, -1) + (LA0 if step < 18 else 100): break
            cand = [sl for sl in free if pdead(sl) >= r]
            if not cand: break
            sl = max(cand); free.remove(sl); slot_of[(u[0], u[1])] = sl; held.append((r, sl))
            ops += [(o, t, pb(u[2] - 1)) for o, t in dma_ops(u, sl)]; upos += 1; cap -= 1
        return ops
    def reads_for(s):
        ops = []
        sl = slot_of[('W', s)]; reg, off = divmod(sl * 8192, 65536); af = AF[s % 2]
        if s < 18:
            hs = slot_of[('H', s)]; hr, ho = divmod(hs * 8192, 65536)
            hops = [f"ds_read_b128 {hc(s, tt)}, v{vR[hr]} offset:{ho + 1024*tt}" for tt in range(4)]
        else: hops = []
        if 72 <= s < S2:
            for kp in range(2):
                for m in range(2):
                    for h in range(2): ops.append(f"ds_read_b64_tr_b16 {V(af + 8*kp + 4*m + 2*h, 2)}, v{vTH[reg]} offset:{off + 4096*kp + 2048*m + 1024*h}")
        else:
            for m in range(2):
                if s >= S2 and 2*(s - S2) + m >= 81: continue
                for t in range(2):
                    for h in range(2): ops.append(f"ds_read_b64_tr_b16 {V(af + 8*m + 4*t + 2*h, 2)}, v{vT[reg][t]} offset:{off + 1024*m + 4096*h}")
        return ops[:2] + hops + ops[2:]
    acc2 = {}
    accs = [ACC[0] + 32, HCV, ACC[1], ACC[1] + 32]
    for n in range(9): acc2[n] = accs[n % (defer + 1)]
    def mfmas(s):
        af = AF[s % 2]; out = []
        if s < 72:
            sp, ks = divmod(s, 18); a = ACC[sp % 2]
            if sp == 0 and 'nogram' not in OPT:
                for tt in range(4): out.append(MF(V(TMP + 4*tt, 4), hc(ks, tt), hc(ks, tt), V(TMP + 4*tt, 4) if ks else "0"))
            for m in range(4):
                for tt in range(4):
                    c = V(a + 16*m + 4*tt, 4); out.append(MF(c, V(af + 4*m, 4), hc(ks, tt), c if ks else "0"))
        elif s < S2:
            for kp in range(2):
                ks = 2*(s - 72) + kp
                for m in range(2):
                    for tt in range(4):
                        c = V(ACC[0] + 16*m + 4*tt, 4); out.append(MF(c, V(af + 8*kp + 4*m, 4), hc(ks, tt), c if ks else "0"))
        else:
            for par in range(2):
                i = 2*(s - S2) + par
                if i >= 81: continue
                n, j = O2[i]
                for t in range(2):
                    for tt in range(4):
                        c = V(acc2[n] + 16*t + 4*tt, 4); out.append(MF(c, V(af + 8*par + 4*t, 4), pf(j, tt), c if j else "0"))
        return out
    def silu(sp):
        ops = []
        if sp < 4: a = ACC[sp % 2]; nt = 2; bo = 32
        else: a = ACC[0]; nt = 1; bo = 16
        for tt in range(4):
            for t in range(nt):
                ga = a + 16*t + 4*tt; ub = ga + bo
                for r in range(4): ops += [f"v_mul_f32 v{ub+r}, v{ga+r}, v{ub+r}", f"v_mul_f32 v{ga+r}, v{ga+r}, v{C1[tt]}"]
                for r in range(4): ops.append(f"v_exp_f32 v{ga+r}, v{ga+r}")
                for r in range(4): ops.append(f"v_fma_f32 v{ga+r}, v{ga+r}, v{C2[tt]}, v{C2[tt]}")
                for r in range(4): ops.append(f"v_rcp_f32 v{ga+r}, v{ga+r}")
                for r in range(4): ops.append(f"v_mul_f32 v{ub+r}, v{ub+r}, v{ga+r}")
                d = a + 4*tt + 2*t
                ops += [f"v_cvt_pk_bf16_f32 v{d}, v{ub}, v{ub+1}", f"v_cvt_pk_bf16_f32 v{d+1}, v{ub+2}, v{ub+3}"]
            if sp < 4: ops.append(f"ds_write_b128 v{vPW}, {V(a + 4*tt, 4)} offset:{16384*sp + 1024*tt}")
            else: ops.append(f"ds_write_b64 v{vPW8}, {V(a + 4*tt, 2)} offset:{1024*tt}")
        if 'nosilu' in OPT: ops = [o for o in ops if o.startswith('ds_')]
        return [Ins(o, f"silu{sp}") for o in ops]
    def epi(n):
        a = acc2[n]; ops = ["s_add_u32 s70, s70, 2048"] if n else []
        for tt in range(4):
            d = a + 4*tt
            ops += [f"v_cvt_pk_bf16_f32 v{d}, v{d}, v{d+1}", f"v_cvt_pk_bf16_f32 v{d+1}, v{d+2}, v{d+3}", f"v_cvt_pk_bf16_f32 v{d+2}, v{d+16}, v{d+17}", f"v_cvt_pk_bf16_f32 v{d+3}, v{d+18}, v{d+19}"]
            if 'nostore' not in OPT: ops.append(f"buffer_store_dwordx4 {V(d,4)}, v{vS[tt]}, s[16:19], s70 offen {store_mod}")
        return [Ins(o, f"epi{n}") for o in ops]

    first = issue(-2, 4)
    for o, t, _ in first: k(o, tag=t)
    k(f"v_and_b32 v2, 15, v1\nv_lshrrev_b32 v3, 4, v1\ns_lshr_b32 s73, s3, 1\ns_and_b32 s74, s3, 1")
    for o, t, _ in issue(-2, int(os.environ.get('PRO', 2))): k(o, tag=t)
    k("v_lshrrev_b32 v37, 2, v2\nv_and_b32 v38, 1, v3\nv_lshl_add_u32 v37, v38, 2, v37")
    k("s_lshl_b32 s15, s74, 2\nv_and_b32 v39, 6, v37\nv_xor_b32 v39, s15, v39\nv_lshlrev_b32 v39, 4, v39\nv_lshl_add_u32 v39, v37, 7, v39")
    k(f"v_and_b32 v40, 3, v2\nv_lshl_add_u32 v39, v40, 3, v39\nv_lshrrev_b32 v41, 1, v3\nv_lshl_add_u32 v{vT[0][0]}, v41, 11, v39\nv_xor_b32 v{vT[0][1]}, 32, v{vT[0][0]}")
    k(f"s_lshl_b32 s15, s73, 12\nv_add_u32 v{vR[0]}, s15, v{vH0}")
    for r in (1, 2):
        k(f"v_add_u32 v{vT[r][0]}, {65536*r}, v{vT[0][0]}\nv_add_u32 v{vT[r][1]}, {65536*r}, v{vT[0][1]}\nv_add_u32 v{vR[r]}, {65536*r}, v{vR[0]}")
    late = []
    L = late.append
    L("v_lshrrev_b32 v37, 2, v2"); L("v_lshl_add_u32 v37, v3, 2, v37"); L("v_xor_b32 v39, s74, v38"); L("v_lshlrev_b32 v39, 5, v39"); L("v_lshl_add_u32 v39, v37, 6, v39"); L(f"v_lshl_add_u32 v{vTH[0]}, v40, 3, v39")
    for r in (1, 2): L(f"v_add_u32 v{vTH[r]}, {65536*r}, v{vTH[0]}")
    L("s_lshl_b32 s15, s74, 13"); L(f"s_add_u32 s15, s15, {PB*8192}"); L(f"v_add_u32 v{vPW}, s15, v{vR[0]}")
    L("s_lshl_b32 s15, s74, 3"); L(f"s_add_u32 s15, s15, {(PB+8)*8192}"); L(f"v_add_u32 v{vPW8}, s15, v{vR[0]}")
    for tt in range(4): L(f"v_add_u32 v{vS[tt]}, {18432*tt}, v{vH0}")
    L("v_lshrrev_b32 v37, 2, v1"); L("s_lshl_b32 s15, s74, 4"); L("v_add_u32 v37, s15, v37"); L("v_lshrrev_b32 v39, 3, v1"); L("v_and_b32 v39, 2, v39"); L("v_and_b32 v41, 3, v1"); L("v_xor_b32 v39, v39, v41")
    L(f"v_mul_u32_u24 v{vWH}, 9216, v37"); L(f"v_lshl_add_u32 v{vWH}, v39, 4, v{vWH}")
    L("s_cmp_eq_u32 s73, 0"); L("s_cselect_b32 s28, s4, s6"); L("s_cselect_b32 s29, s5, s7"); L("s_movk_i32 s75, -64"); L("s_cmp_eq_u32 s11, 0"); L("s_cselect_b32 s15, 512, s75"); L("s_cselect_b32 s75, 0, -1"); L("s_add_u32 s28, s28, s15"); L("s_addc_u32 s29, s29, s75")
    L("s_mov_b32 s30, 5308416"); L("s_mov_b32 s31, 0x20000")
    L("s_mov_b32 s32, s8"); L("s_mov_b32 s33, s9"); L("s_mov_b32 s34, 5308416"); L("s_mov_b32 s35, 0x20000")
    L("s_sub_u32 s36, s8, 1024"); L("s_subb_u32 s37, s9, 0"); L("s_mov_b32 s38, 5309440"); L("s_mov_b32 s39, 0x20000")
    L(f"s_mul_i32 {sJ(0)}, s72, 1152")
    for j in range(1, 8): L(f"s_add_u32 {sJ(j)}, {sJ(j-1)}, 36864")
    L("s_lshl_b32 s15, s11, 5"); L("s_add_u32 s15, s15, s71"); L("s_add_u32 s15, s15, 256"); L(f"s_mul_i32 {sJ(8)}, s15, 1152")
    L("s_lshl_b32 s70, s10, 1"); L("s_add_u32 s70, s70, s11"); L("s_lshl_b32 s70, s70, 7"); L("s_lshl_b32 s15, s14, 3"); L("s_add_u32 s70, s70, s15"); L("s_lshl_b32 s15, s73, 2"); L("s_add_u32 s70, s70, s15")
    L("s_mul_i32 s70, s70, 18"); L("s_add_u32 s70, s70, s74"); L("s_lshl_b32 s70, s70, 10"); L(f"s_add_u32 s70, s70, {PART}")
    L("v_and_b32 v37, 1, v2"); L("v_cmp_eq_u32_e64 s[76:77], 1, v37"); L("v_and_b32 v37, 2, v2"); L("v_cmp_eq_u32_e64 s[78:79], 2, v37"); L("v_lshrrev_b32 v37, 2, v2"); L("v_cmp_eq_u32_e64 s[80:81], v37, v3")
    L3 = [int(c) for c in os.environ.get('L3', '')]
    if 'k3w' in OPT:
        L("v_mov_b32 v46, 0x40000000")
        W2W = [w.split(':') for w in os.environ.get('W2W', '24:0:012345678').split(',')]
        for i, (ts, pz, ln) in enumerate(W2W):
            if len(ln) == 9: L(f"v_lshlrev_b32 v{45-5*i}, 7, v0"); L("v_cmp_gt_u32 vcc, 162, v0"); L(f"v_cndmask_b32 v{45-5*i}, v46, v{45-5*i}, vcc")
            else: pf13_addr(lambda t: [L(x) for x in t.split('\n')], [45, 35, 36, 41][i], "v0", 42, [int(c) for c in ln], 18, "v46", 1152)
        L("s_lshr_b32 s15, s2, 3"); L(f"s_mul_i32 s12, s15, {162*128}"); L("s_mul_i32 s15, s10, 663552"); L("s_add_u32 s12, s12, s15")
        if L3:
            L("v_and_b32 v47, 127, v0"); pf13_addr(lambda t: [L(x) for x in t.split('\n')], 44, "v47", 42, L3, 18, "v46")
            L("s_lshr_b32 s15, s2, 3"); L(f"s_mul_i32 s100, s15, {18*9216}"); L("s_lshl_b32 s101, s71, 1"); L("s_add_u32 s100, s100, s101")
            L("s_add_u32 s101, s100, 1024"); L("s_cmp_eq_u32 s73, 0"); L("s_cselect_b32 s100, s100, 0x40000000"); L("s_cselect_b32 s101, 0x40000000, s101")
    for o in late: k(o)
    FUSE = 'fuse' in OPT
    if 'pc' in OPT and not FUSE: pf_code(k, "red_kernel", 42, 82, s3=15)
    SEL, vRA, vHA, vOA, vPA, vP, vFA, vFV = 240, 248, 249, 250, 251, 252, 253, 254
    sFL, sPL, sRP, sRH, sCNT = "s82", "s83", "s4", "s5", "s6"
    AT = [int(x) for x in os.environ.get('AT', '97,98,102,106,111,115,120,122,122').split(',')]
    TS0, TS1, TF, TP, THR = [int(os.environ.get(n, d)) for n, d in (('TS0', 22), ('TS1', 76), ('TF', 84), ('TP', 92), ('THR', 90))]
    CA = 80; vG = [100, 101, 102, 103, 104]; SN = 36
    def pdata(n, i): return A(144 + 16*n + 4*i, 4) if n < 7 else V(176 + 16*(n-7) + 4*i, 4)
    def pload(n, i): return f"buffer_load_dwordx4 {pdata(n, i)}, v{vG[n//2]}, s[16:19], s{40+i} offen offset:{2048*(n%2)} sc1"
    poll = f"buffer_load_dword v{vP}, v{vPA}, s[16:19], {sPL} offen sc1"
    tc = []; tc2 = []
    if FUSE:
        k("s_load_dwordx2 s[8:9], s[0:1], 64")
        for i in range(4): k(f"v_mov_b32 v{SN+i}, -1")
        k("s_mov_b32 s12, s70")
        T = tc.append
        T(f"v_and_b32 v255, 1, v2"); T("v_lshlrev_b32 v255, 4, v255"); T(f"v_mov_b32 v{vFV}, 0x3f80"); T(f"v_lshlrev_b32 v255, v255, v{vFV}"); T(f"v_lshrrev_b32 v{vFV}, 1, v2")
        for d in range(8): T(f"v_cmp_eq_u32 vcc, {d}, v{vFV}"); T(f"v_cndmask_b32 v{SEL+d}, 0, v255, vcc")
        T(f"v_lshlrev_b32 v{vHA}, 4, v2"); T("s_lshl_b32 s15, s3, 8"); T(f"v_add_u32 v{vHA}, s15, v{vHA}"); T(f"v_mul_u32_u24 v{vRA}, 2359296, v3"); T(f"v_add_u32 v{vRA}, v{vRA}, v{vHA}")
        T(f"v_mov_b32 v255, {INV}")
        T("v_cmp_eq_u32 vcc, 0, v1"); T(f"v_cndmask_b32_e64 v{vFA}, v255, 0, vcc"); T(f"v_lshlrev_b32 v{vPA}, 2, v2")
        T(f"v_mul_u32_u24 v{vOA}, 1152, v2"); T("v_and_b32 v255, 1, v3"); T(f"v_lshl_add_u32 v{vOA}, v255, 5, v{vOA}"); T(f"v_lshl_add_u32 v{vHA}, v255, 3, v{vHA}")
        T("v_lshrrev_b32 v255, 1, v3"); T(f"v_lshl_add_u32 v{vOA}, v255, 7, v{vOA}"); T(f"v_lshl_add_u32 v{vHA}, v255, 11, v{vHA}"); T("s_lshl_b32 s15, s3, 3"); T(f"v_add_u32 v{vOA}, s15, v{vOA}")
        T(f"s_lshl_b32 {sFL}, s14, 2"); T(f"s_add_u32 {sPL}, {sFL}, s11"); T(f"s_add_u32 {sFL}, {sFL}, s3"); T(f"s_lshl_b32 {sFL}, {sFL}, 5"); T("s_lshl_b32 s15, s10, 1"); T(f"s_add_u32 {sFL}, {sFL}, s15"); T(f"s_add_u32 {sFL}, {sFL}, s11"); T(f"s_lshl_b32 {sFL}, {sFL}, 2"); T(f"s_add_u32 {sFL}, {sFL}, {FLG}")
        T("s_lshr_b32 s15, s10, 2"); T("s_lshl_b32 s15, s15, 1"); T(f"s_add_u32 {sPL}, {sPL}, s15"); T(f"s_lshl_b32 {sPL}, {sPL}, 7"); T(f"s_add_u32 {sPL}, {sPL}, {FLG}")
        T("s_lshl_b32 s7, s14, 3"); T("s_add_u32 s7, s7, s10"); T(f"s_mul_i32 {sRH}, s7, 18"); T(f"s_add_u32 {sRH}, {sRH}, s11"); T(f"s_lshl_b32 {sRH}, {sRH}, 10"); T(f"s_add_u32 {sRP}, {sRH}, {PART}"); T(f"s_add_u32 {sRH}, {sRH}, {HR}")
        T("s_mul_i32 s7, s7, 18432"); T("s_lshl_b32 s15, s11, 6"); T("s_add_u32 s7, s7, s15"); T(f"s_mov_b32 {sCNT}, 20000")
        T(f"v_mov_b32 v{vFV}, 1")
        U = tc2.append
        U("s_mov_b32 s20, s8"); U("s_mov_b32 s21, s9"); U("s_mov_b32 s22, 2359296"); U("s_mov_b32 s23, 0x20000")
        for i in range(4): U(f"s_add_u32 s{40+i}, {sRP}, {i*4*2359296}")
        for p in range(5): U(f"v_add_u32 v{vG[p]}, {p*4096}, v{vRA}")
    rs = []
    R = rs.append
    for tt in range(4):
        t = TMP + 4*tt; c = C2[tt]; d = C1[tt]
        R(f"v_cndmask_b32_e64 v{t}, v{t}, v{t+1}, s[76:77]"); R(f"v_cndmask_b32_e64 v{t+2}, v{t+2}, v{t+3}, s[76:77]"); R(f"v_cndmask_b32_e64 v{t}, v{t}, v{t+2}, s[78:79]"); R(f"v_cndmask_b32_e64 v{c}, 0, v{t}, s[80:81]")
        R(f"v_mov_b32 v{t}, v{c}"); R(f"v_permlane32_swap_b32 v{c}, v{t}"); R(f"v_add_f32 v{c}, v{c}, v{t}")
        R(f"v_mov_b32 v{t}, v{c}"); R(f"v_permlane16_swap_b32 v{c}, v{t}"); R(f"v_add_f32 v{c}, v{c}, v{t}")
        R(f"v_mul_f32 v{c}, 0x3ae38e39, v{c}"); R(f"v_cvt_pk_bf16_f32 v{c}, v{c}, v{c}"); R(f"v_lshlrev_b32 v{c}, 16, v{c}")
        R(f"v_add_f32 v{c}, 0x3727c5ac, v{c}"); R(f"v_cvt_pk_bf16_f32 v{c}, v{c}, v{c}"); R(f"v_lshlrev_b32 v{c}, 16, v{c}")
        R(f"v_sqrt_f32 v{c}, v{c}"); R(f"v_cvt_pk_bf16_f32 v{c}, v{c}, v{c}"); R(f"v_lshlrev_b32 v{c}, 16, v{c}")
        R(f"v_rcp_f32 v{d}, v{c}"); R(f"v_mul_f32 v{c}, v{c}, v{c}"); R(f"v_mul_f32 v{d}, {LOG2E | 0x80000000}, v{d}")
    fq = []
    def conflicts(I, J):
        return bool((set(I.rd) | set(I.wr)) & set(J.wr)) or bool(set(I.wr) & set(J.rd))
    def take(budget, allow_ds, allow_vm=True, only_vm=False):
        for i, I in enumerate(fq[:28]):
            if only_vm and I.cls != 'vmem': continue
            if cost(I) > budget: continue
            if I.cls == 'vmem' and not allow_vm: continue
            if I.cls == 'ds' and not allow_ds: continue
            if any(conflicts(I, J) for J in fq[:i]): continue
            if I.cls == 'vmem' and any(J.cls == 'vmem' for J in fq[:i]): continue
            return fq.pop(i)
        return None
    def flush(tags):
        n = 0
        last = max([i for i, I in enumerate(fq) if I.tag in tags] + [-1])
        for i in range(last + 1): k.add(fq.pop(0)); n += 1
        return n
    def emit_d(o, t):
        if isinstance(o, tuple): k.wait_vm(o[1])
        else: k(o, tag=t)
    def barrier(b):
        for e in list(held):
            if e[0] <= b: held.remove(e); free.append(e[1])
        for j in range(9):
            if b > (73 + j if j < 6 else (sP67 if j < 8 else sP8)): prel.add(PB + j)
        last = max([i for i, e in enumerate(dma) if e[2] <= b] + [-1])
        if last >= 0: log.append((b, "dmaforce", last + 1))
        for i in range(last + 1): o, t, _ = dma.pop(0); emit_d(o, t)
        tags = set(f"{u[0]}{u[1]}" for u in units if pb(u[2] - 1) == b)
        k.wait_both(tags if 'novw' not in OPT else set(), 'all')
        if 'nobar' not in OPT: k("s_barrier")
    dma = []; log = []
    sentq = [(n, tt) for n in range(9) for tt in range(4)]
    k.stamp(1)
    barrier(-1)
    k.stamp(2)
    for o in reads_for(0): k(o, tag="rd")
    done2 = set(); gap = 0; lastvm = -100; lastm0 = -100
    VSP0, VSP1, VSP2, DMAC, DSC, PRO = [int(os.environ.get(n, d)) for n, d in (('VSP0', 3), ('VSP1', 7), ('VSP2', 4), ('DMAC', 4), ('DSC', 4), ('PRO', 16))]
    for s in range(NS):
        if s in (18, 36, 54, 72):
            dl = {18: {"late"}, 36: {"silu0"}, 54: {"silu1"}, 72: {"silu2"}}[s]
            n = flush(dl)
            if n: log.append((s, "flush", n))
            fq += silu(s // 18 - 1)
        if s == 40: fq += [Ins(o, "tc") for o in tc]
        if FUSE:
            while sentq and TS0 + (36 - len(sentq)) * (TS1 - TS0) // 36 <= s:
                n, tt = sentq.pop(0)
                dma.append((f"buffer_store_dwordx4 {V(SN,4)}, v{vS[tt]}, s[16:19], s12 offen offset:{2048*(n%2)} sc1", None, 1000))
                if n % 2 and tt == 3: dma.append(("s_add_u32 s12, s12, 4096", None, 1000))
                if not sentq: dma[-1] = (dma[-1][0], "sent", 1000)
            if s == TF:
                assert not sentq and not any(e[1] == 'sent' for e in dma) and not any(I.tag == 'tc' for I in fq)
                dma[0:0] = [(("waitvm", "sent"), None, 1000), (f"buffer_store_dword v{vFV}, v{vFA}, s[16:19], {sFL} offen sc1", None, 1000)]
            if s == TP: dma[0:0] = [(poll, None, 1000)]
            if s == min(AT[0], NS - 1): dma.append((f"v_cmp_le_u32_e64 s[76:77], 1, v{vP}", None, 1000))
            for n in range(9):
                if s == AT[n]: dma += [(pload(n, i), None, 1000) for i in range(4)]
            if s == THR:
                assert not any(I.tag in ('silu4', 'silu3', 'tc') for I in fq) and s > sP8
                fq += [Ins(o, "tc") for o in tc2]
                for p in range(5): dma += [(f"buffer_load_dwordx2 {V(CA+4*p+2, 2)}, v{vHA}, s[16:19], {sRH} offen", None, 1000), (f"s_add_u32 {sRH}, {sRH}, 4096", None, 1000)]
            if s == THR + 8:
                for p in range(5):
                    c = CA + 4*p
                    fq += [Ins(o, "tc") for o in (f"v_lshlrev_b32 v{c}, 16, v{c+2}", f"v_and_b32 v{c+1}, 0xffff0000, v{c+2}", f"v_lshlrev_b32 v{c+2}, 16, v{c+3}", f"v_and_b32 v{c+3}, 0xffff0000, v{c+3}")]
        if s == S2: fq += silu(4)
        if s == sP67: log.append((s, "flush3", flush({"silu3"})))
        if s == sP8: log.append((s, "flush4", flush({"silu4"})))
        if s >= S2:
            for par in range(2):
                i = 2*(s - S2) + par
                if i < 81 and O2[i][1] == 0 and O2[i][0] > defer:
                    n = flush({f"epi{O2[i][0] - defer - 1}"})
                    if n: log.append((s, "flushepi", n))
        if 'k3w' in OPT:
            if s == int(os.environ.get('T13', -1)) and L3: dma += [("buffer_load_dword v46, v44, s[20:23], s100 offen", None, 1000), ("buffer_load_dword v47, v44, s[24:27], s101 offen", None, 1000)]
            for i, (ts, pz, ln) in enumerate(W2W):
                if s == int(ts): dma.append((f"buffer_load_dword v43, v{[45, 35, 36, 41][i]}, s[32:35], s12 offen", None, 1000))
        if s in (18, 72, S2) and not (FUSE and s == S2): k.stamp({18: 3, 72: 4, S2: 5}[s])
        if s in B: barrier(s)
        else: k.wait_lg("rd")
        lds = reads_for(s + 1) if s + 1 < NS else []
        if 73 <= s <= 78: lds += [f"ds_read_b128 {pf(s-73, tt)}, v{vR[((PB+s-73)*8192)//65536]} offset:{((PB+s-73)*8192) % 65536 + 1024*tt}" for tt in range(4)]
        pj = [6, 7] if s == sP67 else ([8] if s == sP8 else [])
        for j in pj: lds = [f"ds_read_b128 {pf(j, tt)}, v{vR[((PB+j)*8192)//65536]} offset:{((PB+j)*8192) % 65536 + 1024*tt}" for tt in range(4)] + lds
        cap = int(os.environ.get('CAP0', 3)) if s < 18 else int(os.environ.get('CAP1', 2))
        T13 = int(os.environ.get('T13', -1)); PZ13 = int(os.environ.get('PZ13', 0))
        if not (any(int(ts) <= s < int(ts) + int(pz) for ts, pz, ln in W2W) or T13 <= s < T13 + PZ13): dma += issue(s, cap - (sum(1 for e in dma if e[1]) + 1) // 2)
        if 'la' in OPT: log.append((s, units[upos][2] - s if upos < len(units) else -1))
        if 'nodma' in OPT: dma.clear()
        if 'nolds' in OPT: lds = []
        M = mfmas(s)
        for gi, m in enumerate(M):
            k(m)
            if s == 17 and gi == 7: fq += [Ins(o, "rs") for o in rs]
            if s >= S2:
                i = 2*(s - S2) + gi // 8
                if gi % 8 == 7 and O2[i][1] == 8: fq += epi(O2[i][0])
            budget = 8
            if gi == len(M) - 1: budget = 0 if (s + 1) in B else 4
            left = len(M) - gi
            nl = 2 if len(lds) > max(left - 5, 0) else 1
            used_ds = False
            while lds and nl > 0 and (budget >= 4 or gi == len(M) - 1):
                k(lds.pop(0), tag="rd"); budget -= DSC; nl -= 1; used_ds = True
            if gi == len(M) - 1:
                while lds: k(lds.pop(0), tag="rd")
            gap += 1
            space = VSP0 if s < 18 else (VSP1 if s < S2 else VSP2)
            if 'stprio' in OPT and budget >= 4 and gap - lastvm >= space:
                I = take(budget, False, True, True)
                if I is not None: k.add(I); budget -= cost(I); lastvm = gap
            WAR = int(os.environ.get('WAR', 1))
            while dma and budget >= 4:
                isv = isinstance(dma[0][0], str) and dma[0][0].startswith('buffer')
                if gap - lastvm < (space if isv else space - WAR): break
                if isv and gap == lastm0: break
                o, t, _ = dma.pop(0); emit_d(o, t); budget -= (DMAC if isv else 4)
                if isv: lastvm = gap; break
                if 'm0' in o: lastm0 = gap
                if WAR >= 100: break
            while budget >= 4:
                I = take(budget, allow_ds=(not used_ds and gi < len(M) - 4), allow_vm=(gap - lastvm >= space))
                if I is None: break
                k.add(I); budget -= cost(I)
                if I.cls == 'ds': used_ds = True
                if I.cls == 'vmem': lastvm = gap
    k.stamp(6)
    log.append(("end", "flush", flush({f"epi{n}" for n in range(9)})))
    assert not fq and upos == len(units)
    if FUSE:
        log.append(("end", "dma", len(dma)))
        for o, t, _ in dma: emit_d(o, t)
        for n in range(9):
            if AT[n] >= NS:
                for i in range(4): k(pload(n, i))
        cnt = f"s_sub_u32 {sCNT}, {sCNT}, 1\n  s_cmp_lt_i32 {sCNT}, 0"
        k("s_cmp_eq_u64 s[76:77], -1\ns_cbranch_scc1 ffn_fo")
        k.raw(f"ffn_fp:\n  {poll}\n  s_waitcnt vmcnt(0)\n  v_cmp_le_u32 vcc, 1, v{vP}\n  s_nop 1\n  s_cmp_eq_u64 vcc, -1\n  s_cbranch_scc1 ffn_fq\n  {cnt}\n  s_cbranch_scc0 ffn_fp\nffn_fq:")
        k.raw("  " + "\n  ".join(pload(n, i) for n in range(9) for i in range(4)) + "\n  s_waitcnt vmcnt(0)\nffn_fo:")
        k.stamp(5)
        OB = 48
        def red(p):
            o = V(OB + 4*p, 4)
            return [MF(o, V(SEL + 4*(n%2), 4), pdata(n, i), o if (i or n % 2) else V(CA + 4*p, 4)) for n in (2*p, 2*p+1) if n < 9 for i in range(4)]
        def chk(p):
            d = OB + 4*p; z = "s_cmp_eq_u64 vcc, 0" if p < 4 else "s_cmp_eq_u32 vcc_lo, 0"
            k(f"v_cmp_u_f32 vcc, v{d}, v{d}\n{z}\ns_cbranch_scc1 ffn_so{p}")
            k.raw(f"ffn_sc{p}:\n  " + "\n  ".join(pload(n, i) for n in (2*p, 2*p+1) if n < 9 for i in range(4)) + "\n  s_waitcnt vmcnt(0)\n  " + "\n  ".join(red(p))
                  + f"\n  s_nop 7\n  s_nop 3\n  v_cmp_u_f32 vcc, v{d}, v{d}\n  s_nop 1\n  {z}\n  s_cbranch_scc1 ffn_so{p}\n  {cnt}\n  s_cbranch_scc0 ffn_sc{p}\nffn_so{p}:")
            k(f"v_cvt_pk_bf16_f32 v{d}, v{d}, v{d+1}\nv_cvt_pk_bf16_f32 v{d+1}, v{d+2}, v{d+3}")
            if p == 4: k("s_mov_b64 exec, 0xffffffff")
            k(f"buffer_store_dwordx2 {V(d,2)}, v{vOA}, s[20:23], s7 offen offset:{256*p}")
            if k.prof is not None and p in (2, 3): k(f"s_mov_b32 s{76+p}, {sCNT}")
        for p in range(3):
            for m in red(p): k(m)
        for p in range(3): chk(p)
        for p in (3, 4):
            for m in red(p): k(m)
            chk(p)
        if k.prof is not None:
            k(f"s_sub_u32 s86, s79, {sCNT}\ns_sub_u32 s79, s78, s79\ns_sub_u32 s78, 20000, s78\ns_lshl_b32 s79, s79, 16\ns_or_b32 s87, s78, s79")
    k.label("ffn_end")
    k("s_endpgm")
    k.log = log
    return k

def k4():
    k = Kern("red_kernel", vgpr=96, lds=0, block=576, grid=256)
    k("s_cmp_ge_u32 s2, 256\ns_cbranch_scc1 red_end")
    k("s_load_dwordx2 s[12:13], s[0:1], 80\ns_load_dwordx2 s[4:5], s[0:1], 64")
    k("v_and_b32 v1, 63, v0\nv_lshrrev_b32 v2, 6, v0\nv_readfirstlane_b32 s3, v2")
    k("v_and_b32 v3, 7, v1\nv_bfe_u32 v4, v1, 3, 1\nv_lshrrev_b32 v5, 4, v1")
    k("v_lshlrev_b32 v6, 4, v3\nv_lshl_add_u32 v6, v4, 10, v6\nv_lshl_add_u32 v6, v5, 8, v6")
    k("s_lshr_b32 s6, s2, 1\ns_mul_i32 s6, s6, 18\ns_lshl_b32 s7, s3, 1\ns_add_u32 s6, s6, s7\ns_lshl_b32 s6, s6, 10\ns_and_b32 s7, s2, 1\ns_lshl_b32 s7, s7, 7\ns_add_u32 s6, s6, s7")
    k(f"s_add_u32 s7, s6, {HR}\ns_add_u32 s6, s6, {PART}")
    srd(k, 16, 12, WSSZ)
    for f in range(16):
        k(f"buffer_load_dwordx4 {V(16+4*f,4)}, v6, s[16:19], s6 offen\ns_add_u32 s6, s6, 2359296")
    k("buffer_load_dwordx4 v[80:83], v6, s[16:19], s7 offen")
    k("v_and_b32 v7, 15, v1\nv_lshrrev_b32 v8, 2, v7\nv_lshlrev_b32 v8, 1, v8\nv_and_b32 v9, 3, v7")
    k("v_and_b32 v10, 1, v9\nv_lshlrev_b32 v10, 4, v10\nv_mov_b32 v11, 0x3f80\nv_lshlrev_b32 v10, v10, v11\nv_lshrrev_b32 v9, 1, v9")
    for t in range(2):
        k(f"v_add_u32 v11, {t}, v8\nv_and_b32 v12, 3, v11\nv_lshrrev_b32 v11, 2, v11\nv_lshl_add_u32 v11, v11, 1, v9")
        k("v_cmp_eq_u32 vcc, v12, v5\nv_cndmask_b32 v12, 0, v10, vcc")
        for d in range(4):
            k(f"v_cmp_eq_u32 vcc, {d}, v11\nv_cndmask_b32 v{84+4*t+d}, 0, v12, vcc")
    srd(k, 20, 4, 2359296)
    k("v_mul_u32_u24 v7, 1152, v3\nv_lshl_add_u32 v7, v4, 6, v7\nv_lshl_add_u32 v7, v5, 4, v7\ns_mul_i32 s8, s2, 9216\ns_lshl_b32 s9, s3, 7\ns_add_u32 s8, s8, s9")
    for f in range(17):
        for t in range(2):
            c = V(8+4*t, 4)
            k(MF(c, V(84+4*t, 4), V(16+4*f, 4), c if f else "0"))
    for j in range(4): k(f"v_cvt_pk_bf16_f32 v{16+j}, v{8+2*j}, v{9+2*j}")
    k("buffer_store_dwordx4 v[16:19], v7, s[20:23], s8 offen")
    k.label("red_end")
    k("s_endpgm")
    return k
```

```python
XN   = 0x0000000
WF   = 0x0240000
WOF  = 0x0440000
MX   = 0x0500000
SSQ  = 0x0508000
KVP  = 0x0540000
PQL  = 0x06D0000
PQ   = 0x0800000
OF   = 0x0C00000
HC   = 0x0E80000
HR   = 0x1100000
PART = 0x1400000
FLG  = 0x3800000
PROF = 0x8000000
WSSZ = 0x10000000
INV  = 0x40000000
LOG2E = 0x3fb8aa3b

def srd(k, d, p, size):
    k(f"s_mov_b32 s{d}, s{p}\ns_mov_b32 s{d+1}, s{p+1}\ns_mov_b32 s{d+2}, {size}\ns_mov_b32 s{d+3}, 0x20000")

def bf16r(k, dst, src):
    k(f"v_cvt_pk_bf16_f32 {dst}, {src}, {src}\nv_lshlrev_b32 {dst}, 16, {dst}")

def V(a, n=1): return f"v{a}" if n == 1 else f"v[{a}:{a+n-1}]"
def A(a, n=1): return f"a{a}" if n == 1 else f"a[{a}:{a+n-1}]"
def MF(d, a, b, c): return f"v_mfma_f32_16x16x32_bf16 {d}, {a}, {b}, {c}"


CODE_SZ = {"attn1_kernel": 8192, "attn2_kernel": 4096, "attn3_kernel": 4096, "ffn_kernel": 40960, "red_kernel": 4096}
def pf_code(k, target, vt, st, nb=None, s3=None):
    nb = nb or CODE_SZ[target]
    n = (nb // 128 + 31) // 32
    lab = f"{k.name}_pc_{target}"
    s3 = st + 2 if s3 is None else s3
    k(f"s_getpc_b64 s[{st}:{st+1}]")
    k.raw(f"{lab}:")
    k(f"s_add_u32 s{st}, s{st}, {target}-{lab}\ns_addc_u32 s{st+1}, s{st+1}, 0")
    k(f"s_bfe_u32 s{s3}, s2, 0x50003\ns_mul_i32 s{s3}, s{s3}, {n*128}\nv_min_u32 v{vt}, {n-1}, v0\nv_lshlrev_b32 v{vt}, 7, v{vt}\nv_add_u32 v{vt}, s{s3}, v{vt}\nv_min_u32 v{vt}, {target}_codeend-{target}-4, v{vt}")
    k(f"global_load_dword v{vt+1}, v{vt}, s[{st}:{st+1}]")

def pf_w(k, which, vt, st, mod="", part=3):
    if part & 1: pf_w_setup(k, vt, st)
    if part & 2: pf_w_issue(k, which, vt, st, mod)
def pf_w_setup(k, vt, st):
    k(f"s_load_dwordx4 s[{st}:{st+3}], s[0:1], 40\ns_load_dwordx2 s[{st+8}:{st+9}], s[0:1], 56")
    k(f"v_mul_u32_u24 v{vt}, 7282, v0\nv_lshrrev_b32 v{vt}, 16, v{vt}\nv_mul_u32_u24 v{vt+1}, {9216-1152}, v{vt}\nv_lshl_add_u32 v{vt}, v0, 7, v{vt+1}\nv_lshlrev_b32 v{vt+1}, 7, v0")
    k(f"v_mov_b32 v{vt+2}, {INV}\nv_cmp_gt_u32 vcc, 162, v0\nv_cndmask_b32 v{vt}, v{vt+2}, v{vt}, vcc\nv_cndmask_b32 v{vt+1}, v{vt+2}, v{vt+1}, vcc")
    k(f"s_mov_b32 s{st+4}, s{st+2}\ns_mov_b32 s{st+5}, s{st+3}")
    for b in (0, 4, 8): k(f"s_mov_b32 s{st+b+2}, 5308416\ns_mov_b32 s{st+b+3}, 0x20000")
    k(f"s_and_b32 s{st+12}, s2, 7\ns_bfe_u32 s{st+13}, s2, 0x50003\ns_mul_i32 s{st+14}, s{st+13}, {18*9216}\ns_mul_i32 s{st+15}, s{st+12}, 1152\ns_add_u32 s{st+14}, s{st+14}, s{st+15}")
    k(f"s_mul_i32 s{st+15}, s{st+12}, 663552\ns_mul_i32 s{st+13}, s{st+13}, {162*128}\ns_add_u32 s{st+15}, s{st+15}, s{st+13}")
def pf_w_issue(k, which, vt, st, mod=""):
    if '1' in which: k(f"buffer_load_dword v{vt+3}, v{vt}, s[{st}:{st+3}], s{st+14} offen {mod}")
    if '3' in which: k(f"buffer_load_dword v{vt+4}, v{vt}, s[{st+4}:{st+7}], s{st+14} offen {mod}")
    if '2' in which: k(f"buffer_load_dword v{vt+5}, v{vt+1}, s[{st+8}:{st+11}], s{st+15} offen {mod}")

def pf13_addr(k, vd, vu, vt, L, rows, vinv, stride=9216):
    n = len(L); pack = sum(l << (4*i) for i, l in enumerate(L))
    k(f"v_mul_u32_u24 v{vd}, {65536 // n + 1}, {vu}\nv_lshrrev_b32 v{vd}, 16, v{vd}\nv_mul_u32_u24 v{vt}, {n}, v{vd}\nv_sub_u32 v{vt}, {vu}, v{vt}\nv_lshlrev_b32 v{vt}, 2, v{vt}")
    k(f"v_lshrrev_b32 v{vt}, v{vt}, {pack}".replace(f", {pack}", f", v{vt+1}").replace("v_lshrrev_b32", f"v_mov_b32 v{vt+1}, {pack}\nv_lshrrev_b32"))
    k(f"v_and_b32 v{vt}, 15, v{vt}\nv_mul_u32_u24 v{vd}, {stride}, v{vd}\nv_lshl_add_u32 v{vd}, v{vt}, 7, v{vd}\nv_cmp_gt_u32 vcc, {rows*n}, {vu}\nv_cndmask_b32 v{vd}, {vinv}, v{vd}, vcc")

def touch_load(k, st): k(f"s_load_dwordx4 s[{st}:{st+3}], s[0:1], 40\ns_load_dwordx2 s[{st+8}:{st+9}], s[0:1], 56")
def touch_setup(k, L13, L2, vb, st):
    k(f"v_mov_b32 v{vb+2}, {INV}")
    if L13: pf13_addr(k, vb, "v0", vb+3, L13, 18, f"v{vb+2}")
    if L2: pf13_addr(k, vb+1, "v0", vb+3, L2, 18, f"v{vb+2}", 1152)
    k(f"s_and_b32 s{st+14}, s2, 7\ns_bfe_u32 s{st+15}, s2, 0x50003\ns_mul_i32 s{st+12}, s{st+15}, {18*9216}\ns_mul_i32 s{st+13}, s{st+14}, 1152\ns_add_u32 s{st+12}, s{st+12}, s{st+13}")
    k(f"s_mul_i32 s{st+13}, s{st+14}, 663552\ns_mul_i32 s{st+15}, s{st+15}, 20736\ns_add_u32 s{st+13}, s{st+13}, s{st+15}")
    k(f"s_mov_b32 s{st+4}, s{st+2}\ns_mov_b32 s{st+5}, s{st+3}")
    for b in (0, 4, 8): k(f"s_mov_b32 s{st+b+2}, 5308416\ns_mov_b32 s{st+b+3}, 0x20000")
def touch_issue(k, L13, L2, vb, st):
    if L13: k(f"buffer_load_dword v{vb+3}, v{vb}, s[{st}:{st+3}], s{st+12} offen\nbuffer_load_dword v{vb+4}, v{vb}, s[{st+4}:{st+7}], s{st+12} offen")
    if L2: k(f"buffer_load_dword v{vb+5}, v{vb+1}, s[{st+8}:{st+11}], s{st+13} offen")
```

```python
import sys
sys.path.insert(0, 'dev')
from asmlib import *

from wsmap import *
from gen3 import k3, k4
from genf import af
import os
OPT = set(os.environ.get('OPT', '').split(','))
L0 = [int(c) for c in os.environ.get('L0', '0156')]
L1 = [int(c) for c in os.environ.get('L1', '23478')]
LA2, LA2W, LA3, LA3W = [[int(c) for c in os.environ.get(n, '')] for n in ('LA2', 'LA2W', 'LA3', 'LA3W')]

def k0():
    BS = 288; RAW = 128*BS; IS = 1056; DUM = RAW + 24*IS
    AF = 'af' in OPT
    k = Kern("prep_kernel", vgpr=256, lds=DUM + 16, block=256, grid=256 if AF else 248)
    def fill():
        if not AF: return
        k(f"s_lshl_b32 s64, s2, 14\ns_add_u32 s64, s64, {KVP}\nv_lshlrev_b32 v243, 4, v0")
        srd(k, 60, 12, WSSZ)
        for j in range(4): k(f"v_mov_b32 v{244+j}, -1")
        for j in range(4): k(f"buffer_store_dwordx4 v[244:247], v243, s[60:63], s64 offen sc1\ns_add_u32 s64, s64, 4096")
    if AF: k("s_cmp_ge_u32 s2, 256\ns_cbranch_scc1 prep_end")
    k("s_load_dwordx8 s[4:11], s[0:1], 0\ns_load_dwordx2 s[12:13], s[0:1], 80")
    k("s_getpc_b64 s[40:41]\nv_lshlrev_b32 v250, 5, v0\nv_min_u32 v250, prep_kernel_codeend-prep_kernel-64, v250\nglobal_load_dword v252, v250, s[40:41]")
    k("v_and_b32 v1, 63, v0\nv_lshrrev_b32 v2, 6, v0\nv_readfirstlane_b32 s3, v2")
    k("v_and_b32 v3, 15, v1\nv_lshrrev_b32 v4, 4, v1")
    k("v_lshlrev_b32 v5, 4, v1")
    k("v_mov_b32 v6, 0x40000000")
    if AF and 'pc' in OPT: pf_code(k, "attn_kernel", 248, 66)
    k("s_cmp_ge_u32 s2, 96\ns_cbranch_scc1 prep_notw")
    k("s_lshr_b32 s29, s2, 4\ns_bfe_u32 s28, s2, 0x10003\ns_and_b32 s30, s2, 3\ns_lshl_b32 s30, s30, 1\ns_add_u32 s28, s28, s30\ns_and_b32 s30, s2, 4\ns_lshl_b32 s30, s30, 1\ns_add_u32 s28, s28, s30")
    k("v_mul_u32_u24 v7, 13108, v1\nv_lshrrev_b32 v7, 16, v7")
    k("v_mul_u32_u24 v8, 5, v7\nv_sub_u32 v8, v1, v8")
    k("v_mul_u32_u24 v9, 21846, v7\nv_lshrrev_b32 v9, 16, v9")
    k("v_mul_u32_u24 v10, 3, v9\nv_sub_u32 v10, v7, v10")
    k("v_mul_u32_u24 v9, 3456, v9\nv_mul_u32_u24 v10, 1152, v10\nv_lshlrev_b32 v8, 4, v8\nv_add3_u32 v7, v9, v10, v8")
    k("s_mul_i32 s30, s28, 72\ns_and_b32 s30, s30, 0xfffffff0\ns_mul_i32 s31, s29, 331776\ns_add_u32 s30, s30, s31\ns_mul_i32 s31, s3, 13824\ns_add_u32 s30, s30, s31")
    k(f"s_mul_i32 s32, s3, {IS}\ns_add_u32 s32, s32, {RAW}")
    k("v_lshlrev_b32 v8, 2, v0\ns_mul_i32 s33, s28, 1296")
    k("v_mov_b32 v20, 0\nv_mov_b32 v21, 0\nv_mov_b32 v22, 0\nv_mov_b32 v23, 0\nv_lshlrev_b32 v9, 4, v0")
    for i in range(9): k(f"ds_write_b128 v9, v[20:23] offset:{4096*i}")
    srd(k, 24, 8, 20736); srd(k, 20, 6, 1990656)
    k("buffer_load_dword v16, v8, s[24:27], s33 offen\nbuffer_load_dword v17, v8, s[24:27], s33 offen offset:1024")
    for i in range(6):
        k(f"s_add_u32 m0, s32, {4*IS*i}\nbuffer_load_dwordx4 v7, s[20:23], s30 offen lds\ns_add_u32 s30, s30, {16*3456}")
    srd(k, 16, 12, WSSZ)
    k("s_and_b32 s34, s28, 1\ns_lshl_b32 s34, s34, 2")
    k(f"v_mov_b32 v24, {DUM}")
    for rnd, (e, ad) in enumerate((("v0", 26), ("v25", 27))):
        if rnd: k("v_add_u32 v25, 256, v0")
        k(f"v_cmp_lt_u32 vcc, 161, {e}\nv_cndmask_b32_e64 v10, 0, 1, vcc")
        k(f"v_mul_u32_u24 v11, 162, v10\nv_sub_u32 v11, {e}, v11")
        k("v_mul_u32_u24 v12, 7282, v11\nv_lshrrev_b32 v12, 16, v12")
        k("v_mul_u32_u24 v13, 9, v12\nv_sub_u32 v13, v11, v13")
        k("v_mul_u32_u24 v14, 18, v10\nv_add3_u32 v14, v14, v12, s34")
        k("v_lshrrev_b32 v15, 1, v13\nv_lshlrev_b32 v15, 5, v15\nv_and_b32 v13, 1, v13\nv_lshl_add_u32 v15, v13, 2, v15\nv_lshl_add_u32 v15, v10, 3, v15")
        k(f"v_mul_u32_u24 v14, {BS}, v14\nv_add_u32 v{ad}, v14, v15\nv_add_u32 v{ad+2}, {40*BS+16}, v{ad}")
        if rnd: k(f"v_cmp_gt_u32 vcc, 324, v25\nv_cndmask_b32 v{ad}, v24, v{ad}, vcc\nv_cndmask_b32 v{ad+2}, v24, v{ad+2}, vcc")
    k("v_cmp_lt_u32 vcc, 17, v0\nv_cndmask_b32_e64 v10, 0, 1, vcc\nv_mul_u32_u24 v11, 18, v10\nv_sub_u32 v11, v0, v11")
    k("v_lshl_add_u32 v12, v10, 4, v11\nv_add_u32 v12, 80, v12\nv_lshl_add_u32 v13, v10, 2, v11\nv_add_u32 v13, 50, v13")
    k("v_cmp_gt_u32 vcc, 16, v11\nv_cndmask_b32 v12, v13, v12, vcc")
    k(f"v_add_u32 v13, s34, v0\nv_add_u32 v13, 80, v13\nv_mul_u32_u24 v13, {BS}, v13\nv_lshl_add_u32 v30, v12, 1, v13")
    k("v_cmp_gt_u32 vcc, 36, v0\nv_cndmask_b32 v30, v24, v30, vcc\nv_mov_b32 v31, 0x3f80")
    k.stamp(1)
    k.wait_all(vm=False); k("s_barrier")
    k("ds_write_b16 v30, v31\nds_write_b32 v26, v16\nds_write_b32 v28, v16\nds_write_b32 v27, v17\nds_write_b32 v29, v17")
    k("v_lshrrev_b32 v10, 2, v3\nv_and_b32 v11, 3, v3")
    k(f"v_lshl_add_u32 v12, v4, 3, v10\nv_mul_u32_u24 v12, {BS}, v12\nv_lshl_add_u32 v12, v11, 3, v12\ns_lshl_b32 s35, s3, 5\nv_add_u32 v12, s35, v12")
    k(f"v_mul_u32_u24 v13, 240, v11\nv_mul_u32_u24 v14, {2*IS}, v10\nv_lshl_add_u32 v13, v4, 4, v13\nv_add_u32 v13, v13, v14\nv_add_u32 v13, {RAW}, v13")
    k(f"s_mul_i32 s36, s28, 18\ns_mul_i32 s37, s29, 3\ns_add_u32 s36, s36, s37\ns_mul_i32 s36, s36, 7\ns_add_u32 s36, s36, s3\ns_lshl_b32 s36, s36, 10\ns_add_u32 s36, s36, {WF}")
    k(f"s_add_u32 s37, s36, 4096\ns_cmp_lt_u32 s3, 3\ns_cselect_b32 s37, s37, {INV}")
    k.stamp(2)
    k.wait_all(); k("s_barrier")
    k.stamp(3)
    def rdB(s):
        for ts in range(2):
            for h in range(2):
                k(f"ds_read_b64_tr_b16 {V(32+16*ts+4*s+2*h,2)}, v12 offset:{(32*s+4*h)*BS+128*ts}")
    def rdA(db, s):
        for hf in range(2): k(f"ds_read_b128 {V(64+32*db+16*hf+4*s,4)}, v13 offset:{db*8*IS+hf*IS+s*64}")
    for s in range(4): rdB(s); rdA(0, s)
    for db in range(1, 3):
        for s in range(4): rdA(db, s)
    fill()
    for db in range(3):
        for s in range(4):
            for hf in range(2):
                for ts in range(2):
                    c = V(160+16*db+8*ts+4*hf, 4)
                    k(MF(c, V(64+32*db+16*hf+4*s,4), V(32+16*ts+4*s,4), c if s else "0"))
        if db:
            for ts in range(2):
                c = 160+16*(db-1)+8*ts; o = 208+8*(db-1)+4*ts
                for j in range(4): k(f"v_cvt_pk_bf16_f32 v{o+j}, v{c+2*j}, v{c+2*j+1}")
                k(f"buffer_store_dwordx4 {V(o,4)}, v5, s[16:19], s{36+ts} offen")
            k("s_add_u32 s36, s36, 7168\ns_add_u32 s37, s37, 7168")
    k.stamp(4)
    for ts in range(2):
        c = 160+32+8*ts; o = 208+16+4*ts
        for j in range(4): k(f"v_cvt_pk_bf16_f32 v{o+j}, v{c+2*j}, v{c+2*j+1}")
        k(f"buffer_store_dwordx4 {V(o,4)}, v5, s[16:19], s{36+ts} offen")
    k("s_endpgm")
    k.label("prep_notw")
    k("s_cmp_lt_u32 s2, 120\ns_cbranch_scc1 prep_wo\ns_cmp_ge_u32 s2, 248\ns_cbranch_scc1 " + ("prep_fill" if AF else "prep_end"))
    k("s_sub_u32 s35, s2, 120\ns_lshr_b32 s36, s35, 3\ns_and_b32 s37, s35, 3\ns_lshl_b32 s37, s37, 1\ns_bfe_u32 s38, s35, 0x10002\ns_add_u32 s37, s37, s38\ns_lshl_b32 s37, s37, 4\ns_add_u32 s37, s37, s36")
    k("v_lshrrev_b32 v7, 4, v0")
    k("v_mul_u32_u24 v8, 1152, v7\nv_lshl_add_u32 v8, v3, 4, v8")
    k("v_add_u32 v9, 1024, v8\nv_cmp_gt_u32 vcc, 8, v3\nv_cndmask_b32 v9, v6, v9, vcc")
    k("s_mul_i32 s28, s37, 18432")
    k("s_waitcnt lgkmcnt(0)")
    srd(k, 20, 4, 2359296)
    for j in range(4): k(f"buffer_load_dwordx4 {V(16+4*j,4)}, v8, s[20:23], s28 offen offset:{256*j}")
    k(f"buffer_load_dwordx4 v[32:35], v9, s[20:23], s28 offen")
    srd(k, 16, 12, WSSZ)
    if 'pc' in OPT and not AF: pf_code(k, "attn1_kernel", 250, 40)
    fill()
    k("v_xor_b32 v10, v7, v3\nv_lshlrev_b32 v10, 4, v10\nv_lshl_add_u32 v10, v3, 8, v10")
    k("s_lshl_b32 s29, s3, 2\nv_add_u32 v11, s29, v4\nv_xor_b32 v12, v3, v11\nv_lshlrev_b32 v12, 4, v12\nv_lshl_add_u32 v11, v11, 8, v12")
    k("s_mov_b32 s30, 0xffff0000")
    if 'k0w' in OPT:
        k("s_load_dwordx4 s[44:47], s[0:1], 40")
        pf13_addr(k, 84, "v0", 85, L0, 36, "v6")
        k(f"s_and_b32 s52, s2, 7\ns_mul_i32 s52, s52, 1152\ns_mul_i32 s53, s36, {36*9216}\ns_add_u32 s52, s52, s53")
        k("s_mov_b32 s48, s46\ns_mov_b32 s49, s47\ns_mov_b32 s46, 5308416\ns_mov_b32 s47, 0x20000\ns_mov_b32 s50, 5308416\ns_mov_b32 s51, 0x20000")
    k(f"s_lshl_b32 s33, s3, 10\ns_add_u32 s33, s33, s28\ns_add_u32 s34, s33, 16384\ns_cmp_lt_u32 s3, 2\ns_cselect_b32 s34, s34, {INV}")
    k(f"s_lshl_b32 s32, s37, 6\ns_add_u32 s32, s32, {MX}")
    k("v_lshlrev_b32 v13, 2, v7\nv_cmp_eq_u32 vcc, 0, v3\nv_cndmask_b32 v13, v6, v13, vcc")
    k("s_mov_b32 s31, 0x3ae38e39")
    for i in range(20):
        k(f"v_lshlrev_b32 v{40+2*i}, 16, v{16+i}\nv_and_b32 v{41+2*i}, s30, v{16+i}")
        if i == 1: k("v_add_f32 v80, v40, v41\nv_mul_f32 v82, v40, v40\nv_mul_f32 v83, v41, v41\nv_add_f32 v81, v42, v43\nv_fmac_f32 v82, v42, v42\nv_fmac_f32 v83, v43, v43")
        if i >= 2:
            a = 80 + (i % 2)
            k(f"v_add_f32 v{a}, v{a}, v{40+2*i}\nv_fmac_f32 v82, v{40+2*i}, v{40+2*i}\nv_add_f32 v{a^1}, v{a^1}, v{41+2*i}\nv_fmac_f32 v83, v{41+2*i}, v{41+2*i}")
    k("v_add_f32 v80, v80, v81\nv_add_f32 v82, v82, v83")
    for r in (8, 4, 2, 1):
        k(f"v_add_f32_dpp v80, v80, v80 row_ror:{r} row_mask:0xf bank_mask:0xf\nv_add_f32_dpp v82, v82, v82 row_ror:{r} row_mask:0xf bank_mask:0xf")
    k("v_mul_f32 v80, s31, v80\nv_mul_f32 v82, s31, v82\nv_fma_f32 v82, -v80, v80, v82\nv_max_f32 v82, 0, v82")
    k.stamp(1)
    bf16r(k, "v81", "v80"); bf16r(k, "v82", "v82")
    k("v_add_f32 v82, 0x3727c5ac, v82"); bf16r(k, "v82", "v82")
    k("v_sqrt_f32 v82, v82"); bf16r(k, "v82", "v82")
    k("v_rcp_f32 v82, v82\nv_mul_f32 v81, v81, v82")
    for i in range(20):
        k(f"v_fma_f32 v{40+2*i}, v{40+2*i}, v82, -v81\nv_fma_f32 v{41+2*i}, v{41+2*i}, v82, -v81\nv_cvt_pk_bf16_f32 v{16+i}, v{40+2*i}, v{41+2*i}")
        if i % 4 == 3: k(f"ds_write_b128 v10, {V(13+i,4)} offset:{4096*(i//4)}")
    k("buffer_store_dword v80, v13, s[16:19], s32 offen")
    k.stamp(2)
    k.wait_all(vm=False); k("s_barrier")
    for i in range(5): k(f"ds_read_b128 {V(16+4*i,4)}, v11 offset:{4096*i}")
    for i in range(4):
        k(f"buffer_store_dwordx4 {V(16+4*i,4)}, v5, s[16:19], s33 offen")
        k("s_add_u32 s33, s33, 4096")
    k("buffer_store_dwordx4 v[32:35], v5, s[16:19], s34 offen")
    if 'k0w' in OPT:
        k("buffer_load_dword v87, v84, s[44:47], s52 offen\nbuffer_load_dword v88, v84, s[48:51], s52 offen")
    k("s_endpgm")
    RS = 1056; TB = 32*RS
    k.label("prep_wo")
    k("s_cmp_ge_u32 s2, 114\ns_cbranch_scc1 prep_zero")
    k("s_sub_u32 s28, s2, 96")
    k("s_mul_i32 s29, s28, 36\ns_sub_u32 s30, s28, 16\ns_mul_i32 s30, s30, 288\ns_add_u32 s30, s30, 16")
    k("s_cmp_lt_u32 s28, 16\ns_cselect_b32 s29, s29, s30\ns_cselect_b32 s30, 18, 36\ns_cselect_b32 s31, 4, 72\ns_cselect_b32 s32, 2, 18")
    k("s_lshr_b32 s33, s3, 1\ns_mul_i32 s33, s33, s30\ns_add_u32 s29, s29, s33\ns_and_b32 s33, s3, 1\ns_mul_i32 s33, s33, s31\ns_lshl_b32 s33, s33, 1\ns_add_u32 s29, s29, s33")
    k("s_mul_i32 s29, s29, 1152\ns_mul_i32 s31, s31, 1152\ns_mul_i32 s32, s32, 1152")
    k(f"s_mul_i32 s34, s3, {8*RS}")
    k("s_waitcnt lgkmcnt(0)")
    srd(k, 20, 10, 663552)
    for kk in range(8):
        k("s_mov_b32 s35, s29")
        if kk >> 2: k("s_add_u32 s35, s35, s31")
        if (kk & 3) >> 1: k("s_add_u32 s35, s35, s32")
        if kk & 1: k("s_add_u32 s35, s35, 1152")
        k(f"s_add_u32 m0, s34, {kk*RS}\nbuffer_load_dwordx4 v5, s[20:23], s35 offen lds")
    k("v_lshrrev_b32 v7, 5, v1\nv_mul_lo_u32 v7, v7, s31\nv_bfe_u32 v8, v1, 4, 1\nv_mul_lo_u32 v8, v8, s32\nv_bfe_u32 v9, v1, 3, 1\nv_mul_u32_u24 v9, 1152, v9")
    k("v_add3_u32 v7, v7, v8, v9\nv_and_b32 v8, 7, v1\nv_lshl_add_u32 v7, v8, 4, v7")
    k(f"s_lshl_b32 s34, s3, 10\ns_add_u32 m0, s34, {TB-1024}\nbuffer_load_dwordx4 v7, s[20:23], s29 offen offset:1024 lds")
    srd(k, 16, 12, WSSZ)
    k("v_lshrrev_b32 v10, 2, v3\nv_and_b32 v11, 3, v3\nv_lshl_add_u32 v12, v4, 2, v10\ns_lshl_b32 s35, s3, 5")
    k(f"v_lshlrev_b32 v13, 3, v11\nv_add_u32 v13, s35, v13\nv_mul_u32_u24 v14, {RS}, v12\nv_add_u32 v14, v14, v13\nv_lshl_add_u32 v15, v12, 7, v13\nv_add_u32 v15, {TB}, v15")
    k(f"s_and_b32 s36, s3, 1\ns_lshl_b32 s37, s36, 4\nv_add_u32 v16, s37, v3\nv_lshlrev_b32 v17, 4, v4\nv_mul_u32_u24 v18, {RS}, v16\nv_add_u32 v18, v18, v17\nv_lshl_add_u32 v19, v16, 7, v17\nv_add_u32 v19, {TB}, v19")
    for j in range(4): k(f"v_mov_b32 v{20+j}, 0x3f803f80")
    k("v_lshl_add_u32 v24, v10, 4, v4\nv_lshlrev_b32 v24, 4, v24\nv_lshl_add_u32 v24, v11, 1, v24\ns_lshl_b32 s37, s36, 3\nv_add_u32 v24, s37, v24\nv_cmp_gt_u32 vcc, 2, v4\nv_cndmask_b32 v24, v6, v24, vcc")
    k(f"s_mul_i32 s38, s3, 18\ns_add_u32 s38, s38, s28\ns_lshl_b32 s38, s38, 10\ns_add_u32 s38, s38, {WOF}")
    k.stamp(1)
    k.wait_all(); k("s_barrier")
    k.stamp(2)
    for i in range(9):
        for h in range(2):
            if i < 8: k(f"ds_read_b64_tr_b16 {V(32+4*i+2*h,2)}, v14 offset:{h*16*RS+128*i}")
            else: k(f"ds_read_b64_tr_b16 {V(32+4*i+2*h,2)}, v15 offset:{h*2048}")
    for s in range(18):
        if s < 16: k(f"ds_read_b128 {V(72+4*s,4)}, v18 offset:{64*s}")
        else: k(f"ds_read_b128 {V(72+4*s,4)}, v19 offset:{64*(s-16)}")
    fill()
    for i in range(9):
        k(f"buffer_store_dwordx4 {V(32+4*i,4)}, v5, s[16:19], s38 offen\ns_add_u32 s38, s38, {4*18*1024}")
    for s in range(18): k(MF(V(28 if s % 2 else 20+4+0, 4) if False else "v[28:31]", "v[20:23]", V(72+4*s,4), "v[28:31]" if s else "0"))
    k("s_mov_b32 s31, 0x3ae38e39\nv_mul_f32 v28, s31, v28")
    bf16r(k, "v29", "v28")
    k("v_sub_f32 v28, v28, v29\nv_cmp_eq_u32 vcc, 0, v4\nv_cndmask_b32 v28, v28, v29, vcc\nv_cvt_pk_bf16_f32 v28, v28, v28")
    k(f"s_lshl_b32 s38, s28, 10\ns_add_u32 s38, s38, {WOF + 36*18*1024}\nbuffer_store_short v28, v24, s[16:19], s38 offen")
    k("s_endpgm")
    k.label("prep_zero")
    if AF:
        k.label("prep_fill")
        k("s_waitcnt lgkmcnt(0)")
        fill()
        k("s_endpgm")
    k("s_cmp_ge_u32 s2, 116\ns_cbranch_scc1 prep_end")
    k(f"s_sub_u32 s28, s2, 114\ns_lshl_b32 s28, s28, 12\ns_add_u32 s28, s28, {FLG}\nv_lshlrev_b32 v7, 4, v0\nv_mov_b32 v8, 0\nv_mov_b32 v9, 0\nv_mov_b32 v10, 0\nv_mov_b32 v11, 0\ns_waitcnt lgkmcnt(0)")
    srd(k, 16, 12, WSSZ)
    k("buffer_store_dwordx4 v[8:11], v7, s[16:19], s28 offen")
    k.label("prep_end")
    k("s_endpgm")
    return k


def a1():
    ROWS = 129024
    XR = 16; NX = 6; WB = 40; AC = 96; EP = 40; PK = 60; VV = 78
    TW = 'tw' in OPT
    k = Kern("attn1_kernel", vgpr=128, lds=159744, block=576 if TW else 512, grid=256)
    k("s_cmp_ge_u32 s2, 256\ns_cbranch_scc1 a1_end")
    k("s_load_dwordx2 s[12:13], s[0:1], 80")
    if TW or 'a1t' in OPT: k("s_load_dwordx4 s[44:47], s[0:1], 40\ns_load_dwordx2 s[52:53], s[0:1], 56")
    k("v_and_b32 v1, 63, v0\nv_lshrrev_b32 v2, 6, v0\nv_readfirstlane_b32 s3, v2")
    k("v_lshlrev_b32 v5, 4, v1")
    k("s_and_b32 s4, s2, 7\ns_lshr_b32 s5, s2, 3")
    if TW: k("s_cmp_eq_u32 s3, 8\ns_cbranch_scc1 a1_tw")
    k("s_and_b32 s6, s4, 3\ns_lshl_b32 s6, s6, 2\ns_and_b32 s7, s5, 3\ns_add_u32 s6, s6, s7")
    k("s_lshr_b32 s7, s4, 2\ns_lshl_b32 s7, s7, 3\ns_lshr_b32 s5, s5, 2\ns_add_u32 s7, s7, s5")
    k("s_lshl_b32 s8, s6, 3\ns_add_u32 s8, s8, s3")
    k(f"s_lshl_b32 s9, s3, 10\ns_mul_i32 s10, s7, 129024\ns_add_u32 s10, s10, {WF}")
    k(f"s_mul_i32 s11, s8, 18432")
    ROT = 'rot' in OPT
    if ROT:
        k("s_and_b32 s14, s6, 3\ns_mul_i32 s14, s14, 9\ns_lshr_b32 s14, s14, 1\ns_mul_i32 s15, s5, 9\ns_lshr_b32 s15, s15, 2\ns_add_u32 s14, s14, s15\ns_sub_u32 s15, s14, 18\ns_cmp_ge_u32 s14, 18\ns_cselect_b32 s14, s15, s14")
        k("s_add_u32 s33, s10, 129024\ns_add_u32 s34, s11, 18432\ns_mul_i32 s15, s14, 7168\ns_add_u32 s10, s10, s15\ns_lshl_b32 s15, s14, 10\ns_add_u32 s11, s11, s15")
    k("s_add_u32 s10, s10, s9")
    wrapw = "\ns_sub_u32 s14, s10, 129024\ns_cmp_ge_u32 s10, s33\ns_cselect_b32 s10, s14, s10" if ROT else ""
    if ROT: k(wrapw)
    srd(k, 16, 12, WSSZ)
    LA = int(os.environ.get('A1LA', 4)); GB = int(os.environ.get('A1GB', 2))
    assert LA < NX
    st = dict(di=0, xi=0)
    def ld(upto):
        ops = []
        while st['xi'] <= min(upto, 17):
            ks = st['xi']
            while st['di'] <= (7*min(ks + 1, 17) + 6) // 8:
                di = st['di']
                ops.append((f"s_add_u32 m0, s9, {8192*di}\nbuffer_load_dwordx4 v5, s[16:19], s10 offen lds\ns_add_u32 s10, s10, 8192" + wrapw, f"D{di}")); st['di'] += 1
            if ROT: ops.append((f"buffer_load_dwordx4 {V(XR+4*(ks%NX),4)}, v5, s[16:19], s11 offen\ns_add_u32 s11, s11, 1024\ns_sub_u32 s15, s11, 18432\ns_cmp_ge_u32 s11, s34\ns_cselect_b32 s11, s15, s11", None))
            else: ops.append((f"buffer_load_dwordx4 {V(XR+4*(ks%NX),4)}, v5, s[16:19], s11 offen offset:{1024*(ks%4)}" + ("\ns_add_u32 s11, s11, 4096" if ks % 4 == 3 else ""), None))
            st['xi'] += 1
        return ops
    for o, t in ld(LA - 1): k(o, tag=t)
    if 'pc' in OPT and not TW: pf_code(k, "attn2_kernel", 124, 40)
    if 'a1t' in OPT:
        k("s_and_b32 s48, s3, 3\nv_lshl_add_u32 v123, v1, 2, s48\nv_mov_b32 v122, 0x40000000")
        pf13_addr(k, 127, "v123", 120, L1, 18, "v122")
        k(f"s_mul_i32 s48, s4, 1152\ns_lshr_b32 s49, s2, 3\ns_mul_i32 s49, s49, {18*9216}\ns_add_u32 s48, s48, s49")
        k("s_cmp_lt_u32 s3, 4\ns_cselect_b32 s44, s44, s46\ns_cselect_b32 s45, s45, s47\ns_mov_b32 s46, 5308416\ns_mov_b32 s47, 0x20000")
    k("v_and_b32 v3, 15, v1\nv_lshrrev_b32 v4, 4, v1\nv_mov_b32 v6, 0x40000000")
    k("v_lshlrev_b32 v7, 4, v3\nv_lshl_add_u32 v8, v4, 10, v7\nv_lshl_add_u32 v9, v4, 3, v7\nv_cmp_gt_u32 vcc, 2, v4\nv_cndmask_b32 v8, v6, v8, vcc\nv_cndmask_b32 v9, v6, v9, vcc")
    k(f"s_lshl_b32 s20, s8, 5\ns_lshl_b32 s21, s7, 1\ns_add_u32 s20, s20, s21\ns_lshl_b32 s20, s20, 10\ns_add_u32 s20, s20, {PQ}")
    k(f"s_lshl_b32 s21, s8, 4\ns_add_u32 s21, s21, s7\ns_lshl_b32 s21, s21, 8\ns_add_u32 s21, s21, {PQL}")
    k(f"s_mul_i32 s22, s3, 3840\ns_add_u32 s22, s22, {ROWS}\nv_mul_u32_u24 v10, 240, v3\nv_add_u32 v10, s22, v10")
    k("v_mul_u32_u24 v11, 80, v4\nv_add_u32 v11, v11, v10\nv_subrev_u32 v11, 160, v11")
    k("v_lshl_add_u32 v12, v4, 3, v10\nv_mul_u32_u24 v13, 40, v4\nv_add_u32 v13, v13, v10")
    k(f"s_mov_b32 s24, {LOG2E}\ns_mov_b32 s25, {LOG2E | 0x80000000}")
    k("s_cmp_ge_u32 s3, 3\ns_cselect_b32 s26, 1, 0\ns_mul_i32 s27, s26, 3\ns_sub_u32 s27, s3, s27")
    k(f"s_mul_i32 s28, s26, 80\ns_lshl_b32 s29, s27, 3\ns_cmp_lt_u32 s27, 2\ns_cselect_b32 s29, s29, 64\ns_cselect_b32 s30, 16, 0\ns_add_u32 s28, s28, s29\ns_add_u32 s28, s28, {ROWS}")
    k(f"s_mul_i32 s29, s26, 40\ns_add_u32 s29, s29, {ROWS+160}")
    k("v_lshrrev_b32 v7, 2, v3\nv_and_b32 v10, 3, v3\nv_lshl_add_u32 v7, v4, 3, v7\nv_mul_u32_u24 v7, 240, v7")
    k("v_mul_u32_u24 v124, s30, v10\nv_add3_u32 v124, v124, v7, s28")
    k("v_add_u32 v126, s29, v7\nv_lshl_add_u32 v125, v10, 3, v126")
    k(f"s_lshl_b32 s31, s7, 4\ns_add_u32 s31, s31, s6\ns_mul_i32 s31, s31, 6400\ns_mul_i32 s32, s26, 3200\ns_add_u32 s31, s31, s32\ns_add_u32 s31, s31, {KVP}")
    def reads(ks):
        out = []
        for t in range(7):
            off = (ks*7 + t) * 1024
            base = "v5" if off < 65536 else "v14"
            out.append(f"ds_read_b128 {V(WB+28*(ks%2)+4*t,4)}, {base} offset:{off % 65536}")
        return out
    def mfmas(ks):
        return [MF(V(AC+4*t, 4), V(WB+28*(ks%2)+4*t,4), V(XR+4*(ks%NX),4), V(AC+4*t, 4) if ks else "0") for t in range(7)]
    k("v_add_u32 v14, 0x10000, v5")
    nbar = 0
    def bar(upto):
        nonlocal nbar
        k.wait_vm(f"D{(7*min(upto, 17) + 6) // 8}"); k("s_barrier"); nbar += 1
    bar(0)
    k.stamp(1)
    for o in reads(0): k(o)
    for ks in range(18):
        if ks % GB == 0 and ks + 1 < 18: bar(ks + GB)
        if ks == 8: k.stamp(2)
        if ks == int(os.environ.get('A1T', 16)) and 'a1t' in OPT: k("buffer_load_dword v15, v127, s[44:47], s48 offen")
        R = reads(ks + 1) if ks + 1 < 18 else []
        L = ld(ks + LA)
        M = mfmas(ks)
        for o in R[:2]: k(o)
        R = R[2:]
        for i, m in enumerate(M):
            k(m)
            if R: k(R.pop(0))
            if L and i >= 2: o, t = L.pop(0); k(o, tag=t)
        for o, t in L: k(o, tag=t)
    k.stamp(3)
    A = lambda i: f"v{AC+i}"
    k(f"v_cvt_pk_bf16_f32 v{VV}, {A(20)}, {A(21)}\nv_cvt_pk_bf16_f32 v{VV+1}, {A(22)}, {A(23)}\nv_cvt_pk_bf16_f32 v{VV+2}, {A(24)}, {A(25)}\nv_cvt_pk_bf16_f32 v{VV+3}, {A(26)}, {A(27)}")
    k(f"v_cvt_pk_bf16_f32 v{VV+4}, {A(18)}, {A(19)}\nv_mov_b32 v{VV+5}, 0x3f80")
    k(f"ds_write_b64 v12, {V(VV,2)} offset:160\nds_write_b64 v12, {V(VV+2,2)} offset:200")
    k(f"s_mov_b64 exec, 0xffffffff\nds_write_b64 v13, {V(VV+4,2)} offset:192\ns_mov_b64 exec, -1")
    k(f"v_max3_f32 v84, {A(0)}, {A(1)}, {A(2)}\nv_min3_f32 v85, {A(0)}, {A(1)}, {A(2)}")
    for j in range(7): k(f"v_max3_f32 v84, v84, {A(3+2*j)}, {A(4+2*j)}\nv_min3_f32 v85, v85, {A(3+2*j)}, {A(4+2*j)}")
    k(f"v_max_f32 v84, v84, {A(17)}\nv_min_f32 v85, v85, {A(17)}")
    k("v_mul_f32 v86, s25, v84\nv_mul_f32 v87, s24, v85")
    for f in range(18):
        k(f"v_fma_f32 v{EP+f}, {A(f)}, s24, v86\nv_fma_f32 {A(f)}, {A(f)}, s25, v87")
        k(f"v_exp_f32 v{EP+f}, v{EP+f}\nv_exp_f32 {A(f)}, {A(f)}")
        if f == 1: k(f"v_add_f32 v84, v{EP}, v{EP+1}\nv_add_f32 v85, {A(0)}, {A(1)}")
        if f >= 2: k(f"v_add_f32 v84, v84, v{EP+f}\nv_add_f32 v85, v85, {A(f)}")
    k("v_rcp_f32 v84, v84\nv_rcp_f32 v85, v85")
    for j in range(9):
        k(f"v_mul_f32 v{EP+2*j}, v{EP+2*j}, v84\nv_mul_f32 v{EP+1+2*j}, v{EP+1+2*j}, v84\nv_cvt_pk_bf16_f32 v{PK+j}, v{EP+2*j}, v{EP+1+2*j}")
    for j in range(9):
        k(f"v_mul_f32 {A(2*j)}, {A(2*j)}, v85\nv_mul_f32 {A(2*j+1)}, {A(2*j+1)}, v85\nv_cvt_pk_bf16_f32 v{PK+9+j}, {A(2*j)}, {A(2*j+1)}")
    k("s_mov_b32 exec_lo, 0")
    for j in range(4): k(f"ds_write_b128 v11, {V(PK+4*j,4)} offset:{16*j}")
    k(f"ds_write_b64 v11, {V(PK+16,2)} offset:64")
    k("s_mov_b32 exec_lo, -1")
    for j in range(4): k(f"buffer_store_dwordx4 {V(PK+4*j,4)}, v8, s[16:19], s20 offen offset:{256*j}")
    k(f"buffer_store_dwordx2 {V(PK+16,2)}, v9, s[16:19], s21 offen")
    k.stamp(4)
    k.wait_all(vm=False); k("s_barrier"); nbar += 1
    k.stamp(5)
    k("s_cmp_ge_u32 s3, 6\ns_cbranch_scc1 a1_end")
    FA, FB, FX, C0 = 16, 80, 96, 112
    for s in range(4):
        for h in range(2):
            o = (32*s + 4*h) * 240
            k(f"ds_read_b64_tr_b16 {V(FA+4*s+2*h,2)}, v124 offset:{o}\nds_read_b64_tr_b16 {V(FB+4*s+2*h,2)}, v125 offset:{o}\nds_read_b64_tr_b16 {V(FX+4*s+2*h,2)}, v126 offset:{o+32}")
    for s in range(4):
        k(MF("v[112:115]", V(FA+4*s,4), V(FB+4*s,4), "v[112:115]" if s else "0"))
        k(MF("v[116:119]", V(FA+4*s,4), V(FX+4*s,4), "v[116:119]" if s else "0"))
    k("s_cmp_eq_u32 s27, 2\ns_cbranch_scc1 a1_mt2")
    k("s_lshl_b32 s32, s27, 4\nv_lshl_add_u32 v41, v1, 5, s32")
    k("v_lshl_add_u32 v42, v3, 2, v4\nv_lshl_add_u32 v42, v42, 5, s32\nv_add_u32 v42, 2560, v42\nv_cmp_gt_u32 vcc, 4, v3\nv_cndmask_b32 v42, v6, v42, vcc")
    k("buffer_store_dwordx4 v[112:115], v41, s[16:19], s31 offen\nbuffer_store_dwordx4 v[116:119], v42, s[16:19], s31 offen")
    k("s_endpgm")
    k.label("a1_mt2")
    k("v_xor_b32 v43, s26, v4\nv_lshl_add_u32 v43, v3, 1, v43\nv_lshlrev_b32 v43, 4, v43")
    k("v_add_u32 v41, 2048, v43\nv_add_u32 v42, 3072, v43\nv_cmp_gt_u32 vcc, 2, v4\nv_cndmask_b32 v41, v6, v41, vcc\nv_cndmask_b32 v42, v6, v42, vcc")
    k("v_cmp_gt_u32 vcc, 4, v3\nv_cndmask_b32 v42, v6, v42, vcc")
    k("v_cmp_eq_u32 vcc, 0, v4\ns_nop 7")
    for j in range(8): k(f"v_cndmask_b32 v{112+j}, 0, v{112+j}, vcc")
    k("buffer_store_dwordx4 v[112:115], v41, s[16:19], s31 offen\nbuffer_store_dwordx4 v[116:119], v42, s[16:19], s31 offen")
    k("s_endpgm")
    if TW:
        k.label("a1_tw")
        T = []
        k("v_mov_b32 v6, 0x40000000\nv_add_u32 v7, 64, v1\nv_add_u32 v8, 128, v1\nv_lshlrev_b32 v9, 7, v1")
        n1 = (18*len(L1) + 63) // 64
        for j in range(n1): pf13_addr(k, 16 + j, ["v1", "v7", "v8"][j], 20, L1, 18, "v6")
        k(f"s_mul_i32 s54, s4, 1152\ns_mul_i32 s55, s5, {18*9216}\ns_add_u32 s54, s54, s55")
        k(f"s_mul_i32 s55, s4, 663552\ns_mul_i32 s56, s5, {162*128}\ns_add_u32 s55, s55, s56\ns_add_u32 s56, s55, 8192\ns_add_u32 s57, s55, 16384")
        k("v_cmp_gt_u32 vcc, 34, v1\nv_cndmask_b32 v10, v6, v9, vcc")
        k(f"s_mul_i32 s58, s5, {168*128}\ns_add_u32 s58, s58, {WOF}\ns_add_u32 s59, s58, 8192\ns_add_u32 s60, s58, 16384\nv_cmp_gt_u32 vcc, 40, v1\nv_cndmask_b32 v11, v6, v9, vcc")
        k("s_waitcnt lgkmcnt(0)")
        srd(k, 16, 12, WSSZ); srd(k, 48, 46, 5308416); srd(k, 20, 44, 5308416); srd(k, 24, 52, 5308416)
        for j in range(n1): T += [f"v{16+j}, s[20:23], s54", f"v{16+j}, s[48:51], s54"]
        if 'tw2' in OPT: T += ["v9, s[24:27], s55", "v9, s[24:27], s56", "v10, s[24:27], s57"]
        if 'wof' in OPT: T += ["v9, s[16:19], s58", "v9, s[16:19], s59", "v11, s[16:19], s60"]
        T0 = int(os.environ.get('TW0', 1))
        for b in range(nbar):
            if b == nbar - 1 and 'pc' in OPT: pf_code(k, "attn2_kernel", 124, 40)
            k("s_barrier")
            n = 0 if b < T0 else -(-len(T) // (nbar - 1 - b)) if b < nbar - 1 else len(T)
            for j in range(n): k(f"buffer_load_dword v{32 + len(T)}, {T.pop(0)} offen")
        assert not T
    k.label("a1_end")
    k("s_endpgm")
    return k

def a2():
    k = Kern("attn2_kernel", vgpr=128, lds=4096, block=512, grid=256)
    k("s_cmp_ge_u32 s2, 256\ns_cbranch_scc1 a2_end")
    k("s_load_dwordx2 s[12:13], s[0:1], 80")
    if LA2 or LA2W: touch_load(k, 44)
    k("v_and_b32 v1, 63, v0\nv_lshrrev_b32 v2, 6, v0\nv_readfirstlane_b32 s3, v2")
    k("s_and_b32 s4, s2, 7\ns_lshr_b32 s5, s2, 3\ns_and_b32 s6, s4, 3\ns_lshl_b32 s6, s6, 2\ns_and_b32 s7, s5, 3\ns_add_u32 s6, s6, s7")
    k("s_lshr_b32 s7, s4, 2\ns_lshl_b32 s7, s7, 3\ns_lshr_b32 s5, s5, 2\ns_add_u32 s7, s7, s5")
    k("s_lshl_b32 s8, s6, 3\ns_add_u32 s8, s8, s3")
    k("v_mov_b32 v6, 0x40000000\nv_lshlrev_b32 v7, 4, v0\nv_cmp_gt_u32 vcc, 400, v0\nv_cndmask_b32 v7, v6, v7, vcc")
    k(f"s_mul_i32 s9, s7, 102400\ns_add_u32 s9, s9, {KVP}")
    srd(k, 16, 12, WSSZ)
    for j in range(16):
        k(f"buffer_load_dwordx4 {V(32+4*j,4)}, v7, s[16:19], s9 offen\ns_add_u32 s9, s9, 6400")
    k("v_and_b32 v3, 15, v1\nv_lshrrev_b32 v4, 4, v1\nv_lshlrev_b32 v5, 4, v1")
    k("v_cmp_eq_u32 vcc, 0, v4\nv_cndmask_b32 v8, v6, v5, vcc")
    k(f"s_lshl_b32 s20, s8, 5\ns_lshl_b32 s21, s7, 1\ns_add_u32 s20, s20, s21\ns_lshl_b32 s20, s20, 10\ns_add_u32 s20, s20, {PQ}")
    k(f"s_lshl_b32 s21, s8, 4\ns_add_u32 s21, s21, s7\ns_lshl_b32 s21, s21, 8\ns_add_u32 s21, s21, {PQL}")
    k("buffer_load_dwordx4 v[96:99], v5, s[16:19], s20 offen\nbuffer_load_dwordx4 v[100:103], v5, s[16:19], s20 offen offset:1024\nbuffer_load_dwordx4 v[104:107], v8, s[16:19], s21 offen")
    if 'pc' in OPT: pf_code(k, "attn3_kernel", 110, 40)
    if LA2 or LA2W: touch_setup(k, LA2, LA2W, 112, 44); touch_issue(k, LA2, LA2W, 112, 44); k("v_cmp_eq_u32 vcc, 0, v4")
    for o in OPT:
        if o.startswith('a2w'): pf_w(k, o[3:], 112, 44); k("v_cmp_eq_u32 vcc, 0, v4")
    k("v_mov_b32 v9, 1472\nv_add_u32 v10, 1024, v5\nv_cndmask_b32 v10, v9, v10, vcc")
    k("v_and_b32 v11, 3, v3\nv_lshl_add_u32 v12, v11, 2, v4\nv_lshlrev_b32 v12, 4, v12\nv_lshlrev_b32 v11, 4, v11\nv_add_u32 v11, 1536, v11\nv_cndmask_b32 v11, v9, v11, vcc")
    k("v_lshlrev_b32 v13, 3, v0")
    k(f"s_mul_i32 s22, s8, 18\ns_add_u32 s23, s22, s7\ns_lshl_b32 s23, s23, 10\ns_add_u32 s23, s23, {OF}")
    k(f"s_lshr_b32 s24, s7, 3\ns_add_u32 s22, s22, s24\ns_lshl_b32 s22, s22, 10\ns_bfe_u32 s24, s7, 0x20001\ns_lshl_b32 s24, s24, 8\ns_add_u32 s22, s22, s24\ns_and_b32 s24, s7, 1\ns_lshl_b32 s24, s24, 3\ns_add_u32 s22, s22, s24\ns_add_u32 s22, s22, {OF + 16384}")
    for c in range(4): k(f"v_add_f32 v{32+c}, v{32+c}, v{36+c}")
    for j in range(2, 16):
        for c in range(4): k(f"v_add_f32 v{32+c}, v{32+c}, v{32+4*j+c}")
    k("v_cvt_pk_bf16_f32 v32, v32, v33\nv_cvt_pk_bf16_f32 v33, v34, v35\nds_write_b64 v13, v[32:33]")
    k.stamp(1)
    k.wait_all(vm=False); k("s_barrier")
    k.stamp(2)
    for hh in range(2):
        b = 40 + 16*hh; o = 1600*hh
        k(f"ds_read_b128 {V(b,4)}, v5 offset:{o}\nds_read_b128 {V(b+4,4)}, v12 offset:{o+1280}\nds_read_b128 {V(b+8,4)}, v10 offset:{o}\nds_read_b128 {V(b+12,4)}, v11 offset:{o}")
    for hh in range(2):
        b = 40 + 16*hh; c = 72 + 8*hh; pq = V(96+4*hh, 4)
        k(MF(V(c,4), V(b,4), pq, "0")); k(MF(V(c+4,4), V(b+4,4), pq, "0"))
    for hh in range(2):
        b = 40 + 16*hh; c = 72 + 8*hh
        k(MF(V(c,4), V(b+8,4), "v[104:107]", V(c,4))); k(MF(V(c+4,4), V(b+12,4), "v[104:107]", V(c+4,4)))
    for hh in range(2):
        c = 72 + 8*hh
        bf16r(k, f"v{c+6}", f"v{c+6}")
        k(f"v_add_f32 v{c+6}, 0x358637bd, v{c+6}")
        bf16r(k, f"v{c+6}", f"v{c+6}")
        k(f"v_rcp_f32 v{c+6}, v{c+6}")
    for hh in range(2):
        c = 72 + 8*hh
        for j in range(6): k(f"v_mul_f32 v{c+j}, v{c+j}, v{c+6}")
        k(f"v_cvt_pk_bf16_f32 v{88+2*hh}, v{c}, v{c+1}\nv_cvt_pk_bf16_f32 v{89+2*hh}, v{c+2}, v{c+3}\nv_cvt_pk_bf16_f32 v{92+hh}, v{c+4}, v{c+5}")
    k("buffer_store_dwordx4 v[88:91], v5, s[16:19], s23 offen\nbuffer_store_dwordx2 v[92:93], v8, s[16:19], s22 offen")
    k.label("a2_end")
    k("s_endpgm")
    return k

def a3():
    XO = 40960; MO = XO + 10240
    LA = int(os.environ.get('A3LA', 4))
    k = Kern("attn3_kernel", vgpr=256, lds=MO + 128, block=320, grid=256)
    k("s_cmp_ge_u32 s2, 256\ns_cbranch_scc1 a3_end")
    k("s_load_dwordx2 s[12:13], s[0:1], 80\ns_load_dwordx2 s[4:5], s[0:1], 0")
    if LA3 or LA3W: touch_load(k, 44)
    k("v_and_b32 v1, 63, v0\nv_lshrrev_b32 v2, 6, v0\nv_readfirstlane_b32 s3, v2")
    k("v_lshlrev_b32 v5, 4, v1")
    k("s_bfe_u32 s7, s2, 0x20003\ns_and_b32 s6, s2, 3\ns_lshl_b32 s6, s6, 1\ns_bfe_u32 s38, s2, 0x10002\ns_add_u32 s6, s6, s38\ns_lshl_b32 s6, s6, 3\ns_lshr_b32 s8, s2, 5\ns_add_u32 s6, s6, s8")
    k(f"s_lshl_b32 s9, s3, 10\ns_mul_i32 s10, s6, 36864\ns_add_u32 s10, s10, s9\ns_add_u32 s10, s10, {OF}")
    k("v_and_b32 v3, 15, v1\nv_lshrrev_b32 v4, 4, v1\nv_mov_b32 v6, 0x40000000")
    k("s_and_b32 s14, s7, 1\ns_lshl_b32 s15, s3, 1\ns_add_u32 s15, s15, s14")
    k("s_xor_b32 s24, s14, 1\ns_lshl_b32 s24, s24, 3\ns_cmp_lt_u32 s3, 4\ns_cselect_b32 s15, s15, s24")
    k("s_mul_i32 s24, s7, 9\ns_add_u32 s24, s24, s15\ns_add_u32 s25, s24, 1\ns_cmp_lt_u32 s3, 4\ns_cselect_b32 s25, s25, 36")
    k(f"s_mul_i32 s26, s24, 18432\ns_add_u32 s26, s26, {WOF}\ns_mul_i32 s27, s25, 18432\ns_add_u32 s27, s27, {WOF}")
    k("s_cmp_lt_u32 s3, 4\ns_cselect_b32 s28, 16, 2\nv_cmp_gt_u32 vcc, s28, v3\nv_cndmask_b32 v10, v6, v5, vcc")
    srd(k, 16, 12, WSSZ)
    for i in (0, 4, 1, 3, 5, 2, 6, 7):
        k(f"s_add_u32 m0, s9, {5120*i}\ns_add_u32 s8, s10, {5120*i}\nbuffer_load_dwordx4 v5, s[16:19], s8 offen lds", tag="DO")
    st = dict(w=0)
    def ldw(upto):
        while st['w'] <= min(upto, 17):
            ks = st['w']
            k(f"buffer_load_dwordx4 {V(64+8*ks,4)}, v5, s[16:19], s26 offen offset:{1024*(ks%4)}\nbuffer_load_dwordx4 {V(68+8*ks,4)}, v10, s[16:19], s27 offen offset:{1024*(ks%4)}")
            if ks % 4 == 3: k("s_add_u32 s26, s26, 4096\ns_add_u32 s27, s27, 4096")
            st['w'] += 1
    ldw(LA - 1)
    srd(k, 20, 4, 2359296)
    k("s_mul_i32 s11, s6, 36864\ns_mul_i32 s14, s7, 288\ns_add_u32 s11, s11, s14")
    for r in range(2):
        k(f"v_add_u32 v7, {320*r}, v0\nv_mul_u32_u24 v8, 3641, v7\nv_lshrrev_b32 v8, 16, v8\nv_mul_u32_u24 v9, 18, v8\nv_sub_u32 v9, v7, v9\nv_mul_u32_u24 v8, 1152, v8\nv_lshl_add_u32 v{232+r}, v9, 4, v8")
    k(f"v_lshlrev_b32 v11, 2, v3\ns_lshl_b32 s29, s6, 7\ns_add_u32 s29, s29, {MX}")
    def ldx():
        for r in range(2): k(f"s_add_u32 m0, s9, {XO + 5120*r}\nbuffer_load_dwordx4 v{232+r}, s[20:23], s11 offen lds", tag="DX")
        k("buffer_load_dword v12, v11, s[16:19], s29 offen\nbuffer_load_dword v13, v11, s[16:19], s29 offen offset:64")
    k(f"v_mul_u32_u24 v14, 288, v3\nv_lshl_add_u32 v14, v4, 3, v14\ns_lshl_b32 s30, s15, 5\ns_add_u32 s30, s30, {XO}\nv_add_u32 v14, s30, v14")
    k(f"v_add_u32 v15, {MO}, v11")
    k(f"s_lshl_b32 s32, s6, 1\ns_mul_i32 s32, s32, 18\ns_lshr_b32 s33, s24, 1\ns_add_u32 s32, s32, s33\ns_lshl_b32 s32, s32, 10\ns_add_u32 s33, s32, {HR}\ns_add_u32 s32, s32, {HC}")
    k("s_add_u32 s34, s32, 18432\ns_add_u32 s35, s33, 18432")
    k("s_mov_b32 s31, 0xffff0000")
    if LA3 or LA3W: touch_setup(k, LA3, LA3W, 244, 44)
    k.stamp(1)
    k.wait_vm("DO"); k("s_barrier")
    k.stamp(2)
    def rd(ks):
        k(f"ds_read_b128 {V(16+8*(ks%3),4)}, v5 offset:{ks*1024}\nds_read_b128 {V(20+8*(ks%3),4)}, v5 offset:{(18+ks)*1024}")
    rd(0); rd(1)
    XS = int(os.environ.get('A3XS', 6))
    for ks in range(18):
        if ks + 2 < 18: rd(ks + 2)
        ldw(ks + LA)
        if ks == XS: ldx()
        if ks == 14 and 'pc' in OPT: pf_code(k, "ffn_kernel", 240, 40)
        if ks == int(os.environ.get('A3T', 14)) and (LA3 or LA3W): touch_issue(k, LA3, LA3W, 244, 44)
        for t in (1, 0):
            for tt in range(2):
                c = V(40 + 8*tt + 4*t, 4)
                k(MF(c, V(64+8*ks+4*t,4), V(16+8*(ks%3)+4*tt,4), c if ks else "0"))
    k.stamp(3)
    k("s_cmp_lt_u32 s3, 4\ns_cbranch_scc1 a3_nomean")
    k.skip_begin()
    for tt in range(2):
        k(f"v_add_f32 v{44+8*tt}, v{44+8*tt}, v{45+8*tt}\nv_add_f32 v{44+8*tt}, v{44+8*tt}, v{12+tt}")
        bf16r(k, f"v{44+8*tt}", f"v{44+8*tt}")
    k("s_mov_b64 exec, 0xffff\nds_write_b32 v15, v44\nds_write_b32 v15, v52 offset:64\ns_mov_b64 exec, -1")
    k.wait_all(vm=False)
    k.skip_end("a3_nomean")
    k.wait_vm("DX")
    k("s_barrier")
    k.stamp(4)
    for tt in range(2):
        for t in range(2): k(f"ds_read_b64 {V(208+4*tt+2*t,2)}, v14 offset:{tt*4608+32*t}")
    k("ds_read_b32 v12, v15\nds_read_b32 v13, v15 offset:64")
    for tt in range(2):
        for t in range(2):
            for hf in range(2):
                c = 40 + 8*tt + 4*t + 2*hf
                k(f"v_cvt_pk_bf16_f32 v{c+1}, v{c}, v{c+1}\nv_lshlrev_b32 v{c}, 16, v{c+1}\nv_and_b32 v{c+1}, s31, v{c+1}")
    for tt in range(2):
        for t in range(2):
            for hf in range(2):
                c = 40 + 8*tt + 4*t + 2*hf; xr = 208 + 4*tt + 2*t + hf; ho = 216 + 4*tt + 2*t + hf; co = 224 + 4*tt + 2*t + hf
                k(f"v_lshlrev_b32 v58, 16, v{xr}\nv_and_b32 v59, s31, v{xr}\nv_add_f32 v{c}, v{c}, v58\nv_add_f32 v{c+1}, v{c+1}, v59")
                k(f"v_cvt_pk_bf16_f32 v{ho}, v{c}, v{c+1}\nv_lshlrev_b32 v57, 16, v{ho}\nv_and_b32 v56, s31, v{ho}")
                k(f"v_sub_f32 v57, v57, v{12+tt}\nv_sub_f32 v56, v56, v{12+tt}\nv_cvt_pk_bf16_f32 v{co}, v57, v56")
    k.stamp(5)
    k("s_cmp_lt_u32 s3, 4\ns_cbranch_scc0 a3_single")
    k("buffer_store_dwordx4 v[224:227], v5, s[16:19], s32 offen\nbuffer_store_dwordx4 v[228:231], v5, s[16:19], s34 offen")
    k("buffer_store_dwordx4 v[216:219], v5, s[16:19], s33 offen\nbuffer_store_dwordx4 v[220:223], v5, s[16:19], s35 offen")
    k("s_endpgm")
    k.label("a3_single")
    k("s_and_b32 s37, s24, 1\ns_lshl_b32 s37, s37, 3\nv_add_u32 v10, s37, v5\ns_nop 1")
    k("buffer_store_dwordx2 v[224:225], v10, s[16:19], s32 offen\nbuffer_store_dwordx2 v[228:229], v10, s[16:19], s34 offen")
    k("buffer_store_dwordx2 v[216:217], v10, s[16:19], s33 offen\nbuffer_store_dwordx2 v[220:221], v10, s[16:19], s35 offen")
    k.label("a3_end")
    k("s_endpgm")
    return k

def warm(S):
    k = Kern("warm_kernel", vgpr=8, lds=0, block=64*S, grid=256)
    k.prof = None
    k("v_lshrrev_b32 v2, 6, v0\nv_readfirstlane_b32 s3, v2\ns_mov_b64 exec, 0")
    for c in range(S): k(f"s_cmp_eq_u32 s3, {c}\ns_cbranch_scc1 ffn_kernel_ws{c}")
    k("s_endpgm")
    return k

AF_ = 'af' in OPT
def kernels():
    if 'PADB' in os.environ:
        S = int(os.environ.get('PADS', 16)); f = k3(); f.pads = (int(os.environ['PADB']), S)
        if 'nowarm' in OPT: return [k0(), a1(), a2(), a3(), f, k4()]
        return [k0(), a1(), a2(), a3(), warm(S), f, k4()]
    if AF_: return [k0(), af(), k3(), k4()]
    if 'fuse' in OPT: return [k0(), a1(), a2(), a3(), k3()]
    return [k0(), a1(), a2(), a3(), k3(), k4()]

if __name__ == "__main__":
    if len(sys.argv) > 2: Kern.prof = 0
    ks = kernels()
    print([k for k in ks if k.name == 'ffn_kernel'][0].log)
    out = sys.argv[1] if len(sys.argv) > 1 else "cur.s"
    if len(sys.argv) > 2:
        for i, k in enumerate(ks): k.prof = PROF + i * 0x100000 if k.name != 'warm_kernel' else None
    build_file(ks, out)
    for k in ks: print(k.name, "nops", k.nnops, "waits", k.nwaits)
```

```python
import sys, os
sys.path.insert(0, 'dev')
from asmlib import *
from wsmap import *
OPT = set(os.environ.get('OPT', '').split(','))
L1 = [int(c) for c in os.environ.get('L1', '23478')]
E = lambda n, d: int(os.environ.get(n, d))

def af():
    ROWS = 129024
    XR = 16; NX = 6; WB = 40; AC = 96; EP = 40; PK = 60; VV = 78
    KVS = 20480; OFL = 24576; XO = 61440; MO = XO + 10240
    SPIN = E('SPIN', 4000)
    W3 = lambda ks: 128 + 8*ks if ks < 16 else 88 + 16*(ks - 16)
    KR = lambda j: 32 + 4*j if j < 14 else 96 + 4*(j - 14)
    k = Kern("attn_kernel", vgpr=256, lds=159744, block=512, grid=256)
    SM = [int(c) if c != '-' else None for c in os.environ.get('SM', '-12-3-45-6')]
    def stamp(i):
        if SM[i] is not None: k.stamp(SM[i])
    def cnt(i):
        if SM[i] is not None and k.prof is not None:
            n = 84 + 2*SM[i]
            k(f"s_waitcnt lgkmcnt(0)\ns_sub_u32 s{n}, {SPIN}, s33\ns_mul_i32 s{n}, s{n}, 100\ns_add_u32 s{n}, s{n}, s84\ns_addc_u32 s{n+1}, s85, 0")
    k("s_cmp_ge_u32 s2, 256\ns_cbranch_scc1 af_end")
    k("s_load_dwordx2 s[12:13], s[0:1], 80\ns_load_dwordx2 s[56:57], s[0:1], 0")
    if 'a1t' in OPT: k("s_load_dwordx4 s[44:47], s[0:1], 40")
    k("v_and_b32 v1, 63, v0\nv_lshrrev_b32 v2, 6, v0\nv_readfirstlane_b32 s3, v2")
    k("v_lshlrev_b32 v5, 4, v1")
    k("s_and_b32 s4, s2, 7\ns_lshr_b32 s5, s2, 3")
    k("s_and_b32 s6, s4, 3\ns_lshl_b32 s6, s6, 2\ns_and_b32 s7, s5, 3\ns_add_u32 s6, s6, s7")
    k("s_lshr_b32 s7, s4, 2\ns_lshl_b32 s7, s7, 3\ns_lshr_b32 s5, s5, 2\ns_add_u32 s7, s7, s5")
    k("s_lshl_b32 s8, s6, 3\ns_add_u32 s8, s8, s3")
    k(f"s_lshl_b32 s9, s3, 10\ns_mul_i32 s10, s7, 129024\ns_add_u32 s10, s10, {WF}")
    k(f"s_mul_i32 s11, s8, 18432")
    k("s_add_u32 s10, s10, s9")
    srd(k, 16, 12, WSSZ)
    LA = E('A1LA', 4); GB = E('A1GB', 2)
    st = dict(di=0, xi=0)
    def ld(upto):
        ops = []
        while st['xi'] <= min(upto, 17):
            ks = st['xi']
            while st['di'] <= (7*min(ks + 1, 17) + 6) // 8:
                di = st['di']
                ops.append((f"s_add_u32 m0, s9, {8192*di}\nbuffer_load_dwordx4 v5, s[16:19], s10 offen lds\ns_add_u32 s10, s10, 8192", f"D{di}")); st['di'] += 1
            ops.append((f"buffer_load_dwordx4 {V(XR+4*(ks%NX),4)}, v5, s[16:19], s11 offen offset:{1024*(ks%4)}" + ("\ns_add_u32 s11, s11, 4096" if ks % 4 == 3 else ""), None))
            st['xi'] += 1
        return ops
    for o, t in ld(LA - 1): k(o, tag=t)
    PRE = len(k.items)
    LT = 'lt' in OPT
    if 'a1t' in OPT and not LT:
        k("s_and_b32 s48, s3, 3\nv_lshl_add_u32 v123, v1, 2, s48\nv_mov_b32 v122, 0x40000000")
        pf13_addr(k, 127, "v123", 120, L1, 18, "v122")
        k(f"s_mul_i32 s48, s4, 1152\ns_lshr_b32 s49, s2, 3\ns_mul_i32 s49, s49, {18*9216}\ns_add_u32 s48, s48, s49")
        k("s_cmp_lt_u32 s3, 4\ns_cselect_b32 s44, s44, s46\ns_cselect_b32 s45, s45, s47\ns_mov_b32 s46, 5308416\ns_mov_b32 s47, 0x20000")
    LTP = E('LTP', 99)
    def late_touch():
        k("v_lshrrev_b32 v143, 4, v5\nv_mul_u32_u24 v140, 3, v143\nv_add_u32 v140, s3, v140\nv_subrev_u32 v140, 5, v140")
        if 'pc' in OPT: pf_code(k, "ffn_kernel", 146, 42, s3=14, vl="v143")
        if not L1: return
        pf13_addr(k, 141, "v140", 142, L1, 18, "v6")
        k(f"s_mul_i32 s14, s4, 1152\ns_lshr_b32 s15, s2, 3\ns_mul_i32 s15, s15, {18*9216}\ns_add_u32 s15, s15, s14")
        k("s_mov_b32 s76, s46\ns_mov_b32 s77, s47\ns_mov_b32 s46, 5308416\ns_mov_b32 s47, 0x20000\ns_mov_b32 s78, 5308416\ns_mov_b32 s79, 0x20000")
        k("buffer_load_dword v144, v141, s[44:47], s15 offen\nbuffer_load_dword v145, v141, s[76:79], s15 offen")
    def wt_at(pos):
        if 'wt' in OPT and E('WTS', 0) == pos:
            k(f"s_lshr_b32 s14, s2, 3\ns_mul_i32 s14, s14, {168*128}\ns_mul_i32 s36, s3, {56*128}\ns_add_u32 s14, s14, s36\ns_add_u32 s14, s14, {WOF - 5*56*128}\ns_cmp_lt_u32 s3, 5\ns_cselect_b32 s14, {INV}, s14")
            k("v_min_u32 v136, 880, v5\nv_lshlrev_b32 v136, 3, v136\nbuffer_load_dword v137, v136, s[16:19], s14 offen")
    def lt_at(pos):
        if LT and LTP == pos:
            k("s_cmp_lt_u32 s3, 5\ns_cbranch_scc1 af_nolt")
            k.skip_begin(); late_touch(); k.skip_end("af_nolt")
    wt_at(-1)
    k("v_and_b32 v3, 15, v1\nv_lshrrev_b32 v4, 4, v1\nv_mov_b32 v6, 0x40000000")
    k("s_mul_i32 s20, s3, 2304\nv_lshlrev_b32 v7, 4, v3\nv_add_u32 v7, s20, v7\nv_lshl_add_u32 v8, v4, 10, v7\nv_lshl_add_u32 v9, v4, 3, v7")
    k(f"s_mul_i32 s22, s3, 3840\ns_add_u32 s22, s22, {ROWS}\nv_mul_u32_u24 v10, 240, v3\nv_add_u32 v10, s22, v10")
    k("v_mul_u32_u24 v11, 80, v4\nv_add_u32 v11, v11, v10\nv_subrev_u32 v11, 160, v11")
    k("v_lshl_add_u32 v12, v4, 3, v10\nv_mul_u32_u24 v13, 40, v4\nv_add_u32 v13, v13, v10")
    k(f"s_mov_b32 s24, {LOG2E}\ns_mov_b32 s25, {LOG2E | 0x80000000}")
    k("s_cmp_ge_u32 s3, 3\ns_cselect_b32 s26, 1, 0\ns_mul_i32 s27, s26, 3\ns_sub_u32 s27, s3, s27")
    k(f"s_mul_i32 s28, s26, 80\ns_lshl_b32 s29, s27, 3\ns_cmp_lt_u32 s27, 2\ns_cselect_b32 s29, s29, 64\ns_cselect_b32 s30, 16, 0\ns_add_u32 s28, s28, s29\ns_add_u32 s28, s28, {ROWS}")
    k(f"s_mul_i32 s29, s26, 40\ns_add_u32 s29, s29, {ROWS+160}")
    k("v_lshrrev_b32 v7, 2, v3\nv_and_b32 v10, 3, v3\nv_lshl_add_u32 v7, v4, 3, v7\nv_mul_u32_u24 v7, 240, v7")
    k("v_mul_u32_u24 v124, s30, v10\nv_add3_u32 v124, v124, v7, s28")
    k("v_add_u32 v126, s29, v7\nv_lshl_add_u32 v125, v10, 3, v126")
    k(f"s_lshl_b32 s31, s7, 4\ns_add_u32 s31, s31, s6\ns_mul_i32 s31, s31, 6400\ns_mul_i32 s32, s26, 3200\ns_add_u32 s31, s31, s32\ns_add_u32 s31, s31, {KVP}")
    k("s_lshl_b32 s32, s27, 4\nv_lshl_add_u32 v2, v1, 5, s32")
    k("v_lshl_add_u32 v7, v3, 2, v4\nv_lshl_add_u32 v7, v7, 5, s32\nv_add_u32 v7, 2560, v7")
    k("v_xor_b32 v10, s26, v4\nv_lshl_add_u32 v10, v3, 1, v10\nv_lshlrev_b32 v10, 4, v10\nv_cmp_gt_u32 vcc, 2, v4\nv_cndmask_b32 v10, v6, v10, vcc")
    k("s_cmp_eq_u32 s27, 2\ns_cselect_b64 vcc, -1, 0\nv_add_u32 v14, 2048, v10\nv_cndmask_b32 v2, v2, v14, vcc\nv_add_u32 v14, 3072, v10\nv_cndmask_b32 v7, v7, v14, vcc")
    k("v_cmp_gt_u32 vcc, 4, v3\nv_cndmask_b32 v7, v6, v7, vcc")
    k("s_cmp_eq_u32 s27, 2\ns_cselect_b32 s34, 0xffff, -1\ns_cselect_b32 s35, 0, -1")
    k(f"s_mul_i32 s60, s7, 102400\ns_add_u32 s60, s60, {KVP}")
    if 'rot' in OPT:
        k("s_mov_b32 s59, s60")
        for j in range(16): k(f"s_add_u32 s14, s6, {j+1}\ns_and_b32 s14, s14, 15\ns_mul_i32 s14, s14, 6400\ns_add_u32 s{60+j}, s59, s14")
    else:
        for j in range(1, 16): k(f"s_add_u32 s{60+j}, s{59+j}, 6400")
    k(f"s_mul_i32 s22, s8, 18\ns_add_u32 s23, s22, s7\ns_lshl_b32 s23, s23, 10\ns_add_u32 s23, s23, {OF}")
    k(f"s_lshr_b32 s14, s7, 3\ns_add_u32 s22, s22, s14\ns_lshl_b32 s22, s22, 10\ns_bfe_u32 s14, s7, 0x20001\ns_lshl_b32 s14, s14, 8\ns_add_u32 s22, s22, s14\ns_and_b32 s14, s7, 1\ns_lshl_b32 s14, s14, 3\ns_add_u32 s22, s22, s14\ns_add_u32 s22, s22, {OF + 16384}")
    k("s_lshl_b32 s37, s6, 2\ns_lshr_b32 s14, s7, 2\ns_add_u32 s37, s37, s14\ns_and_b32 s38, s7, 3")
    k("s_and_b32 s14, s38, 1\ns_lshl_b32 s15, s3, 1\ns_add_u32 s15, s15, s14")
    k("s_xor_b32 s39, s14, 1\ns_lshl_b32 s39, s39, 3\ns_cmp_lt_u32 s3, 4\ns_cselect_b32 s15, s15, s39")
    k("s_mul_i32 s39, s38, 9\ns_add_u32 s39, s39, s15\ns_add_u32 s40, s39, 1\ns_cmp_lt_u32 s3, 4\ns_cselect_b32 s40, s40, 36")
    k(f"s_mul_i32 s50, s39, 18432\ns_add_u32 s50, s50, {WOF}\ns_mul_i32 s51, s40, 18432\ns_add_u32 s51, s51, {WOF}")
    k(f"s_mul_i32 s52, s37, 36864\ns_mul_i32 s14, s38, 288\ns_add_u32 s53, s52, s14\ns_add_u32 s52, s52, s9\ns_add_u32 s52, s52, {OF}")
    k("s_mov_b32 s58, 2359296\ns_mov_b32 s59, 0x20000")
    FLAGS = 'fl' in OPT
    k(f"s_lshl_b32 s80, s7, 11\ns_add_u32 s80, s80, {FL0}\ns_lshl_b32 s14, s6, 7\ns_add_u32 s81, s80, s14\ns_lshl_b32 s36, s3, 2\ns_add_u32 s81, s81, s36")
    k(f"s_lshl_b32 s82, s6, 11\ns_add_u32 s82, s82, {FL1}\ns_lshl_b32 s14, s7, 7\ns_add_u32 s83, s82, s14\ns_add_u32 s83, s83, s36\ns_lshr_b32 s14, s7, 2\ns_lshl_b32 s14, s14, 3\ns_add_u32 s82, s82, s14")
    AT = 'at' in OPT
    if AT: k(f"s_lshl_b32 s80, s7, 7\ns_add_u32 s80, s80, {FL0}\ns_lshl_b32 s82, s6, 7\ns_add_u32 s82, s82, {FL1}")
    def apoll(ph, s):
        k("s_barrier")
        k(f"s_cmp_lg_u32 s3, 7\ns_cbranch_scc1 af_pd{ph}")
        k.skip_begin()
        k(f"s_mov_b64 exec, 1\nv_mov_b32 v132, 1\ns_mov_b32 s33, {SPIN}\ns_mov_b32 s14, 14")
        k.label(f"af_pl{ph}", reset=False)
        k(f"buffer_atomic_add v132, v5, s[16:19], s{s} offen sc0 sc1")
        k("v_readfirstlane_b32 s54, v132\nv_mov_b32 v132, 0\ns_cmp_ge_i32 s54, s14\ns_mov_b32 s14, 15")
        k(f"s_cbranch_scc1 af_px{ph}")
        if E('PSL', 0): k(f"s_sleep {E('PSL', 0)}")
        k(f"s_sub_u32 s33, s33, 1\ns_cmp_lt_i32 s33, 0\ns_cbranch_scc0 af_pl{ph}")
        k.label(f"af_px{ph}", reset=False)
        k("s_mov_b64 exec, -1")
        cnt(5 if ph == 0 else 8)
        k.skip_end(f"af_pd{ph}")
        k("s_barrier")
    def flag(s):
        if FLAGS: k(f"s_mov_b64 exec, 1\nbuffer_store_dword v5, v5, s[16:19], s{s} offen sc1\ns_mov_b64 exec, -1")
    def poll(ph, s):
        if AT: return apoll(ph, s)
        if not FLAGS: return
        k(f"s_cmp_lg_u32 s3, 7\ns_cbranch_scc1 af_pd{ph}")
        k.skip_begin()
        if ph == 0: k("v_lshrrev_b32 v128, 5, v5\nv_lshlrev_b32 v128, 7, v128\nv_and_b32 v129, 16, v5\nv_add_u32 v128, v128, v129\nv_cmp_gt_u32 vcc, 512, v5")
        else: k("v_lshlrev_b32 v128, 3, v5\nv_cmp_gt_u32 vcc, 256, v5\nv_mov_b32 v134, 0\nv_mov_b32 v135, 0")
        k(f"v_cndmask_b32 v128, v6, v128, vcc\ns_mov_b32 s33, {SPIN}")
        k.label(f"af_pl{ph}", reset=False)
        if E('PSL', 0): k(f"s_sleep {E('PSL', 0)}")
        k(f"buffer_load_dwordx{4 if ph == 0 else 2} {V(132, 4 if ph == 0 else 2)}, v128, s[16:19], s{s} offen sc1")
        k("v_cmp_u_f32 vcc, v132, v133\nv_cmp_u_f32_e64 s[54:55], v134, v135\ns_or_b64 vcc, vcc, s[54:55]")
        k(f"s_cbranch_scc0 af_pd{ph}\ns_sub_u32 s33, s33, 1\ns_cmp_lt_i32 s33, 0\ns_cbranch_scc0 af_pl{ph}")
        k.skip_end(f"af_pd{ph}")
        k("s_barrier")
    def reads(ks):
        out = []
        for t in range(7):
            off = (ks*7 + t) * 1024
            base = "v5" if off < 65536 else "v14"
            out.append(f"ds_read_b128 {V(WB+28*(ks%2)+4*t,4)}, {base} offset:{off % 65536}")
        return out
    def mfmas(ks):
        return [MF(V(AC+4*t, 4), V(WB+28*(ks%2)+4*t,4), V(XR+4*(ks%NX),4), V(AC+4*t, 4) if ks else "0") for t in range(7)]
    k("v_add_u32 v14, 0x10000, v5")
    def bar(upto):
        k.wait_vm(f"D{(7*min(upto, 17) + 6) // 8}"); k("s_barrier")
    wst = dict(w=0)
    def ldw(upto):
        ops = []
        while wst['w'] <= min(upto, 17):
            ks = wst['w']
            ops.append(f"buffer_load_dwordx4 {V(W3(ks),4)}, v5, s[16:19], s50 offen offset:{1024*(ks%4)}")
            ops.append(f"buffer_load_dwordx4 {V(W3(ks)+4,4)}, v5, s[16:19], s51 offen offset:{1024*(ks%4)}" + ("\ns_add_u32 s50, s50, 4096\ns_add_u32 s51, s51, 4096" if ks % 4 == 3 else ""))
            wst['w'] += 1
        return ops
    k(f"s_cmp_lt_u32 s3, 5\ns_cselect_b32 s50, s50, {INV}\ns_cselect_b32 s51, s51, {INV}")
    k(f"v_lshlrev_b32 v15, 2, v3\ns_lshl_b32 s29, s37, 7\ns_add_u32 s29, s29, {MX}")
    k("s_sub_u32 s21, s9, 5120\ns_lshr_b32 s14, s21, 4")
    for r in range(3):
        k(f"v_add_u32 v131, s14, v1\nv_add_u32 v131, {192*r}, v131\nv_mul_u32_u24 v132, 3641, v131\nv_lshrrev_b32 v132, 16, v132\nv_mul_u32_u24 v133, 18, v132\nv_sub_u32 v133, v131, v133\nv_mul_u32_u24 v132, 1152, v132\nv_lshl_add_u32 v{128+r}, v133, 4, v132")
    k("buffer_load_dword v1, v15, s[16:19], s29 offen\nbuffer_load_dword v15, v15, s[16:19], s29 offen offset:64")
    bar(0)
    stamp(0)
    for o in reads(0): k(o)
    WS = E('W3S', 14)
    for ks in range(18):
        if ks % GB == 0 and ks + 1 < 18: bar(ks + GB)
        if ks == E('A1T', 16) and 'a1t' in OPT and not LT: k("buffer_load_dword v255, v127, s[44:47], s48 offen")
        if ks == E('PCS', 15) and 'pc' in OPT and not LT: pf_code(k, "ffn_kernel", 253, 42, s3=14)
        if ks == E('XS', 14):
            k("s_cmp_lt_u32 s3, 5\ns_cbranch_scc1 af_nox")
            k.skip_begin()
            for r in range(3): k(f"s_add_u32 m0, s21, {XO + 3072*r}\nbuffer_load_dwordx4 v{128+r}, s[56:59], s53 offen lds")
            k.skip_end("af_nox")
        lt_at(ks); wt_at(ks)
        R = reads(ks + 1) if ks + 1 < 18 else []
        L = ld(ks + LA)
        if ks >= WS: L += [(o, None) for o in ldw(min(15, (ks - WS + 1) * E('W3N', 2) - 1))]
        M = mfmas(ks)
        for o in R[:2]: k(o)
        R = R[2:]
        for i, m in enumerate(M):
            k(m)
            if R: k(R.pop(0))
            if L and i >= 2: o, t = L.pop(0); k(o, tag=t)
        for o, t in L: k(o, tag=t)
    stamp(1)
    WL = ldw(17)
    done = 36 - len(WL)
    WA = E('W3A', 34); WBn = E('W3B', 36)
    na = WA - done; slot = [0, 0]
    def wdrip():
        slot[0] += 1
        while slot[1] < na and slot[1] * 43 < slot[0] * na: k(WL.pop(0)); slot[1] += 1
    A = lambda i: f"v{AC+i}"
    k(f"v_cvt_pk_bf16_f32 v{VV}, {A(20)}, {A(21)}\nv_cvt_pk_bf16_f32 v{VV+1}, {A(22)}, {A(23)}\nv_cvt_pk_bf16_f32 v{VV+2}, {A(24)}, {A(25)}\nv_cvt_pk_bf16_f32 v{VV+3}, {A(26)}, {A(27)}")
    k(f"v_cvt_pk_bf16_f32 v{VV+4}, {A(18)}, {A(19)}\nv_mov_b32 v{VV+5}, 0x3f80")
    k(f"ds_write_b64 v12, {V(VV,2)} offset:160\nds_write_b64 v12, {V(VV+2,2)} offset:200")
    k(f"s_mov_b64 exec, 0xffffffff\nds_write_b64 v13, {V(VV+4,2)} offset:192\ns_mov_b64 exec, -1")
    k(f"v_max3_f32 v84, {A(0)}, {A(1)}, {A(2)}\nv_min3_f32 v85, {A(0)}, {A(1)}, {A(2)}")
    for j in range(7): k(f"v_max3_f32 v84, v84, {A(3+2*j)}, {A(4+2*j)}\nv_min3_f32 v85, v85, {A(3+2*j)}, {A(4+2*j)}"); wdrip()
    k(f"v_max_f32 v84, v84, {A(17)}\nv_min_f32 v85, v85, {A(17)}")
    k("v_mul_f32 v86, s25, v84\nv_mul_f32 v87, s24, v85")
    for f in range(18):
        k(f"v_fma_f32 v{EP+f}, {A(f)}, s24, v86\nv_fma_f32 {A(f)}, {A(f)}, s25, v87")
        k(f"v_exp_f32 v{EP+f}, v{EP+f}\nv_exp_f32 {A(f)}, {A(f)}")
        if f == 1: k(f"v_add_f32 v84, v{EP}, v{EP+1}\nv_add_f32 v85, {A(0)}, {A(1)}")
        if f >= 2: k(f"v_add_f32 v84, v84, v{EP+f}\nv_add_f32 v85, v85, {A(f)}")
        wdrip()
    k("v_rcp_f32 v84, v84\nv_rcp_f32 v85, v85")
    for j in range(9):
        k(f"v_mul_f32 v{EP+2*j}, v{EP+2*j}, v84\nv_mul_f32 v{EP+1+2*j}, v{EP+1+2*j}, v84\nv_cvt_pk_bf16_f32 v{PK+j}, v{EP+2*j}, v{EP+1+2*j}"); wdrip()
    for j in range(9):
        k(f"v_mul_f32 {A(2*j)}, {A(2*j)}, v85\nv_mul_f32 {A(2*j+1)}, {A(2*j+1)}, v85\nv_cvt_pk_bf16_f32 v{PK+9+j}, {A(2*j)}, {A(2*j+1)}"); wdrip()
    assert slot[1] == max(na, 0) and WA <= 34
    k("s_mov_b32 exec_lo, 0")
    for j in range(4): k(f"ds_write_b128 v11, {V(PK+4*j,4)} offset:{16*j}")
    k(f"ds_write_b64 v11, {V(PK+16,2)} offset:64")
    k("s_mov_b32 exec_lo, -1\ns_mov_b32 exec_hi, 0")
    k.wait_all(vm=False); k("s_barrier")
    for j in range(4): k(f"ds_write_b128 v8, {V(PK+4*j,4)} offset:{256*j}")
    k(f"ds_write_b64 v9, {V(PK+16,2)} offset:2048")
    k("s_mov_b64 exec, -1")
    stamp(2)
    k("s_cmp_ge_u32 s3, 6\ns_cbranch_scc1 af_nokv")
    k.skip_begin()
    FA, FB, FX, C0 = 16, 40, 56, 32
    for s in range(4):
        for h in range(2):
            o = (32*s + 4*h) * 240
            k(f"ds_read_b64_tr_b16 {V(FA+4*s+2*h,2)}, v124 offset:{o}\nds_read_b64_tr_b16 {V(FB+4*s+2*h,2)}, v125 offset:{o}\nds_read_b64_tr_b16 {V(FX+4*s+2*h,2)}, v126 offset:{o+32}")
    for s in range(4):
        k(MF(V(C0,4), V(FA+4*s,4), V(FB+4*s,4), V(C0,4) if s else "0"))
        k(MF(V(C0+4,4), V(FA+4*s,4), V(FX+4*s,4), V(C0+4,4) if s else "0"))
    for j in range(4): k(f"v_cndmask_b32_e64 v{C0+j}, 0, v{C0+j}, s[34:35]")
    k(f"buffer_store_dwordx4 {V(C0,4)}, v2, s[16:19], s31 offen sc1")
    for j in range(4, 8): k(f"v_cndmask_b32_e64 v{C0+j}, 0, v{C0+j}, s[34:35]")
    k(f"buffer_store_dwordx4 {V(C0+4,4)}, v7, s[16:19], s31 offen sc1")
    k.skip_end("af_nokv")
    k.wait_all(vm=False)
    k("v_lshlrev_b32 v7, 4, v0\nv_cmp_gt_u32 vcc, 400, v0\nv_cndmask_b32 v7, v6, v7, vcc")
    flag(81)
    while 36 - len(WL) < WBn: k(WL.pop(0))
    poll(0, 80)
    if 'kb' in OPT: k('s_barrier')
    if E('KVD', 0): k(f"s_sleep {E('KVD', 0)}")
    kvl = lambda j: f"buffer_load_dwordx4 {V(KR(j),4)}, v7, s[16:19], s{60+j} offen sc1"
    for j in range(16): k(kvl(j))
    k("v_add_u32 v10, s20, v5\nv_lshlrev_b32 v11, 4, v3\nv_add_u32 v11, s20, v11")
    k("ds_read_b128 v[16:19], v10\nds_read_b128 v[20:23], v10 offset:1024\nds_read_b128 v[24:27], v11 offset:2048")
    k("v_cmp_eq_u32 vcc, 0, v4\nv_cndmask_b32 v8, v6, v5, vcc")
    k("v_mov_b32 v9, 1472\nv_add_u32 v10, 1024, v5\nv_cndmask_b32 v10, v9, v10, vcc")
    k("v_and_b32 v11, 3, v3\nv_lshl_add_u32 v12, v11, 2, v4\nv_lshlrev_b32 v12, 4, v12\nv_lshlrev_b32 v11, 4, v11\nv_add_u32 v11, 1536, v11\nv_cndmask_b32 v11, v9, v11, vcc")
    k("v_lshlrev_b32 v13, 3, v0")
    k(f"s_mov_b32 s33, {SPIN}")
    def ksum():
        k("v_pk_add_f32 v[28:29], v[32:33], v[36:37]\nv_pk_add_f32 v[30:31], v[34:35], v[38:39]")
        for j in range(2, 16): k(f"v_pk_add_f32 v[28:29], v[28:29], {V(KR(j),2)}\nv_pk_add_f32 v[30:31], v[30:31], {V(KR(j)+2,2)}")
        k("v_cmp_u_f32 vcc, v28, v29\nv_cmp_u_f32_e64 s[54:55], v30, v31\ns_or_b64 vcc, vcc, s[54:55]")
    ksum()
    stamp(3)
    k("s_cbranch_scc1 af_kvslow")
    k.label("af_kvgo", reset=False)
    k(f"v_cvt_pk_bf16_f32 v28, v28, v29\nv_cvt_pk_bf16_f32 v29, v30, v31\nds_write_b64 v13, v[28:29] offset:{KVS}")
    stamp(4)
    if not AT: cnt(5)
    k.wait_all(vm=False); k("s_barrier")
    for hh in range(2):
        b = 40 + 16*hh; o = 1600*hh + KVS
        k(f"ds_read_b128 {V(b,4)}, v5 offset:{o}\nds_read_b128 {V(b+4,4)}, v12 offset:{o+1280}\nds_read_b128 {V(b+8,4)}, v10 offset:{o}\nds_read_b128 {V(b+12,4)}, v11 offset:{o}")
    for hh in range(2):
        b = 40 + 16*hh; c = 72 + 8*hh; pq = V(16+4*hh, 4)
        k(MF(V(c,4), V(b,4), pq, "0")); k(MF(V(c+4,4), V(b+4,4), pq, "0"))
    for hh in range(2):
        b = 40 + 16*hh; c = 72 + 8*hh
        k(MF(V(c+4,4), V(b+12,4), "v[24:27]", V(c+4,4))); k(MF(V(c,4), V(b+8,4), "v[24:27]", V(c,4)))
    for hh in range(2):
        c = 72 + 8*hh
        bf16r(k, f"v{c+6}", f"v{c+6}")
        k(f"v_add_f32 v{c+6}, 0x358637bd, v{c+6}")
        bf16r(k, f"v{c+6}", f"v{c+6}")
        k(f"v_rcp_f32 v{c+6}, v{c+6}")
    for hh in range(2):
        c = 72 + 8*hh
        for j in range(6): k(f"v_mul_f32 v{c+j}, v{c+j}, v{c+6}")
        k(f"v_cvt_pk_bf16_f32 v{96+2*hh}, v{c}, v{c+1}\nv_cvt_pk_bf16_f32 v{97+2*hh}, v{c+2}, v{c+3}\nv_cvt_pk_bf16_f32 v{100+hh}, v{c+4}, v{c+5}")
    k("buffer_store_dwordx4 v[96:99], v5, s[16:19], s23 offen sc1\nbuffer_store_dwordx2 v[100:101], v8, s[16:19], s22 offen sc1")
    flag(83)
    for i in range(1, 5): k(f"s_add_u32 s{60+i}, s52, {8192*i}")
    k(f"s_mov_b32 s60, s52\ns_cmp_lt_u32 s3, 4\ns_cselect_b32 s64, s64, {INV}")
    while WL: k(WL.pop(0))
    poll(1, 82)
    if 'ob' in OPT: k('s_barrier')
    if E('OFD', 0): k(f"s_sleep {E('OFD', 0)}")
    ofl = lambda i: f"buffer_load_dwordx4 {V(56+4*i,4)}, v5, s[16:19], s{60+i} offen sc1"
    for i in range(5): k(ofl(i))
    k(f"v_add_u32 v10, s9, v5")
    k(f"v_mul_u32_u24 v14, 288, v3\nv_lshl_add_u32 v14, v4, 3, v14\ns_lshl_b32 s30, s15, 5\ns_add_u32 s30, s30, {XO}\nv_add_u32 v14, s30, v14")
    k(f"v_lshlrev_b32 v11, 2, v3\nv_add_u32 v9, {MO}, v11")
    k(f"s_mul_i32 s32, s37, 36\ns_lshr_b32 s14, s39, 1\ns_add_u32 s32, s32, s14\ns_lshl_b32 s32, s32, 10\ns_add_u32 s28, s32, {HR}\ns_add_u32 s32, s32, {HC}")
    k("s_add_u32 s34, s32, 18432\ns_add_u32 s35, s28, 18432")
    k(f"s_mov_b32 s31, 0xffff0000\ns_mov_b32 s33, {SPIN}")
    def ochk():
        for i in range(5):
            k(f"v_cmp_u_f32_e64 s[{66+2*i}:{67+2*i}], v{56+4*i}, v{57+4*i}\nv_cmp_u_f32 vcc, v{58+4*i}, v{59+4*i}\ns_or_b64 s[{66+2*i}:{67+2*i}], s[{66+2*i}:{67+2*i}], vcc")
        k("s_or_b64 vcc, s[66:67], s[68:69]\ns_or_b64 s[54:55], s[70:71], s[72:73]\ns_or_b64 vcc, vcc, s[74:75]\ns_or_b64 vcc, vcc, s[54:55]")
    ochk()
    stamp(6)
    k("s_cbranch_scc1 af_ofslow")
    k.label("af_ofgo", reset=False)
    for i in range(4): k(f"ds_write_b128 v10, {V(56+4*i,4)} offset:{OFL + 8192*i}")
    k("s_cmp_ge_u32 s3, 4\ns_cbranch_scc1 af_no5")
    k(f"ds_write_b128 v10, v[72:75] offset:{OFL + 32768}")
    k.label("af_no5", reset=False)
    stamp(7)
    if not AT: cnt(8)
    k("s_waitcnt vmcnt(0) lgkmcnt(0)\ns_barrier")
    k("s_cmp_ge_u32 s3, 5\ns_cbranch_scc1 " + ("af_lt" if LT and LTP == 99 else "af_end"))
    def rd(ks):
        k(f"ds_read_b128 {V(16+8*(ks%3),4)}, v5 offset:{OFL + ks*1024}\nds_read_b128 {V(20+8*(ks%3),4)}, v5 offset:{OFL + (18+ks)*1024}")
    rd(0); rd(1)
    for ks in range(18):
        if ks + 2 < 18: rd(ks + 2)
        if ks == 16:
            for tt in range(2):
                for t in range(2): k(f"ds_read_b64 {V(76+4*tt+2*t,2)}, v14 offset:{tt*4608+32*t}")
        for t in (1, 0):
            for tt in range(2):
                c = V(40 + 8*tt + 4*t, 4)
                k(MF(c, V(W3(ks)+4*t,4), V(16+8*(ks%3)+4*tt,4), c if ks else "0"))
    stamp(9)
    k("s_cmp_lt_u32 s3, 4\ns_cbranch_scc1 af_nomean")
    k.skip_begin()
    for tt in range(2):
        k(f"v_add_f32 v{44+8*tt}, v{44+8*tt}, v{45+8*tt}\nv_add_f32 v{44+8*tt}, v{44+8*tt}, v{(1, 15)[tt]}")
        bf16r(k, f"v{44+8*tt}", f"v{44+8*tt}")
    k("s_mov_b64 exec, 0xffff\nds_write_b32 v9, v44\nds_write_b32 v9, v52 offset:64\ns_mov_b64 exec, -1")
    k.wait_all(vm=False)
    k.skip_end("af_nomean")
    for tt in range(2):
        for t in range(2):
            for hf in range(2):
                c = 40 + 8*tt + 4*t + 2*hf; xr = 76 + 4*tt + 2*t + hf; ho = 96 + 4*tt + 2*t + hf
                k(f"v_cvt_pk_bf16_f32 v{c+1}, v{c}, v{c+1}\nv_lshlrev_b32 v{c}, 16, v{c+1}\nv_and_b32 v{c+1}, s31, v{c+1}")
                k(f"v_lshlrev_b32 v120, 16, v{xr}\nv_and_b32 v121, s31, v{xr}\nv_add_f32 v{c}, v{c}, v120\nv_add_f32 v{c+1}, v{c+1}, v121")
                k(f"v_cvt_pk_bf16_f32 v{ho}, v{c}, v{c+1}\nv_lshlrev_b32 v{c}, 16, v{ho}\nv_and_b32 v{c+1}, s31, v{ho}")
    k("s_barrier")
    k("ds_read_b32 v12, v9\nds_read_b32 v13, v9 offset:64")
    k("s_cmp_lt_u32 s3, 4\ns_cbranch_scc0 af_single")
    k.skip_begin()
    k("buffer_store_dwordx4 v[96:99], v5, s[16:19], s28 offen\nbuffer_store_dwordx4 v[100:103], v5, s[16:19], s35 offen")
    def hc(tt, ts):
        for t in ts:
            for hf in range(2):
                c = 40 + 8*tt + 4*t + 2*hf; co = 112 + 4*tt + 2*t + hf
                k(f"v_sub_f32 v{c}, v{c}, v{12+tt}\nv_sub_f32 v{c+1}, v{c+1}, v{12+tt}\nv_cvt_pk_bf16_f32 v{co}, v{c}, v{c+1}")
    hc(0, (0, 1)); k("buffer_store_dwordx4 v[112:115], v5, s[16:19], s32 offen")
    hc(1, (0, 1)); k("buffer_store_dwordx4 v[116:119], v5, s[16:19], s34 offen")
    k("s_endpgm")
    k.skip_end("af_single")
    k("s_and_b32 s14, s39, 1\ns_lshl_b32 s14, s14, 3\nv_add_u32 v10, s14, v5\ns_nop 1")
    k("buffer_store_dwordx2 v[96:97], v10, s[16:19], s28 offen\nbuffer_store_dwordx2 v[100:101], v10, s[16:19], s35 offen")
    hc(0, (0,)); hc(1, (0,))
    k("buffer_store_dwordx2 v[112:113], v10, s[16:19], s32 offen\nbuffer_store_dwordx2 v[116:117], v10, s[16:19], s34 offen")
    k.label("af_end")
    k("s_endpgm")
    if LT and LTP == 99:
        k.label("af_lt")
        late_touch()
        k("s_endpgm 0")
    k.label("af_kvslow")
    k("s_sub_u32 s33, s33, 1\ns_cmp_lt_i32 s33, 0\ns_cbranch_scc1 af_kvgo")
    for j in range(16):
        k(f"v_cmp_u_f32 vcc, v{KR(j)}, v{KR(j)+1}\nv_cmp_u_f32_e64 s[54:55], v{KR(j)+2}, v{KR(j)+3}\ns_or_b64 vcc, vcc, s[54:55]\ns_cbranch_scc0 af_kv{j}")
        k(kvl(j))
        k.label(f"af_kv{j}")
    k("s_waitcnt vmcnt(0)")
    ksum()
    k("s_cbranch_scc1 af_kvslow\ns_branch af_kvgo")
    k.label("af_ofslow")
    k("s_sub_u32 s33, s33, 1\ns_cmp_lt_i32 s33, 0\ns_cbranch_scc1 af_ofgo")
    for i in range(5):
        k(f"s_cmp_eq_u64 s[{66+2*i}:{67+2*i}], 0\ns_cbranch_scc1 af_of{i}")
        k(ofl(i))
        k.label(f"af_of{i}")
    k("s_waitcnt vmcnt(0)")
    ochk()
    k("s_cbranch_scc1 af_ofslow\ns_branch af_ofgo")
    return k
```

```python
XN   = 0x0000000
WF   = 0x0240000
WOF  = 0x0440000
MX   = 0x0500000
SSQ  = 0x0508000
KVP  = 0x0540000
PQL  = 0x06D0000
PQ   = 0x0800000
OF   = 0x0C00000
HC   = 0x0E80000
HR   = 0x1100000
PART = 0x1400000
import os
if 'af' in os.environ.get('OPT', '').split(','): OF = 0x06D0000
FL0  = 0x0910000
FL1  = 0x0918000
FLG  = 0x3800000
PROF = 0x8000000
WSSZ = 0x10000000
INV  = 0x40000000
LOG2E = 0x3fb8aa3b

def srd(k, d, p, size):
    k(f"s_mov_b32 s{d}, s{p}\ns_mov_b32 s{d+1}, s{p+1}\ns_mov_b32 s{d+2}, {size}\ns_mov_b32 s{d+3}, 0x20000")

def bf16r(k, dst, src):
    k(f"v_cvt_pk_bf16_f32 {dst}, {src}, {src}\nv_lshlrev_b32 {dst}, 16, {dst}")

def V(a, n=1): return f"v{a}" if n == 1 else f"v[{a}:{a+n-1}]"
def A(a, n=1): return f"a{a}" if n == 1 else f"a[{a}:{a+n-1}]"
def MF(d, a, b, c): return f"v_mfma_f32_16x16x32_bf16 {d}, {a}, {b}, {c}"


CODE_SZ = {"attn_kernel": 12288, "attn1_kernel": 8192, "attn2_kernel": 4096, "attn3_kernel": 4096, "ffn_kernel": 40960, "red_kernel": 4096}
def pf_code(k, target, vt, st, nb=None, s3=None, vl='v0'):
    nb = nb or CODE_SZ[target]
    n = (nb // 128 + 31) // 32
    lab = f"{k.name}_pc_{target}"
    s3 = st + 2 if s3 is None else s3
    k(f"s_getpc_b64 s[{st}:{st+1}]")
    k.raw(f"{lab}:")
    k(f"s_add_u32 s{st}, s{st}, {target}-{lab}\ns_addc_u32 s{st+1}, s{st+1}, 0")
    k(f"s_bfe_u32 s{s3}, s2, 0x50003\ns_mul_i32 s{s3}, s{s3}, {n*128}\nv_min_u32 v{vt}, {n-1}, {vl}\nv_lshlrev_b32 v{vt}, 7, v{vt}\nv_add_u32 v{vt}, s{s3}, v{vt}\nv_min_u32 v{vt}, {target}_codeend-{target}-4, v{vt}")
    k(f"global_load_dword v{vt+1}, v{vt}, s[{st}:{st+1}]")

def pf_w(k, which, vt, st, mod="", part=3):
    if part & 1: pf_w_setup(k, vt, st)
    if part & 2: pf_w_issue(k, which, vt, st, mod)
def pf_w_setup(k, vt, st):
    k(f"s_load_dwordx4 s[{st}:{st+3}], s[0:1], 40\ns_load_dwordx2 s[{st+8}:{st+9}], s[0:1], 56")
    k(f"v_mul_u32_u24 v{vt}, 7282, v0\nv_lshrrev_b32 v{vt}, 16, v{vt}\nv_mul_u32_u24 v{vt+1}, {9216-1152}, v{vt}\nv_lshl_add_u32 v{vt}, v0, 7, v{vt+1}\nv_lshlrev_b32 v{vt+1}, 7, v0")
    k(f"v_mov_b32 v{vt+2}, {INV}\nv_cmp_gt_u32 vcc, 162, v0\nv_cndmask_b32 v{vt}, v{vt+2}, v{vt}, vcc\nv_cndmask_b32 v{vt+1}, v{vt+2}, v{vt+1}, vcc")
    k(f"s_mov_b32 s{st+4}, s{st+2}\ns_mov_b32 s{st+5}, s{st+3}")
    for b in (0, 4, 8): k(f"s_mov_b32 s{st+b+2}, 5308416\ns_mov_b32 s{st+b+3}, 0x20000")
    k(f"s_and_b32 s{st+12}, s2, 7\ns_bfe_u32 s{st+13}, s2, 0x50003\ns_mul_i32 s{st+14}, s{st+13}, {18*9216}\ns_mul_i32 s{st+15}, s{st+12}, 1152\ns_add_u32 s{st+14}, s{st+14}, s{st+15}")
    k(f"s_mul_i32 s{st+15}, s{st+12}, 663552\ns_mul_i32 s{st+13}, s{st+13}, {162*128}\ns_add_u32 s{st+15}, s{st+15}, s{st+13}")
def pf_w_issue(k, which, vt, st, mod=""):
    if '1' in which: k(f"buffer_load_dword v{vt+3}, v{vt}, s[{st}:{st+3}], s{st+14} offen {mod}")
    if '3' in which: k(f"buffer_load_dword v{vt+4}, v{vt}, s[{st+4}:{st+7}], s{st+14} offen {mod}")
    if '2' in which: k(f"buffer_load_dword v{vt+5}, v{vt+1}, s[{st+8}:{st+11}], s{st+15} offen {mod}")

def pf13_addr(k, vd, vu, vt, L, rows, vinv, stride=9216):
    n = len(L); pack = sum(l << (4*i) for i, l in enumerate(L))
    k(f"v_mul_u32_u24 v{vd}, {65536 // n + 1}, {vu}\nv_lshrrev_b32 v{vd}, 16, v{vd}\nv_mul_u32_u24 v{vt}, {n}, v{vd}\nv_sub_u32 v{vt}, {vu}, v{vt}\nv_lshlrev_b32 v{vt}, 2, v{vt}")
    k(f"v_lshrrev_b32 v{vt}, v{vt}, {pack}".replace(f", {pack}", f", v{vt+1}").replace("v_lshrrev_b32", f"v_mov_b32 v{vt+1}, {pack}\nv_lshrrev_b32"))
    k(f"v_and_b32 v{vt}, 15, v{vt}\nv_mul_u32_u24 v{vd}, {stride}, v{vd}\nv_lshl_add_u32 v{vd}, v{vt}, 7, v{vd}\nv_cmp_gt_u32 vcc, {rows*n}, {vu}\nv_cndmask_b32 v{vd}, {vinv}, v{vd}, vcc")

def touch_load(k, st): k(f"s_load_dwordx4 s[{st}:{st+3}], s[0:1], 40\ns_load_dwordx2 s[{st+8}:{st+9}], s[0:1], 56")
def touch_setup(k, L13, L2, vb, st):
    k(f"v_mov_b32 v{vb+2}, {INV}")
    if L13: pf13_addr(k, vb, "v0", vb+3, L13, 18, f"v{vb+2}")
    if L2: pf13_addr(k, vb+1, "v0", vb+3, L2, 18, f"v{vb+2}", 1152)
    k(f"s_and_b32 s{st+14}, s2, 7\ns_bfe_u32 s{st+15}, s2, 0x50003\ns_mul_i32 s{st+12}, s{st+15}, {18*9216}\ns_mul_i32 s{st+13}, s{st+14}, 1152\ns_add_u32 s{st+12}, s{st+12}, s{st+13}")
    k(f"s_mul_i32 s{st+13}, s{st+14}, 663552\ns_mul_i32 s{st+15}, s{st+15}, 20736\ns_add_u32 s{st+13}, s{st+13}, s{st+15}")
    k(f"s_mov_b32 s{st+4}, s{st+2}\ns_mov_b32 s{st+5}, s{st+3}")
    for b in (0, 4, 8): k(f"s_mov_b32 s{st+b+2}, 5308416\ns_mov_b32 s{st+b+3}, 0x20000")
def touch_issue(k, L13, L2, vb, st):
    if L13: k(f"buffer_load_dword v{vb+3}, v{vb}, s[{st}:{st+3}], s{st+12} offen\nbuffer_load_dword v{vb+4}, v{vb}, s[{st+4}:{st+7}], s{st+12} offen")
    if L2: k(f"buffer_load_dword v{vb+5}, v{vb+1}, s[{st+8}:{st+11}], s{st+13} offen")
```

```python
import sys
sys.path.insert(0, 'dev')
from asmlib import *

from wsmap import *
from gen3 import k3, k4
from genf import af
import os
OPT = set(os.environ.get('OPT', '').split(','))
L0 = [int(c) for c in os.environ.get('L0', '0156')]
L1 = [int(c) for c in os.environ.get('L1', '23478')]
LA2, LA2W, LA3, LA3W = [[int(c) for c in os.environ.get(n, '')] for n in ('LA2', 'LA2W', 'LA3', 'LA3W')]

def k0():
    BS = 288; RAW = 128*BS; IS = 1056; DUM = RAW + 24*IS
    AF = 'af' in OPT
    NG = int(os.environ.get('NG', 256))
    NT = int(os.environ.get('NT', 0)); LT0 = [int(c) for c in os.environ.get('LT0', '012345678')]
    k = Kern("prep_kernel", vgpr=256, lds=DUM + 16, block=256, grid=NG + NT if AF else 248)
    FN = dict(zip('woix', [int(c) for c in os.environ.get('FILL', '4,4,4,4').split(',')]))
    NIDLE = 6 + NG - 248
    assert 96*FN['w'] + 18*FN['o'] + NIDLE*FN['i'] + 128*FN['x'] >= 1024
    FMOD = os.environ.get('FMOD', 'sc1')
    def fill(job):
        n = FN[job]
        if not AF or not n: return
        base = dict(w=0, o=96*FN['w'] - 96*n, i=96*FN['w'] + 18*FN['o'] - 114*n, x=96*FN['w'] + 18*FN['o'] + NIDLE*FN['i'] - 120*n)[job]
        if job == 'i': k("s_sub_u32 s65, s2, 128\ns_cmp_lt_u32 s2, 120\ns_cselect_b32 s65, s2, s65")
        else: k("s_mov_b32 s65, s2")
        k(f"s_mul_i32 s64, s65, {n*4096}\ns_add_u32 s64, s64, {(base*4096) & 0xffffffff}\nv_lshlrev_b32 v243, 4, v0")
        k(f"s_add_u32 s60, s12, {KVP}\ns_addc_u32 s61, s13, 0\ns_mov_b32 s62, 0x400000\ns_mov_b32 s63, 0x20000")
        for j in range(4): k(f"v_mov_b32 v{244+j}, -1")
        for j in range(n): k(f"buffer_store_dwordx4 v[244:247], v243, s[60:63], s64 offen {FMOD}\ns_add_u32 s64, s64, 4096")
    if AF: k(f"s_cmp_ge_u32 s2, {NG}\ns_cbranch_scc1 " + ("prep_touch" if NT else "prep_end"))
    k("s_load_dwordx8 s[4:11], s[0:1], 0\ns_load_dwordx2 s[12:13], s[0:1], 80")
    k("s_getpc_b64 s[40:41]\nv_lshlrev_b32 v250, 5, v0\nv_min_u32 v250, prep_kernel_codeend-prep_kernel-64, v250\nglobal_load_dword v252, v250, s[40:41]")
    k("v_and_b32 v1, 63, v0\nv_lshrrev_b32 v2, 6, v0\nv_readfirstlane_b32 s3, v2")
    k("v_and_b32 v3, 15, v1\nv_lshrrev_b32 v4, 4, v1")
    k("v_lshlrev_b32 v5, 4, v1")
    k("v_mov_b32 v6, 0x40000000")
    if AF and 'pc' in OPT: pf_code(k, "attn_kernel", 248, 66)
    k("s_cmp_ge_u32 s2, 96\ns_cbranch_scc1 prep_notw")
    k("s_lshr_b32 s29, s2, 4\ns_bfe_u32 s28, s2, 0x10003\ns_and_b32 s30, s2, 3\ns_lshl_b32 s30, s30, 1\ns_add_u32 s28, s28, s30\ns_and_b32 s30, s2, 4\ns_lshl_b32 s30, s30, 1\ns_add_u32 s28, s28, s30")
    k("v_mul_u32_u24 v7, 13108, v1\nv_lshrrev_b32 v7, 16, v7")
    k("v_mul_u32_u24 v8, 5, v7\nv_sub_u32 v8, v1, v8")
    k("v_mul_u32_u24 v9, 21846, v7\nv_lshrrev_b32 v9, 16, v9")
    k("v_mul_u32_u24 v10, 3, v9\nv_sub_u32 v10, v7, v10")
    k("v_mul_u32_u24 v9, 3456, v9\nv_mul_u32_u24 v10, 1152, v10\nv_lshlrev_b32 v8, 4, v8\nv_add3_u32 v7, v9, v10, v8")
    k("s_mul_i32 s30, s28, 72\ns_and_b32 s30, s30, 0xfffffff0\ns_mul_i32 s31, s29, 331776\ns_add_u32 s30, s30, s31\ns_mul_i32 s31, s3, 13824\ns_add_u32 s30, s30, s31")
    k(f"s_mul_i32 s32, s3, {IS}\ns_add_u32 s32, s32, {RAW}")
    k("v_lshlrev_b32 v8, 2, v0\ns_mul_i32 s33, s28, 1296")
    k("v_mov_b32 v20, 0\nv_mov_b32 v21, 0\nv_mov_b32 v22, 0\nv_mov_b32 v23, 0\nv_lshlrev_b32 v9, 4, v0")
    for i in range(9): k(f"ds_write_b128 v9, v[20:23] offset:{4096*i}")
    srd(k, 24, 8, 20736); srd(k, 20, 6, 1990656)
    k("buffer_load_dword v16, v8, s[24:27], s33 offen\nbuffer_load_dword v17, v8, s[24:27], s33 offen offset:1024")
    for i in range(6):
        k(f"s_add_u32 m0, s32, {4*IS*i}\nbuffer_load_dwordx4 v7, s[20:23], s30 offen lds\ns_add_u32 s30, s30, {16*3456}")
    srd(k, 16, 12, WSSZ)
    k("s_and_b32 s34, s28, 1\ns_lshl_b32 s34, s34, 2")
    k(f"v_mov_b32 v24, {DUM}")
    for rnd, (e, ad) in enumerate((("v0", 26), ("v25", 27))):
        if rnd: k("v_add_u32 v25, 256, v0")
        k(f"v_cmp_lt_u32 vcc, 161, {e}\nv_cndmask_b32_e64 v10, 0, 1, vcc")
        k(f"v_mul_u32_u24 v11, 162, v10\nv_sub_u32 v11, {e}, v11")
        k("v_mul_u32_u24 v12, 7282, v11\nv_lshrrev_b32 v12, 16, v12")
        k("v_mul_u32_u24 v13, 9, v12\nv_sub_u32 v13, v11, v13")
        k("v_mul_u32_u24 v14, 18, v10\nv_add3_u32 v14, v14, v12, s34")
        k("v_lshrrev_b32 v15, 1, v13\nv_lshlrev_b32 v15, 5, v15\nv_and_b32 v13, 1, v13\nv_lshl_add_u32 v15, v13, 2, v15\nv_lshl_add_u32 v15, v10, 3, v15")
        k(f"v_mul_u32_u24 v14, {BS}, v14\nv_add_u32 v{ad}, v14, v15\nv_add_u32 v{ad+2}, {40*BS+16}, v{ad}")
        if rnd: k(f"v_cmp_gt_u32 vcc, 324, v25\nv_cndmask_b32 v{ad}, v24, v{ad}, vcc\nv_cndmask_b32 v{ad+2}, v24, v{ad+2}, vcc")
    k("v_cmp_lt_u32 vcc, 17, v0\nv_cndmask_b32_e64 v10, 0, 1, vcc\nv_mul_u32_u24 v11, 18, v10\nv_sub_u32 v11, v0, v11")
    k("v_lshl_add_u32 v12, v10, 4, v11\nv_add_u32 v12, 80, v12\nv_lshl_add_u32 v13, v10, 2, v11\nv_add_u32 v13, 50, v13")
    k("v_cmp_gt_u32 vcc, 16, v11\nv_cndmask_b32 v12, v13, v12, vcc")
    k(f"v_add_u32 v13, s34, v0\nv_add_u32 v13, 80, v13\nv_mul_u32_u24 v13, {BS}, v13\nv_lshl_add_u32 v30, v12, 1, v13")
    k("v_cmp_gt_u32 vcc, 36, v0\nv_cndmask_b32 v30, v24, v30, vcc\nv_mov_b32 v31, 0x3f80")
    k.stamp(1)
    k.wait_all(vm=False); k("s_barrier")
    k("ds_write_b16 v30, v31\nds_write_b32 v26, v16\nds_write_b32 v28, v16\nds_write_b32 v27, v17\nds_write_b32 v29, v17")
    k("v_lshrrev_b32 v10, 2, v3\nv_and_b32 v11, 3, v3")
    k(f"v_lshl_add_u32 v12, v4, 3, v10\nv_mul_u32_u24 v12, {BS}, v12\nv_lshl_add_u32 v12, v11, 3, v12\ns_lshl_b32 s35, s3, 5\nv_add_u32 v12, s35, v12")
    k(f"v_mul_u32_u24 v13, 240, v11\nv_mul_u32_u24 v14, {2*IS}, v10\nv_lshl_add_u32 v13, v4, 4, v13\nv_add_u32 v13, v13, v14\nv_add_u32 v13, {RAW}, v13")
    k(f"s_mul_i32 s36, s28, 18\ns_mul_i32 s37, s29, 3\ns_add_u32 s36, s36, s37\ns_mul_i32 s36, s36, 7\ns_add_u32 s36, s36, s3\ns_lshl_b32 s36, s36, 10\ns_add_u32 s36, s36, {WF}")
    k(f"s_add_u32 s37, s36, 4096\ns_cmp_lt_u32 s3, 3\ns_cselect_b32 s37, s37, {INV}")
    k.stamp(2)
    k.wait_all(); k("s_barrier")
    k.stamp(3)
    def rdB(s):
        for ts in range(2):
            for h in range(2):
                k(f"ds_read_b64_tr_b16 {V(32+16*ts+4*s+2*h,2)}, v12 offset:{(32*s+4*h)*BS+128*ts}")
    def rdA(db, s):
        for hf in range(2): k(f"ds_read_b128 {V(64+32*db+16*hf+4*s,4)}, v13 offset:{db*8*IS+hf*IS+s*64}")
    for s in range(4): rdB(s); rdA(0, s)
    for db in range(1, 3):
        for s in range(4): rdA(db, s)
    fill('w')
    for db in range(3):
        for s in range(4):
            for hf in range(2):
                for ts in range(2):
                    c = V(160+16*db+8*ts+4*hf, 4)
                    k(MF(c, V(64+32*db+16*hf+4*s,4), V(32+16*ts+4*s,4), c if s else "0"))
        if db:
            for ts in range(2):
                c = 160+16*(db-1)+8*ts; o = 208+8*(db-1)+4*ts
                for j in range(4): k(f"v_cvt_pk_bf16_f32 v{o+j}, v{c+2*j}, v{c+2*j+1}")
                k(f"buffer_store_dwordx4 {V(o,4)}, v5, s[16:19], s{36+ts} offen")
            k("s_add_u32 s36, s36, 7168\ns_add_u32 s37, s37, 7168")
    k.stamp(4)
    for ts in range(2):
        c = 160+32+8*ts; o = 208+16+4*ts
        for j in range(4): k(f"v_cvt_pk_bf16_f32 v{o+j}, v{c+2*j}, v{c+2*j+1}")
        k(f"buffer_store_dwordx4 {V(o,4)}, v5, s[16:19], s{36+ts} offen")
    k("s_endpgm")
    k.label("prep_notw")
    k("s_cmp_lt_u32 s2, 120\ns_cbranch_scc1 prep_wo\ns_cmp_ge_u32 s2, 248\ns_cbranch_scc1 " + ("prep_fill" if AF else "prep_end"))
    k("s_sub_u32 s35, s2, 120\ns_lshr_b32 s36, s35, 3\ns_and_b32 s37, s35, 3\ns_lshl_b32 s37, s37, 1\ns_bfe_u32 s38, s35, 0x10002\ns_add_u32 s37, s37, s38\ns_lshl_b32 s37, s37, 4\ns_add_u32 s37, s37, s36")
    k("v_lshrrev_b32 v7, 4, v0")
    k("v_mul_u32_u24 v8, 1152, v7\nv_lshl_add_u32 v8, v3, 4, v8")
    k("v_add_u32 v9, 1024, v8\nv_cmp_gt_u32 vcc, 8, v3\nv_cndmask_b32 v9, v6, v9, vcc")
    k("s_mul_i32 s28, s37, 18432")
    k("s_waitcnt lgkmcnt(0)")
    srd(k, 20, 4, 2359296)
    for j in range(4): k(f"buffer_load_dwordx4 {V(16+4*j,4)}, v8, s[20:23], s28 offen offset:{256*j}")
    k(f"buffer_load_dwordx4 v[32:35], v9, s[20:23], s28 offen")
    srd(k, 16, 12, WSSZ)
    if 'pc' in OPT and not AF: pf_code(k, "attn1_kernel", 250, 40)
    fill('x')
    k("v_xor_b32 v10, v7, v3\nv_lshlrev_b32 v10, 4, v10\nv_lshl_add_u32 v10, v3, 8, v10")
    k("s_lshl_b32 s29, s3, 2\nv_add_u32 v11, s29, v4\nv_xor_b32 v12, v3, v11\nv_lshlrev_b32 v12, 4, v12\nv_lshl_add_u32 v11, v11, 8, v12")
    k("s_mov_b32 s30, 0xffff0000")
    if 'k0w' in OPT:
        k("s_load_dwordx4 s[44:47], s[0:1], 40")
        pf13_addr(k, 84, "v0", 85, L0, 36, "v6")
        k(f"s_and_b32 s52, s2, 7\ns_mul_i32 s52, s52, 1152\ns_mul_i32 s53, s36, {36*9216}\ns_add_u32 s52, s52, s53")
        k("s_mov_b32 s48, s46\ns_mov_b32 s49, s47\ns_mov_b32 s46, 5308416\ns_mov_b32 s47, 0x20000\ns_mov_b32 s50, 5308416\ns_mov_b32 s51, 0x20000")
    def xt(pos):
        if 'k0w' in OPT and int(os.environ.get('K0P', 0)) == pos:
            k("buffer_load_dword v87, v84, s[44:47], s52 offen\nbuffer_load_dword v88, v84, s[48:51], s52 offen")
    xt(2)
    k(f"s_lshl_b32 s33, s3, 10\ns_add_u32 s33, s33, s28\ns_add_u32 s34, s33, 16384\ns_cmp_lt_u32 s3, 2\ns_cselect_b32 s34, s34, {INV}")
    k(f"s_lshl_b32 s32, s37, 6\ns_add_u32 s32, s32, {MX}")
    k("v_lshlrev_b32 v13, 2, v7\nv_cmp_eq_u32 vcc, 0, v3\nv_cndmask_b32 v13, v6, v13, vcc")
    k("s_mov_b32 s31, 0x3ae38e39")
    for i in range(20):
        k(f"v_lshlrev_b32 v{40+2*i}, 16, v{16+i}\nv_and_b32 v{41+2*i}, s30, v{16+i}")
        if i == 1: k("v_add_f32 v80, v40, v41\nv_mul_f32 v82, v40, v40\nv_mul_f32 v83, v41, v41\nv_add_f32 v81, v42, v43\nv_fmac_f32 v82, v42, v42\nv_fmac_f32 v83, v43, v43")
        if i >= 2:
            a = 80 + (i % 2)
            k(f"v_add_f32 v{a}, v{a}, v{40+2*i}\nv_fmac_f32 v82, v{40+2*i}, v{40+2*i}\nv_add_f32 v{a^1}, v{a^1}, v{41+2*i}\nv_fmac_f32 v83, v{41+2*i}, v{41+2*i}")
    k("v_add_f32 v80, v80, v81\nv_add_f32 v82, v82, v83")
    for r in (8, 4, 2, 1):
        k(f"v_add_f32_dpp v80, v80, v80 row_ror:{r} row_mask:0xf bank_mask:0xf\nv_add_f32_dpp v82, v82, v82 row_ror:{r} row_mask:0xf bank_mask:0xf")
    k("v_mul_f32 v80, s31, v80\nv_mul_f32 v82, s31, v82\nv_fma_f32 v82, -v80, v80, v82\nv_max_f32 v82, 0, v82")
    k.stamp(1)
    xt(1)
    bf16r(k, "v81", "v80"); bf16r(k, "v82", "v82")
    k("v_add_f32 v82, 0x3727c5ac, v82"); bf16r(k, "v82", "v82")
    k("v_sqrt_f32 v82, v82"); bf16r(k, "v82", "v82")
    k("v_rcp_f32 v82, v82\nv_mul_f32 v81, v81, v82")
    for i in range(20):
        k(f"v_fma_f32 v{40+2*i}, v{40+2*i}, v82, -v81\nv_fma_f32 v{41+2*i}, v{41+2*i}, v82, -v81\nv_cvt_pk_bf16_f32 v{16+i}, v{40+2*i}, v{41+2*i}")
        if i % 4 == 3: k(f"ds_write_b128 v10, {V(13+i,4)} offset:{4096*(i//4)}")
    k("buffer_store_dword v80, v13, s[16:19], s32 offen")
    k.stamp(2)
    xt(3)
    k.wait_all(vm=False); k("s_barrier")
    for i in range(5): k(f"ds_read_b128 {V(16+4*i,4)}, v11 offset:{4096*i}")
    for i in range(4):
        k(f"buffer_store_dwordx4 {V(16+4*i,4)}, v5, s[16:19], s33 offen")
        k("s_add_u32 s33, s33, 4096")
    k("buffer_store_dwordx4 v[32:35], v5, s[16:19], s34 offen")
    xt(0)
    k("s_endpgm")
    RS = 1056; TB = 32*RS
    k.label("prep_wo")
    k("s_cmp_ge_u32 s2, 114\ns_cbranch_scc1 prep_zero")
    k("s_sub_u32 s28, s2, 96")
    k("s_mul_i32 s29, s28, 36\ns_sub_u32 s30, s28, 16\ns_mul_i32 s30, s30, 288\ns_add_u32 s30, s30, 16")
    k("s_cmp_lt_u32 s28, 16\ns_cselect_b32 s29, s29, s30\ns_cselect_b32 s30, 18, 36\ns_cselect_b32 s31, 4, 72\ns_cselect_b32 s32, 2, 18")
    k("s_lshr_b32 s33, s3, 1\ns_mul_i32 s33, s33, s30\ns_add_u32 s29, s29, s33\ns_and_b32 s33, s3, 1\ns_mul_i32 s33, s33, s31\ns_lshl_b32 s33, s33, 1\ns_add_u32 s29, s29, s33")
    k("s_mul_i32 s29, s29, 1152\ns_mul_i32 s31, s31, 1152\ns_mul_i32 s32, s32, 1152")
    k(f"s_mul_i32 s34, s3, {8*RS}")
    k("s_waitcnt lgkmcnt(0)")
    srd(k, 20, 10, 663552)
    for kk in range(8):
        k("s_mov_b32 s35, s29")
        if kk >> 2: k("s_add_u32 s35, s35, s31")
        if (kk & 3) >> 1: k("s_add_u32 s35, s35, s32")
        if kk & 1: k("s_add_u32 s35, s35, 1152")
        k(f"s_add_u32 m0, s34, {kk*RS}\nbuffer_load_dwordx4 v5, s[20:23], s35 offen lds")
    k("v_lshrrev_b32 v7, 5, v1\nv_mul_lo_u32 v7, v7, s31\nv_bfe_u32 v8, v1, 4, 1\nv_mul_lo_u32 v8, v8, s32\nv_bfe_u32 v9, v1, 3, 1\nv_mul_u32_u24 v9, 1152, v9")
    k("v_add3_u32 v7, v7, v8, v9\nv_and_b32 v8, 7, v1\nv_lshl_add_u32 v7, v8, 4, v7")
    k(f"s_lshl_b32 s34, s3, 10\ns_add_u32 m0, s34, {TB-1024}\nbuffer_load_dwordx4 v7, s[20:23], s29 offen offset:1024 lds")
    srd(k, 16, 12, WSSZ)
    k("v_lshrrev_b32 v10, 2, v3\nv_and_b32 v11, 3, v3\nv_lshl_add_u32 v12, v4, 2, v10\ns_lshl_b32 s35, s3, 5")
    k(f"v_lshlrev_b32 v13, 3, v11\nv_add_u32 v13, s35, v13\nv_mul_u32_u24 v14, {RS}, v12\nv_add_u32 v14, v14, v13\nv_lshl_add_u32 v15, v12, 7, v13\nv_add_u32 v15, {TB}, v15")
    k(f"s_and_b32 s36, s3, 1\ns_lshl_b32 s37, s36, 4\nv_add_u32 v16, s37, v3\nv_lshlrev_b32 v17, 4, v4\nv_mul_u32_u24 v18, {RS}, v16\nv_add_u32 v18, v18, v17\nv_lshl_add_u32 v19, v16, 7, v17\nv_add_u32 v19, {TB}, v19")
    for j in range(4): k(f"v_mov_b32 v{20+j}, 0x3f803f80")
    k("v_lshl_add_u32 v24, v10, 4, v4\nv_lshlrev_b32 v24, 4, v24\nv_lshl_add_u32 v24, v11, 1, v24\ns_lshl_b32 s37, s36, 3\nv_add_u32 v24, s37, v24\nv_cmp_gt_u32 vcc, 2, v4\nv_cndmask_b32 v24, v6, v24, vcc")
    k(f"s_mul_i32 s38, s3, 18\ns_add_u32 s38, s38, s28\ns_lshl_b32 s38, s38, 10\ns_add_u32 s38, s38, {WOF}")
    k.stamp(1)
    k.wait_all(); k("s_barrier")
    k.stamp(2)
    for i in range(9):
        for h in range(2):
            if i < 8: k(f"ds_read_b64_tr_b16 {V(32+4*i+2*h,2)}, v14 offset:{h*16*RS+128*i}")
            else: k(f"ds_read_b64_tr_b16 {V(32+4*i+2*h,2)}, v15 offset:{h*2048}")
    for s in range(18):
        if s < 16: k(f"ds_read_b128 {V(72+4*s,4)}, v18 offset:{64*s}")
        else: k(f"ds_read_b128 {V(72+4*s,4)}, v19 offset:{64*(s-16)}")
    fill('o')
    for i in range(9):
        k(f"buffer_store_dwordx4 {V(32+4*i,4)}, v5, s[16:19], s38 offen\ns_add_u32 s38, s38, {4*18*1024}")
    for s in range(18): k(MF(V(28 if s % 2 else 20+4+0, 4) if False else "v[28:31]", "v[20:23]", V(72+4*s,4), "v[28:31]" if s else "0"))
    k("s_mov_b32 s31, 0x3ae38e39\nv_mul_f32 v28, s31, v28")
    bf16r(k, "v29", "v28")
    k("v_sub_f32 v28, v28, v29\nv_cmp_eq_u32 vcc, 0, v4\nv_cndmask_b32 v28, v28, v29, vcc\nv_cvt_pk_bf16_f32 v28, v28, v28")
    k(f"s_lshl_b32 s38, s28, 10\ns_add_u32 s38, s38, {WOF + 36*18*1024}\nbuffer_store_short v28, v24, s[16:19], s38 offen")
    k("s_endpgm")
    k.label("prep_zero")
    if AF:
        k.label("prep_fill")
        k("s_waitcnt lgkmcnt(0)")
        fill('i')
        k("s_endpgm")
    k("s_cmp_ge_u32 s2, 116\ns_cbranch_scc1 prep_end")
    k(f"s_sub_u32 s28, s2, 114\ns_lshl_b32 s28, s28, 12\ns_add_u32 s28, s28, {FLG}\nv_lshlrev_b32 v7, 4, v0\nv_mov_b32 v8, 0\nv_mov_b32 v9, 0\nv_mov_b32 v10, 0\nv_mov_b32 v11, 0\ns_waitcnt lgkmcnt(0)")
    srd(k, 16, 12, WSSZ)
    k("buffer_store_dwordx4 v[8:11], v7, s[16:19], s28 offen")
    k.label("prep_end")
    k("s_endpgm")
    if NT:
        rows = 576 * 8 // NT; n = (rows * len(LT0) + 255) // 256
        k.label("prep_touch")
        k(f"s_cmp_ge_u32 s2, {NG + NT}\ns_cbranch_scc1 prep_end")
        k("s_load_dwordx4 s[44:47], s[0:1], 40\ns_load_dwordx2 s[52:53], s[0:1], 56\nv_mov_b32 v6, 0x40000000")
        for j in range(n):
            k(f"v_add_u32 v7, {256*j}, v0")
            pf13_addr(k, 16 + j, "v7", 8, LT0, rows, "v6")
        k(f"s_and_b32 s14, s2, 7\ns_sub_u32 s15, s2, {NG}\ns_lshr_b32 s15, s15, 3\ns_mul_i32 s16, s14, 1152\ns_mul_i32 s17, s15, {rows*9216}\ns_add_u32 s16, s16, s17")
        k("s_mov_b32 s48, s46\ns_mov_b32 s49, s47\ns_mov_b32 s46, 5308416\ns_mov_b32 s47, 0x20000\ns_mov_b32 s50, 5308416\ns_mov_b32 s51, 0x20000\ns_mov_b32 s54, 5308416\ns_mov_b32 s55, 0x20000")
        if os.environ.get('TD'): k(f"s_sleep {os.environ['TD']}")
        for j in range(n): k(f"buffer_load_dword v{32+2*j}, v{16+j}, s[44:47], s16 offen\nbuffer_load_dword v{33+2*j}, v{16+j}, s[48:51], s16 offen")
        n2 = int(os.environ.get('NW2', 0))
        if n2:
            k(f"s_mul_i32 s16, s14, 663552\ns_mul_i32 s17, s15, {n2*256*128}\ns_add_u32 s16, s16, s17\nv_lshlrev_b32 v7, 7, v0")
            for j in range(n2): k(f"buffer_load_dword v{64+j}, v7, s[52:55], s16 offen\ns_add_u32 s16, s16, 32768")
        k("s_endpgm")
    return k


def a1():
    ROWS = 129024
    XR = 16; NX = 6; WB = 40; AC = 96; EP = 40; PK = 60; VV = 78
    TW = 'tw' in OPT
    k = Kern("attn1_kernel", vgpr=128, lds=159744, block=576 if TW else 512, grid=256)
    k("s_cmp_ge_u32 s2, 256\ns_cbranch_scc1 a1_end")
    k("s_load_dwordx2 s[12:13], s[0:1], 80")
    if TW or 'a1t' in OPT: k("s_load_dwordx4 s[44:47], s[0:1], 40\ns_load_dwordx2 s[52:53], s[0:1], 56")
    k("v_and_b32 v1, 63, v0\nv_lshrrev_b32 v2, 6, v0\nv_readfirstlane_b32 s3, v2")
    k("v_lshlrev_b32 v5, 4, v1")
    k("s_and_b32 s4, s2, 7\ns_lshr_b32 s5, s2, 3")
    if TW: k("s_cmp_eq_u32 s3, 8\ns_cbranch_scc1 a1_tw")
    k("s_and_b32 s6, s4, 3\ns_lshl_b32 s6, s6, 2\ns_and_b32 s7, s5, 3\ns_add_u32 s6, s6, s7")
    k("s_lshr_b32 s7, s4, 2\ns_lshl_b32 s7, s7, 3\ns_lshr_b32 s5, s5, 2\ns_add_u32 s7, s7, s5")
    k("s_lshl_b32 s8, s6, 3\ns_add_u32 s8, s8, s3")
    k(f"s_lshl_b32 s9, s3, 10\ns_mul_i32 s10, s7, 129024\ns_add_u32 s10, s10, {WF}")
    k(f"s_mul_i32 s11, s8, 18432")
    ROT = 'rot' in OPT
    if ROT:
        k("s_and_b32 s14, s6, 3\ns_mul_i32 s14, s14, 9\ns_lshr_b32 s14, s14, 1\ns_mul_i32 s15, s5, 9\ns_lshr_b32 s15, s15, 2\ns_add_u32 s14, s14, s15\ns_sub_u32 s15, s14, 18\ns_cmp_ge_u32 s14, 18\ns_cselect_b32 s14, s15, s14")
        k("s_add_u32 s33, s10, 129024\ns_add_u32 s34, s11, 18432\ns_mul_i32 s15, s14, 7168\ns_add_u32 s10, s10, s15\ns_lshl_b32 s15, s14, 10\ns_add_u32 s11, s11, s15")
    k("s_add_u32 s10, s10, s9")
    wrapw = "\ns_sub_u32 s14, s10, 129024\ns_cmp_ge_u32 s10, s33\ns_cselect_b32 s10, s14, s10" if ROT else ""
    if ROT: k(wrapw)
    srd(k, 16, 12, WSSZ)
    LA = int(os.environ.get('A1LA', 4)); GB = int(os.environ.get('A1GB', 2))
    assert LA < NX
    st = dict(di=0, xi=0)
    def ld(upto):
        ops = []
        while st['xi'] <= min(upto, 17):
            ks = st['xi']
            while st['di'] <= (7*min(ks + 1, 17) + 6) // 8:
                di = st['di']
                ops.append((f"s_add_u32 m0, s9, {8192*di}\nbuffer_load_dwordx4 v5, s[16:19], s10 offen lds\ns_add_u32 s10, s10, 8192" + wrapw, f"D{di}")); st['di'] += 1
            if ROT: ops.append((f"buffer_load_dwordx4 {V(XR+4*(ks%NX),4)}, v5, s[16:19], s11 offen\ns_add_u32 s11, s11, 1024\ns_sub_u32 s15, s11, 18432\ns_cmp_ge_u32 s11, s34\ns_cselect_b32 s11, s15, s11", None))
            else: ops.append((f"buffer_load_dwordx4 {V(XR+4*(ks%NX),4)}, v5, s[16:19], s11 offen offset:{1024*(ks%4)}" + ("\ns_add_u32 s11, s11, 4096" if ks % 4 == 3 else ""), None))
            st['xi'] += 1
        return ops
    for o, t in ld(LA - 1): k(o, tag=t)
    if 'pc' in OPT and not TW: pf_code(k, "attn2_kernel", 124, 40)
    if 'a1t' in OPT:
        k("s_and_b32 s48, s3, 3\nv_lshl_add_u32 v123, v1, 2, s48\nv_mov_b32 v122, 0x40000000")
        pf13_addr(k, 127, "v123", 120, L1, 18, "v122")
        k(f"s_mul_i32 s48, s4, 1152\ns_lshr_b32 s49, s2, 3\ns_mul_i32 s49, s49, {18*9216}\ns_add_u32 s48, s48, s49")
        k("s_cmp_lt_u32 s3, 4\ns_cselect_b32 s44, s44, s46\ns_cselect_b32 s45, s45, s47\ns_mov_b32 s46, 5308416\ns_mov_b32 s47, 0x20000")
    k("v_and_b32 v3, 15, v1\nv_lshrrev_b32 v4, 4, v1\nv_mov_b32 v6, 0x40000000")
    k("v_lshlrev_b32 v7, 4, v3\nv_lshl_add_u32 v8, v4, 10, v7\nv_lshl_add_u32 v9, v4, 3, v7\nv_cmp_gt_u32 vcc, 2, v4\nv_cndmask_b32 v8, v6, v8, vcc\nv_cndmask_b32 v9, v6, v9, vcc")
    k(f"s_lshl_b32 s20, s8, 5\ns_lshl_b32 s21, s7, 1\ns_add_u32 s20, s20, s21\ns_lshl_b32 s20, s20, 10\ns_add_u32 s20, s20, {PQ}")
    k(f"s_lshl_b32 s21, s8, 4\ns_add_u32 s21, s21, s7\ns_lshl_b32 s21, s21, 8\ns_add_u32 s21, s21, {PQL}")
    k(f"s_mul_i32 s22, s3, 3840\ns_add_u32 s22, s22, {ROWS}\nv_mul_u32_u24 v10, 240, v3\nv_add_u32 v10, s22, v10")
    k("v_mul_u32_u24 v11, 80, v4\nv_add_u32 v11, v11, v10\nv_subrev_u32 v11, 160, v11")
    k("v_lshl_add_u32 v12, v4, 3, v10\nv_mul_u32_u24 v13, 40, v4\nv_add_u32 v13, v13, v10")
    k(f"s_mov_b32 s24, {LOG2E}\ns_mov_b32 s25, {LOG2E | 0x80000000}")
    k("s_cmp_ge_u32 s3, 3\ns_cselect_b32 s26, 1, 0\ns_mul_i32 s27, s26, 3\ns_sub_u32 s27, s3, s27")
    k(f"s_mul_i32 s28, s26, 80\ns_lshl_b32 s29, s27, 3\ns_cmp_lt_u32 s27, 2\ns_cselect_b32 s29, s29, 64\ns_cselect_b32 s30, 16, 0\ns_add_u32 s28, s28, s29\ns_add_u32 s28, s28, {ROWS}")
    k(f"s_mul_i32 s29, s26, 40\ns_add_u32 s29, s29, {ROWS+160}")
    k("v_lshrrev_b32 v7, 2, v3\nv_and_b32 v10, 3, v3\nv_lshl_add_u32 v7, v4, 3, v7\nv_mul_u32_u24 v7, 240, v7")
    k("v_mul_u32_u24 v124, s30, v10\nv_add3_u32 v124, v124, v7, s28")
    k("v_add_u32 v126, s29, v7\nv_lshl_add_u32 v125, v10, 3, v126")
    k(f"s_lshl_b32 s31, s7, 4\ns_add_u32 s31, s31, s6\ns_mul_i32 s31, s31, 6400\ns_mul_i32 s32, s26, 3200\ns_add_u32 s31, s31, s32\ns_add_u32 s31, s31, {KVP}")
    def reads(ks):
        out = []
        for t in range(7):
            off = (ks*7 + t) * 1024
            base = "v5" if off < 65536 else "v14"
            out.append(f"ds_read_b128 {V(WB+28*(ks%2)+4*t,4)}, {base} offset:{off % 65536}")
        return out
    def mfmas(ks):
        return [MF(V(AC+4*t, 4), V(WB+28*(ks%2)+4*t,4), V(XR+4*(ks%NX),4), V(AC+4*t, 4) if ks else "0") for t in range(7)]
    k("v_add_u32 v14, 0x10000, v5")
    nbar = 0
    def bar(upto):
        nonlocal nbar
        k.wait_vm(f"D{(7*min(upto, 17) + 6) // 8}"); k("s_barrier"); nbar += 1
    bar(0)
    k.stamp(1)
    for o in reads(0): k(o)
    for ks in range(18):
        if ks % GB == 0 and ks + 1 < 18: bar(ks + GB)
        if ks == 8: k.stamp(2)
        if ks == int(os.environ.get('A1T', 16)) and 'a1t' in OPT: k("buffer_load_dword v15, v127, s[44:47], s48 offen")
        R = reads(ks + 1) if ks + 1 < 18 else []
        L = ld(ks + LA)
        M = mfmas(ks)
        for o in R[:2]: k(o)
        R = R[2:]
        for i, m in enumerate(M):
            k(m)
            if R: k(R.pop(0))
            if L and i >= 2: o, t = L.pop(0); k(o, tag=t)
        for o, t in L: k(o, tag=t)
    k.stamp(3)
    A = lambda i: f"v{AC+i}"
    k(f"v_cvt_pk_bf16_f32 v{VV}, {A(20)}, {A(21)}\nv_cvt_pk_bf16_f32 v{VV+1}, {A(22)}, {A(23)}\nv_cvt_pk_bf16_f32 v{VV+2}, {A(24)}, {A(25)}\nv_cvt_pk_bf16_f32 v{VV+3}, {A(26)}, {A(27)}")
    k(f"v_cvt_pk_bf16_f32 v{VV+4}, {A(18)}, {A(19)}\nv_mov_b32 v{VV+5}, 0x3f80")
    k(f"ds_write_b64 v12, {V(VV,2)} offset:160\nds_write_b64 v12, {V(VV+2,2)} offset:200")
    k(f"s_mov_b64 exec, 0xffffffff\nds_write_b64 v13, {V(VV+4,2)} offset:192\ns_mov_b64 exec, -1")
    k(f"v_max3_f32 v84, {A(0)}, {A(1)}, {A(2)}\nv_min3_f32 v85, {A(0)}, {A(1)}, {A(2)}")
    for j in range(7): k(f"v_max3_f32 v84, v84, {A(3+2*j)}, {A(4+2*j)}\nv_min3_f32 v85, v85, {A(3+2*j)}, {A(4+2*j)}")
    k(f"v_max_f32 v84, v84, {A(17)}\nv_min_f32 v85, v85, {A(17)}")
    k("v_mul_f32 v86, s25, v84\nv_mul_f32 v87, s24, v85")
    for f in range(18):
        k(f"v_fma_f32 v{EP+f}, {A(f)}, s24, v86\nv_fma_f32 {A(f)}, {A(f)}, s25, v87")
        k(f"v_exp_f32 v{EP+f}, v{EP+f}\nv_exp_f32 {A(f)}, {A(f)}")
        if f == 1: k(f"v_add_f32 v84, v{EP}, v{EP+1}\nv_add_f32 v85, {A(0)}, {A(1)}")
        if f >= 2: k(f"v_add_f32 v84, v84, v{EP+f}\nv_add_f32 v85, v85, {A(f)}")
    k("v_rcp_f32 v84, v84\nv_rcp_f32 v85, v85")
    for j in range(9):
        k(f"v_mul_f32 v{EP+2*j}, v{EP+2*j}, v84\nv_mul_f32 v{EP+1+2*j}, v{EP+1+2*j}, v84\nv_cvt_pk_bf16_f32 v{PK+j}, v{EP+2*j}, v{EP+1+2*j}")
    for j in range(9):
        k(f"v_mul_f32 {A(2*j)}, {A(2*j)}, v85\nv_mul_f32 {A(2*j+1)}, {A(2*j+1)}, v85\nv_cvt_pk_bf16_f32 v{PK+9+j}, {A(2*j)}, {A(2*j+1)}")
    k("s_mov_b32 exec_lo, 0")
    for j in range(4): k(f"ds_write_b128 v11, {V(PK+4*j,4)} offset:{16*j}")
    k(f"ds_write_b64 v11, {V(PK+16,2)} offset:64")
    k("s_mov_b32 exec_lo, -1")
    for j in range(4): k(f"buffer_store_dwordx4 {V(PK+4*j,4)}, v8, s[16:19], s20 offen offset:{256*j}")
    k(f"buffer_store_dwordx2 {V(PK+16,2)}, v9, s[16:19], s21 offen")
    k.stamp(4)
    k.wait_all(vm=False); k("s_barrier"); nbar += 1
    k.stamp(5)
    k("s_cmp_ge_u32 s3, 6\ns_cbranch_scc1 a1_end")
    FA, FB, FX, C0 = 16, 80, 96, 112
    for s in range(4):
        for h in range(2):
            o = (32*s + 4*h) * 240
            k(f"ds_read_b64_tr_b16 {V(FA+4*s+2*h,2)}, v124 offset:{o}\nds_read_b64_tr_b16 {V(FB+4*s+2*h,2)}, v125 offset:{o}\nds_read_b64_tr_b16 {V(FX+4*s+2*h,2)}, v126 offset:{o+32}")
    for s in range(4):
        k(MF("v[112:115]", V(FA+4*s,4), V(FB+4*s,4), "v[112:115]" if s else "0"))
        k(MF("v[116:119]", V(FA+4*s,4), V(FX+4*s,4), "v[116:119]" if s else "0"))
    k("s_cmp_eq_u32 s27, 2\ns_cbranch_scc1 a1_mt2")
    k("s_lshl_b32 s32, s27, 4\nv_lshl_add_u32 v41, v1, 5, s32")
    k("v_lshl_add_u32 v42, v3, 2, v4\nv_lshl_add_u32 v42, v42, 5, s32\nv_add_u32 v42, 2560, v42\nv_cmp_gt_u32 vcc, 4, v3\nv_cndmask_b32 v42, v6, v42, vcc")
    k("buffer_store_dwordx4 v[112:115], v41, s[16:19], s31 offen\nbuffer_store_dwordx4 v[116:119], v42, s[16:19], s31 offen")
    k("s_endpgm")
    k.label("a1_mt2")
    k("v_xor_b32 v43, s26, v4\nv_lshl_add_u32 v43, v3, 1, v43\nv_lshlrev_b32 v43, 4, v43")
    k("v_add_u32 v41, 2048, v43\nv_add_u32 v42, 3072, v43\nv_cmp_gt_u32 vcc, 2, v4\nv_cndmask_b32 v41, v6, v41, vcc\nv_cndmask_b32 v42, v6, v42, vcc")
    k("v_cmp_gt_u32 vcc, 4, v3\nv_cndmask_b32 v42, v6, v42, vcc")
    k("v_cmp_eq_u32 vcc, 0, v4\ns_nop 7")
    for j in range(8): k(f"v_cndmask_b32 v{112+j}, 0, v{112+j}, vcc")
    k("buffer_store_dwordx4 v[112:115], v41, s[16:19], s31 offen\nbuffer_store_dwordx4 v[116:119], v42, s[16:19], s31 offen")
    k("s_endpgm")
    if TW:
        k.label("a1_tw")
        T = []
        k("v_mov_b32 v6, 0x40000000\nv_add_u32 v7, 64, v1\nv_add_u32 v8, 128, v1\nv_lshlrev_b32 v9, 7, v1")
        n1 = (18*len(L1) + 63) // 64
        for j in range(n1): pf13_addr(k, 16 + j, ["v1", "v7", "v8"][j], 20, L1, 18, "v6")
        k(f"s_mul_i32 s54, s4, 1152\ns_mul_i32 s55, s5, {18*9216}\ns_add_u32 s54, s54, s55")
        k(f"s_mul_i32 s55, s4, 663552\ns_mul_i32 s56, s5, {162*128}\ns_add_u32 s55, s55, s56\ns_add_u32 s56, s55, 8192\ns_add_u32 s57, s55, 16384")
        k("v_cmp_gt_u32 vcc, 34, v1\nv_cndmask_b32 v10, v6, v9, vcc")
        k(f"s_mul_i32 s58, s5, {168*128}\ns_add_u32 s58, s58, {WOF}\ns_add_u32 s59, s58, 8192\ns_add_u32 s60, s58, 16384\nv_cmp_gt_u32 vcc, 40, v1\nv_cndmask_b32 v11, v6, v9, vcc")
        k("s_waitcnt lgkmcnt(0)")
        srd(k, 16, 12, WSSZ); srd(k, 48, 46, 5308416); srd(k, 20, 44, 5308416); srd(k, 24, 52, 5308416)
        for j in range(n1): T += [f"v{16+j}, s[20:23], s54", f"v{16+j}, s[48:51], s54"]
        if 'tw2' in OPT: T += ["v9, s[24:27], s55", "v9, s[24:27], s56", "v10, s[24:27], s57"]
        if 'wof' in OPT: T += ["v9, s[16:19], s58", "v9, s[16:19], s59", "v11, s[16:19], s60"]
        T0 = int(os.environ.get('TW0', 1))
        for b in range(nbar):
            if b == nbar - 1 and 'pc' in OPT: pf_code(k, "attn2_kernel", 124, 40)
            k("s_barrier")
            n = 0 if b < T0 else -(-len(T) // (nbar - 1 - b)) if b < nbar - 1 else len(T)
            for j in range(n): k(f"buffer_load_dword v{32 + len(T)}, {T.pop(0)} offen")
        assert not T
    k.label("a1_end")
    k("s_endpgm")
    return k

def a2():
    k = Kern("attn2_kernel", vgpr=128, lds=4096, block=512, grid=256)
    k("s_cmp_ge_u32 s2, 256\ns_cbranch_scc1 a2_end")
    k("s_load_dwordx2 s[12:13], s[0:1], 80")
    if LA2 or LA2W: touch_load(k, 44)
    k("v_and_b32 v1, 63, v0\nv_lshrrev_b32 v2, 6, v0\nv_readfirstlane_b32 s3, v2")
    k("s_and_b32 s4, s2, 7\ns_lshr_b32 s5, s2, 3\ns_and_b32 s6, s4, 3\ns_lshl_b32 s6, s6, 2\ns_and_b32 s7, s5, 3\ns_add_u32 s6, s6, s7")
    k("s_lshr_b32 s7, s4, 2\ns_lshl_b32 s7, s7, 3\ns_lshr_b32 s5, s5, 2\ns_add_u32 s7, s7, s5")
    k("s_lshl_b32 s8, s6, 3\ns_add_u32 s8, s8, s3")
    k("v_mov_b32 v6, 0x40000000\nv_lshlrev_b32 v7, 4, v0\nv_cmp_gt_u32 vcc, 400, v0\nv_cndmask_b32 v7, v6, v7, vcc")
    k(f"s_mul_i32 s9, s7, 102400\ns_add_u32 s9, s9, {KVP}")
    srd(k, 16, 12, WSSZ)
    for j in range(16):
        k(f"buffer_load_dwordx4 {V(32+4*j,4)}, v7, s[16:19], s9 offen\ns_add_u32 s9, s9, 6400")
    k("v_and_b32 v3, 15, v1\nv_lshrrev_b32 v4, 4, v1\nv_lshlrev_b32 v5, 4, v1")
    k("v_cmp_eq_u32 vcc, 0, v4\nv_cndmask_b32 v8, v6, v5, vcc")
    k(f"s_lshl_b32 s20, s8, 5\ns_lshl_b32 s21, s7, 1\ns_add_u32 s20, s20, s21\ns_lshl_b32 s20, s20, 10\ns_add_u32 s20, s20, {PQ}")
    k(f"s_lshl_b32 s21, s8, 4\ns_add_u32 s21, s21, s7\ns_lshl_b32 s21, s21, 8\ns_add_u32 s21, s21, {PQL}")
    k("buffer_load_dwordx4 v[96:99], v5, s[16:19], s20 offen\nbuffer_load_dwordx4 v[100:103], v5, s[16:19], s20 offen offset:1024\nbuffer_load_dwordx4 v[104:107], v8, s[16:19], s21 offen")
    if 'pc' in OPT: pf_code(k, "attn3_kernel", 110, 40)
    if LA2 or LA2W: touch_setup(k, LA2, LA2W, 112, 44); touch_issue(k, LA2, LA2W, 112, 44); k("v_cmp_eq_u32 vcc, 0, v4")
    for o in OPT:
        if o.startswith('a2w'): pf_w(k, o[3:], 112, 44); k("v_cmp_eq_u32 vcc, 0, v4")
    k("v_mov_b32 v9, 1472\nv_add_u32 v10, 1024, v5\nv_cndmask_b32 v10, v9, v10, vcc")
    k("v_and_b32 v11, 3, v3\nv_lshl_add_u32 v12, v11, 2, v4\nv_lshlrev_b32 v12, 4, v12\nv_lshlrev_b32 v11, 4, v11\nv_add_u32 v11, 1536, v11\nv_cndmask_b32 v11, v9, v11, vcc")
    k("v_lshlrev_b32 v13, 3, v0")
    k(f"s_mul_i32 s22, s8, 18\ns_add_u32 s23, s22, s7\ns_lshl_b32 s23, s23, 10\ns_add_u32 s23, s23, {OF}")
    k(f"s_lshr_b32 s24, s7, 3\ns_add_u32 s22, s22, s24\ns_lshl_b32 s22, s22, 10\ns_bfe_u32 s24, s7, 0x20001\ns_lshl_b32 s24, s24, 8\ns_add_u32 s22, s22, s24\ns_and_b32 s24, s7, 1\ns_lshl_b32 s24, s24, 3\ns_add_u32 s22, s22, s24\ns_add_u32 s22, s22, {OF + 16384}")
    for c in range(4): k(f"v_add_f32 v{32+c}, v{32+c}, v{36+c}")
    for j in range(2, 16):
        for c in range(4): k(f"v_add_f32 v{32+c}, v{32+c}, v{32+4*j+c}")
    k("v_cvt_pk_bf16_f32 v32, v32, v33\nv_cvt_pk_bf16_f32 v33, v34, v35\nds_write_b64 v13, v[32:33]")
    k.stamp(1)
    k.wait_all(vm=False); k("s_barrier")
    k.stamp(2)
    for hh in range(2):
        b = 40 + 16*hh; o = 1600*hh
        k(f"ds_read_b128 {V(b,4)}, v5 offset:{o}\nds_read_b128 {V(b+4,4)}, v12 offset:{o+1280}\nds_read_b128 {V(b+8,4)}, v10 offset:{o}\nds_read_b128 {V(b+12,4)}, v11 offset:{o}")
    for hh in range(2):
        b = 40 + 16*hh; c = 72 + 8*hh; pq = V(96+4*hh, 4)
        k(MF(V(c,4), V(b,4), pq, "0")); k(MF(V(c+4,4), V(b+4,4), pq, "0"))
    for hh in range(2):
        b = 40 + 16*hh; c = 72 + 8*hh
        k(MF(V(c,4), V(b+8,4), "v[104:107]", V(c,4))); k(MF(V(c+4,4), V(b+12,4), "v[104:107]", V(c+4,4)))
    for hh in range(2):
        c = 72 + 8*hh
        bf16r(k, f"v{c+6}", f"v{c+6}")
        k(f"v_add_f32 v{c+6}, 0x358637bd, v{c+6}")
        bf16r(k, f"v{c+6}", f"v{c+6}")
        k(f"v_rcp_f32 v{c+6}, v{c+6}")
    for hh in range(2):
        c = 72 + 8*hh
        for j in range(6): k(f"v_mul_f32 v{c+j}, v{c+j}, v{c+6}")
        k(f"v_cvt_pk_bf16_f32 v{88+2*hh}, v{c}, v{c+1}\nv_cvt_pk_bf16_f32 v{89+2*hh}, v{c+2}, v{c+3}\nv_cvt_pk_bf16_f32 v{92+hh}, v{c+4}, v{c+5}")
    k("buffer_store_dwordx4 v[88:91], v5, s[16:19], s23 offen\nbuffer_store_dwordx2 v[92:93], v8, s[16:19], s22 offen")
    k.label("a2_end")
    k("s_endpgm")
    return k

def a3():
    XO = 40960; MO = XO + 10240
    LA = int(os.environ.get('A3LA', 4))
    k = Kern("attn3_kernel", vgpr=256, lds=MO + 128, block=320, grid=256)
    k("s_cmp_ge_u32 s2, 256\ns_cbranch_scc1 a3_end")
    k("s_load_dwordx2 s[12:13], s[0:1], 80\ns_load_dwordx2 s[4:5], s[0:1], 0")
    if LA3 or LA3W: touch_load(k, 44)
    k("v_and_b32 v1, 63, v0\nv_lshrrev_b32 v2, 6, v0\nv_readfirstlane_b32 s3, v2")
    k("v_lshlrev_b32 v5, 4, v1")
    k("s_bfe_u32 s7, s2, 0x20003\ns_and_b32 s6, s2, 3\ns_lshl_b32 s6, s6, 1\ns_bfe_u32 s38, s2, 0x10002\ns_add_u32 s6, s6, s38\ns_lshl_b32 s6, s6, 3\ns_lshr_b32 s8, s2, 5\ns_add_u32 s6, s6, s8")
    k(f"s_lshl_b32 s9, s3, 10\ns_mul_i32 s10, s6, 36864\ns_add_u32 s10, s10, s9\ns_add_u32 s10, s10, {OF}")
    k("v_and_b32 v3, 15, v1\nv_lshrrev_b32 v4, 4, v1\nv_mov_b32 v6, 0x40000000")
    k("s_and_b32 s14, s7, 1\ns_lshl_b32 s15, s3, 1\ns_add_u32 s15, s15, s14")
    k("s_xor_b32 s24, s14, 1\ns_lshl_b32 s24, s24, 3\ns_cmp_lt_u32 s3, 4\ns_cselect_b32 s15, s15, s24")
    k("s_mul_i32 s24, s7, 9\ns_add_u32 s24, s24, s15\ns_add_u32 s25, s24, 1\ns_cmp_lt_u32 s3, 4\ns_cselect_b32 s25, s25, 36")
    k(f"s_mul_i32 s26, s24, 18432\ns_add_u32 s26, s26, {WOF}\ns_mul_i32 s27, s25, 18432\ns_add_u32 s27, s27, {WOF}")
    k("s_cmp_lt_u32 s3, 4\ns_cselect_b32 s28, 16, 2\nv_cmp_gt_u32 vcc, s28, v3\nv_cndmask_b32 v10, v6, v5, vcc")
    srd(k, 16, 12, WSSZ)
    for i in (0, 4, 1, 3, 5, 2, 6, 7):
        k(f"s_add_u32 m0, s9, {5120*i}\ns_add_u32 s8, s10, {5120*i}\nbuffer_load_dwordx4 v5, s[16:19], s8 offen lds", tag="DO")
    st = dict(w=0)
    def ldw(upto):
        while st['w'] <= min(upto, 17):
            ks = st['w']
            k(f"buffer_load_dwordx4 {V(64+8*ks,4)}, v5, s[16:19], s26 offen offset:{1024*(ks%4)}\nbuffer_load_dwordx4 {V(68+8*ks,4)}, v10, s[16:19], s27 offen offset:{1024*(ks%4)}")
            if ks % 4 == 3: k("s_add_u32 s26, s26, 4096\ns_add_u32 s27, s27, 4096")
            st['w'] += 1
    ldw(LA - 1)
    srd(k, 20, 4, 2359296)
    k("s_mul_i32 s11, s6, 36864\ns_mul_i32 s14, s7, 288\ns_add_u32 s11, s11, s14")
    for r in range(2):
        k(f"v_add_u32 v7, {320*r}, v0\nv_mul_u32_u24 v8, 3641, v7\nv_lshrrev_b32 v8, 16, v8\nv_mul_u32_u24 v9, 18, v8\nv_sub_u32 v9, v7, v9\nv_mul_u32_u24 v8, 1152, v8\nv_lshl_add_u32 v{232+r}, v9, 4, v8")
    k(f"v_lshlrev_b32 v11, 2, v3\ns_lshl_b32 s29, s6, 7\ns_add_u32 s29, s29, {MX}")
    def ldx():
        for r in range(2): k(f"s_add_u32 m0, s9, {XO + 5120*r}\nbuffer_load_dwordx4 v{232+r}, s[20:23], s11 offen lds", tag="DX")
        k("buffer_load_dword v12, v11, s[16:19], s29 offen\nbuffer_load_dword v13, v11, s[16:19], s29 offen offset:64")
    k(f"v_mul_u32_u24 v14, 288, v3\nv_lshl_add_u32 v14, v4, 3, v14\ns_lshl_b32 s30, s15, 5\ns_add_u32 s30, s30, {XO}\nv_add_u32 v14, s30, v14")
    k(f"v_add_u32 v15, {MO}, v11")
    k(f"s_lshl_b32 s32, s6, 1\ns_mul_i32 s32, s32, 18\ns_lshr_b32 s33, s24, 1\ns_add_u32 s32, s32, s33\ns_lshl_b32 s32, s32, 10\ns_add_u32 s33, s32, {HR}\ns_add_u32 s32, s32, {HC}")
    k("s_add_u32 s34, s32, 18432\ns_add_u32 s35, s33, 18432")
    k("s_mov_b32 s31, 0xffff0000")
    if LA3 or LA3W: touch_setup(k, LA3, LA3W, 244, 44)
    k.stamp(1)
    k.wait_vm("DO"); k("s_barrier")
    k.stamp(2)
    def rd(ks):
        k(f"ds_read_b128 {V(16+8*(ks%3),4)}, v5 offset:{ks*1024}\nds_read_b128 {V(20+8*(ks%3),4)}, v5 offset:{(18+ks)*1024}")
    rd(0); rd(1)
    XS = int(os.environ.get('A3XS', 6))
    for ks in range(18):
        if ks + 2 < 18: rd(ks + 2)
        ldw(ks + LA)
        if ks == XS: ldx()
        if ks == 14 and 'pc' in OPT: pf_code(k, "ffn_kernel", 240, 40)
        if ks == int(os.environ.get('A3T', 14)) and (LA3 or LA3W): touch_issue(k, LA3, LA3W, 244, 44)
        for t in (1, 0):
            for tt in range(2):
                c = V(40 + 8*tt + 4*t, 4)
                k(MF(c, V(64+8*ks+4*t,4), V(16+8*(ks%3)+4*tt,4), c if ks else "0"))
    k.stamp(3)
    k("s_cmp_lt_u32 s3, 4\ns_cbranch_scc1 a3_nomean")
    k.skip_begin()
    for tt in range(2):
        k(f"v_add_f32 v{44+8*tt}, v{44+8*tt}, v{45+8*tt}\nv_add_f32 v{44+8*tt}, v{44+8*tt}, v{12+tt}")
        bf16r(k, f"v{44+8*tt}", f"v{44+8*tt}")
    k("s_mov_b64 exec, 0xffff\nds_write_b32 v15, v44\nds_write_b32 v15, v52 offset:64\ns_mov_b64 exec, -1")
    k.wait_all(vm=False)
    k.skip_end("a3_nomean")
    k.wait_vm("DX")
    k("s_barrier")
    k.stamp(4)
    for tt in range(2):
        for t in range(2): k(f"ds_read_b64 {V(208+4*tt+2*t,2)}, v14 offset:{tt*4608+32*t}")
    k("ds_read_b32 v12, v15\nds_read_b32 v13, v15 offset:64")
    for tt in range(2):
        for t in range(2):
            for hf in range(2):
                c = 40 + 8*tt + 4*t + 2*hf
                k(f"v_cvt_pk_bf16_f32 v{c+1}, v{c}, v{c+1}\nv_lshlrev_b32 v{c}, 16, v{c+1}\nv_and_b32 v{c+1}, s31, v{c+1}")
    for tt in range(2):
        for t in range(2):
            for hf in range(2):
                c = 40 + 8*tt + 4*t + 2*hf; xr = 208 + 4*tt + 2*t + hf; ho = 216 + 4*tt + 2*t + hf; co = 224 + 4*tt + 2*t + hf
                k(f"v_lshlrev_b32 v58, 16, v{xr}\nv_and_b32 v59, s31, v{xr}\nv_add_f32 v{c}, v{c}, v58\nv_add_f32 v{c+1}, v{c+1}, v59")
                k(f"v_cvt_pk_bf16_f32 v{ho}, v{c}, v{c+1}\nv_lshlrev_b32 v57, 16, v{ho}\nv_and_b32 v56, s31, v{ho}")
                k(f"v_sub_f32 v57, v57, v{12+tt}\nv_sub_f32 v56, v56, v{12+tt}\nv_cvt_pk_bf16_f32 v{co}, v57, v56")
    k.stamp(5)
    k("s_cmp_lt_u32 s3, 4\ns_cbranch_scc0 a3_single")
    k("buffer_store_dwordx4 v[224:227], v5, s[16:19], s32 offen\nbuffer_store_dwordx4 v[228:231], v5, s[16:19], s34 offen")
    k("buffer_store_dwordx4 v[216:219], v5, s[16:19], s33 offen\nbuffer_store_dwordx4 v[220:223], v5, s[16:19], s35 offen")
    k("s_endpgm")
    k.label("a3_single")
    k("s_and_b32 s37, s24, 1\ns_lshl_b32 s37, s37, 3\nv_add_u32 v10, s37, v5\ns_nop 1")
    k("buffer_store_dwordx2 v[224:225], v10, s[16:19], s32 offen\nbuffer_store_dwordx2 v[228:229], v10, s[16:19], s34 offen")
    k("buffer_store_dwordx2 v[216:217], v10, s[16:19], s33 offen\nbuffer_store_dwordx2 v[220:221], v10, s[16:19], s35 offen")
    k.label("a3_end")
    k("s_endpgm")
    return k

def warm(S):
    k = Kern("warm_kernel", vgpr=8, lds=0, block=64*S, grid=256)
    k.prof = None
    k("v_lshrrev_b32 v2, 6, v0\nv_readfirstlane_b32 s3, v2\ns_mov_b64 exec, 0")
    for c in range(S): k(f"s_cmp_eq_u32 s3, {c}\ns_cbranch_scc1 ffn_kernel_ws{c}")
    k("s_endpgm")
    return k

AF_ = 'af' in OPT
def kernels():
    if 'PADB' in os.environ:
        S = int(os.environ.get('PADS', 16)); f = k3(); f.pads = (int(os.environ['PADB']), S)
        if 'nowarm' in OPT: return [k0(), a1(), a2(), a3(), f, k4()]
        return [k0(), a1(), a2(), a3(), warm(S), f, k4()]
    if AF_: return [k0(), af(), k3(), k4()]
    if 'fuse' in OPT: return [k0(), a1(), a2(), a3(), k3()]
    return [k0(), a1(), a2(), a3(), k3(), k4()]

if __name__ == "__main__":
    if len(sys.argv) > 2: Kern.prof = 0
    ks = kernels()
    print([k for k in ks if k.name == 'ffn_kernel'][0].log)
    out = sys.argv[1] if len(sys.argv) > 1 else "cur.s"
    if len(sys.argv) > 2:
        for i, k in enumerate(ks): k.prof = PROF + i * 0x100000 if k.name != 'warm_kernel' else None
    build_file(ks, out)
    for k in ks: print(k.name, "nops", k.nnops, "waits", k.nwaits)
```

```python
XN   = 0x0000000
WF   = 0x0240000
WOF  = 0x0440000
MX   = 0x0500000
SSQ  = 0x0508000
KVP  = 0x0540000
PQL  = 0x06D0000
PQ   = 0x0800000
OF   = 0x0C00000
HC   = 0x0E80000
HR   = 0x1100000
PART = 0x1400000
import os
if 'af' in os.environ.get('OPT', '').split(','): OF = 0x06D0000
KVH  = KVP + 0xC8000
FL0  = 0x0910000
FL1  = 0x0918000
FLG  = 0x3800000
PROF = 0x8000000
WSSZ = 0x10000000
INV  = 0x40000000
LOG2E = 0x3fb8aa3b

def srd(k, d, p, size):
    k(f"s_mov_b32 s{d}, s{p}\ns_mov_b32 s{d+1}, s{p+1}\ns_mov_b32 s{d+2}, {size}\ns_mov_b32 s{d+3}, 0x20000")

def bf16r(k, dst, src):
    k(f"v_cvt_pk_bf16_f32 {dst}, {src}, {src}\nv_lshlrev_b32 {dst}, 16, {dst}")

def V(a, n=1): return f"v{a}" if n == 1 else f"v[{a}:{a+n-1}]"
def A(a, n=1): return f"a{a}" if n == 1 else f"a[{a}:{a+n-1}]"
def MF(d, a, b, c): return f"v_mfma_f32_16x16x32_bf16 {d}, {a}, {b}, {c}"


CODE_SZ = {"attn_kernel": 12288, "attn1_kernel": 8192, "attn2_kernel": 4096, "attn3_kernel": 4096, "ffn_kernel": 40960, "red_kernel": 4096}
def pf_code(k, target, vt, st, nb=None, s3=None, vl='v0'):
    nb = nb or CODE_SZ[target]
    n = (nb // 128 + 31) // 32
    lab = f"{k.name}_pc_{target}"
    s3 = st + 2 if s3 is None else s3
    k(f"s_getpc_b64 s[{st}:{st+1}]")
    k.raw(f"{lab}:")
    k(f"s_add_u32 s{st}, s{st}, {target}-{lab}\ns_addc_u32 s{st+1}, s{st+1}, 0")
    k(f"s_bfe_u32 s{s3}, s2, 0x50003\ns_mul_i32 s{s3}, s{s3}, {n*128}\nv_min_u32 v{vt}, {n-1}, {vl}\nv_lshlrev_b32 v{vt}, 7, v{vt}\nv_add_u32 v{vt}, s{s3}, v{vt}\nv_min_u32 v{vt}, {target}_codeend-{target}-4, v{vt}")
    k(f"global_load_dword v{vt+1}, v{vt}, s[{st}:{st+1}]")

def pf_w(k, which, vt, st, mod="", part=3):
    if part & 1: pf_w_setup(k, vt, st)
    if part & 2: pf_w_issue(k, which, vt, st, mod)
def pf_w_setup(k, vt, st):
    k(f"s_load_dwordx4 s[{st}:{st+3}], s[0:1], 40\ns_load_dwordx2 s[{st+8}:{st+9}], s[0:1], 56")
    k(f"v_mul_u32_u24 v{vt}, 7282, v0\nv_lshrrev_b32 v{vt}, 16, v{vt}\nv_mul_u32_u24 v{vt+1}, {9216-1152}, v{vt}\nv_lshl_add_u32 v{vt}, v0, 7, v{vt+1}\nv_lshlrev_b32 v{vt+1}, 7, v0")
    k(f"v_mov_b32 v{vt+2}, {INV}\nv_cmp_gt_u32 vcc, 162, v0\nv_cndmask_b32 v{vt}, v{vt+2}, v{vt}, vcc\nv_cndmask_b32 v{vt+1}, v{vt+2}, v{vt+1}, vcc")
    k(f"s_mov_b32 s{st+4}, s{st+2}\ns_mov_b32 s{st+5}, s{st+3}")
    for b in (0, 4, 8): k(f"s_mov_b32 s{st+b+2}, 5308416\ns_mov_b32 s{st+b+3}, 0x20000")
    k(f"s_and_b32 s{st+12}, s2, 7\ns_bfe_u32 s{st+13}, s2, 0x50003\ns_mul_i32 s{st+14}, s{st+13}, {18*9216}\ns_mul_i32 s{st+15}, s{st+12}, 1152\ns_add_u32 s{st+14}, s{st+14}, s{st+15}")
    k(f"s_mul_i32 s{st+15}, s{st+12}, 663552\ns_mul_i32 s{st+13}, s{st+13}, {162*128}\ns_add_u32 s{st+15}, s{st+15}, s{st+13}")
def pf_w_issue(k, which, vt, st, mod=""):
    if '1' in which: k(f"buffer_load_dword v{vt+3}, v{vt}, s[{st}:{st+3}], s{st+14} offen {mod}")
    if '3' in which: k(f"buffer_load_dword v{vt+4}, v{vt}, s[{st+4}:{st+7}], s{st+14} offen {mod}")
    if '2' in which: k(f"buffer_load_dword v{vt+5}, v{vt+1}, s[{st+8}:{st+11}], s{st+15} offen {mod}")

def pf13_addr(k, vd, vu, vt, L, rows, vinv, stride=9216):
    n = len(L); pack = sum(l << (4*i) for i, l in enumerate(L))
    k(f"v_mul_u32_u24 v{vd}, {65536 // n + 1}, {vu}\nv_lshrrev_b32 v{vd}, 16, v{vd}\nv_mul_u32_u24 v{vt}, {n}, v{vd}\nv_sub_u32 v{vt}, {vu}, v{vt}\nv_lshlrev_b32 v{vt}, 2, v{vt}")
    if list(L) == list(range(n)): k(f"v_lshrrev_b32 v{vt}, 2, v{vt}")
    else:
        assert n <= 8
        k(f"v_lshrrev_b32 v{vt}, v{vt}, {pack}".replace(f", {pack}", f", v{vt+1}").replace("v_lshrrev_b32", f"v_mov_b32 v{vt+1}, {pack}\nv_lshrrev_b32"))
    k(f"v_and_b32 v{vt}, 15, v{vt}\nv_mul_u32_u24 v{vd}, {stride}, v{vd}\nv_lshl_add_u32 v{vd}, v{vt}, 7, v{vd}\nv_cmp_gt_u32 vcc, {rows*n}, {vu}\nv_cndmask_b32 v{vd}, {vinv}, v{vd}, vcc")

def touch_load(k, st): k(f"s_load_dwordx4 s[{st}:{st+3}], s[0:1], 40\ns_load_dwordx2 s[{st+8}:{st+9}], s[0:1], 56")
def touch_setup(k, L13, L2, vb, st):
    k(f"v_mov_b32 v{vb+2}, {INV}")
    if L13: pf13_addr(k, vb, "v0", vb+3, L13, 18, f"v{vb+2}")
    if L2: pf13_addr(k, vb+1, "v0", vb+3, L2, 18, f"v{vb+2}", 1152)
    k(f"s_and_b32 s{st+14}, s2, 7\ns_bfe_u32 s{st+15}, s2, 0x50003\ns_mul_i32 s{st+12}, s{st+15}, {18*9216}\ns_mul_i32 s{st+13}, s{st+14}, 1152\ns_add_u32 s{st+12}, s{st+12}, s{st+13}")
    k(f"s_mul_i32 s{st+13}, s{st+14}, 663552\ns_mul_i32 s{st+15}, s{st+15}, 20736\ns_add_u32 s{st+13}, s{st+13}, s{st+15}")
    k(f"s_mov_b32 s{st+4}, s{st+2}\ns_mov_b32 s{st+5}, s{st+3}")
    for b in (0, 4, 8): k(f"s_mov_b32 s{st+b+2}, 5308416\ns_mov_b32 s{st+b+3}, 0x20000")
def touch_issue(k, L13, L2, vb, st):
    if L13: k(f"buffer_load_dword v{vb+3}, v{vb}, s[{st}:{st+3}], s{st+12} offen\nbuffer_load_dword v{vb+4}, v{vb}, s[{st+4}:{st+7}], s{st+12} offen")
    if L2: k(f"buffer_load_dword v{vb+5}, v{vb+1}, s[{st+8}:{st+11}], s{st+13} offen")
```

```python
import re, os

REG_RE = re.compile(r'\b([vas])(\d+)\b|\b([vas])\[(\d+):(\d+)\]|\b(vcc|exec|m0|scc)\b|\b(vcc_lo|vcc_hi|exec_lo|exec_hi)\b')

def regs_of(op):
    out = []
    for m in REG_RE.finditer(op):
        if m.group(1): out.append((m.group(1), int(m.group(2))))
        elif m.group(3):
            out += [(m.group(3), i) for i in range(int(m.group(4)), int(m.group(5)) + 1)]
        elif m.group(6): out.append((m.group(6), 0))
        elif m.group(7): out.append((m.group(7)[:-3], 0))
    return out

def split_ops(s):
    ops = []; depth = 0; cur = ''
    for ch in s:
        if ch == '[': depth += 1
        if ch == ']': depth -= 1
        if ch == ',' and depth == 0:
            ops.append(cur.strip()); cur = ''
        else: cur += ch
    if cur.strip(): ops.append(cur.strip())
    return ops

TRANS = ('v_exp_f32', 'v_log_f32', 'v_rcp_f32', 'v_rsq_f32', 'v_sqrt_f32', 'v_sin_f32', 'v_cos_f32', 'v_rcp_iflag_f32')
NODST_S = ('s_cmp', 's_cbranch', 's_branch', 's_waitcnt', 's_barrier', 's_nop', 's_endpgm', 's_setprio', 's_sleep', 's_bitcmp')

class Ins:
    __slots__ = ('text', 'op', 'cls', 'wr', 'rd', 'tag', 'srcc', 'srcab', 'dpp', 'wide_store', 'data', 'cost', 'lds_dma', 'sgpr_rd', 'opt', 'meta')
    def __init__(self, text, tag=None):
        self.text = text; self.tag = tag; self.opt = False; self.meta = None
        t = text.split(';')[0].strip()
        sp = t.split(None, 1)
        self.op = op = sp[0]
        rest = sp[1] if len(sp) > 1 else ''
        ops = split_ops(rest)
        self.wr = []; self.rd = []; self.srcc = []; self.srcab = []; self.dpp = False
        self.wide_store = False; self.data = []; self.lds_dma = False
        R = [regs_of(o) for o in ops]
        allr = [r for x in R for r in x]
        if op.startswith('v_mfma'):
            self.cls = 'mfma'; self.wr = R[0]; self.srcab = R[1] + R[2]; self.srcc = R[3]; self.rd = self.srcab + self.srcc
        elif op.startswith('v_cmp'):
            self.cls = 'valu'; self.wr = R[0]; self.rd = [r for x in R[1:] for r in x]
        elif op.startswith('v_permlane') and 'swap' in op:
            self.cls = 'valu'; self.wr = allr; self.rd = allr
        elif op.startswith('v_'):
            self.cls = 'trans' if op.replace('_e32', '').replace('_e64', '') in TRANS else ('dot' if op.startswith('v_dot') else 'valu')
            self.wr = R[0]; self.rd = [r for x in R[1:] for r in x]
            if re.search(r'row_|quad_perm|wave_|bcast', rest):
                self.dpp = True; self.rd += R[0]
            if re.match(r'v_(fmac|mac|dot2c|dot4c|pk_fmac)', op) or 'op_sel' in rest and 'cvt' in op: self.rd += R[0]
            if op.startswith('v_cndmask') and len(ops) == 3: self.rd.append(('vcc', 0))
            if op.startswith('v_writelane'): self.rd += R[0]
        elif op.startswith('buffer_load') or op.startswith('global_load'):
            self.cls = 'vmem'
            if re.search(r'\blds\b', rest) or '_lds_' in op:
                self.lds_dma = True; self.rd = allr + [('m0', 0)]
            else:
                self.wr = R[0]; self.rd = [r for x in R[1:] for r in x]
                if 'd16' in op: self.rd += R[0]
        elif op.startswith('buffer_store') or op.startswith('global_store') or 'atomic' in op:
            self.cls = 'vmem'; self.rd = allr
            self.data = R[0] if op.startswith('buffer') else R[1]
            self.wide_store = 'x3' in op or 'x4' in op
            if 'atomic' in op and re.search(r'\bsc0\b', rest):
                self.wr = R[0]
        elif op.startswith('ds_'):
            self.cls = 'ds'
            if op.startswith('ds_write') or op.startswith('ds_add') or op.startswith('ds_max') :
                self.rd = allr
            else:
                self.wr = R[0]; self.rd = [r for x in R[1:] for r in x]
                if 'd16' in op: self.rd += R[0]
        elif op.startswith('s_load') or op.startswith('s_memtime') or op.startswith('s_memrealtime') or op.startswith('s_buffer_load'):
            self.cls = 'smem'; self.wr = R[0]; self.rd = [r for x in R[1:] for r in x]
        elif op.startswith('s_'):
            self.cls = 'salu'
            if op.startswith(NODST_S): self.rd = allr
            else:
                self.wr = R[0]; self.rd = [r for x in R[1:] for r in x]
                if 'saveexec' in op: self.wr = self.wr + [('exec', 0)]; self.rd += [('exec', 0)]
        else:
            raise ValueError('unknown op ' + text)

class Kern:
    def __init__(self, name, vgpr=256, agpr=0, lds=0, block=256, grid=256):
        self.name = name; self.items = []; self.vgpr = vgpr; self.agpr = agpr; self.lds = lds; self.block = block; self.grid = grid
    def __call__(self, text, tag=None):
        for line in text.strip().split('\n'):
            line = line.strip()
            if not line or line.startswith(';'): continue
            self.items.append(Ins(line, tag))
    def add(self, ins): self.items.append(ins)
    def label(self, name, reset=True): self.items.append(('label', name, reset))
    def wait_vm(self, tag): self.items.append(('waitvm', tag))
    def wait_lg(self, tag): self.items.append(('waitlg', tag))
    def wait_both(self, vtag, ltag): self.items.append(('waitboth', vtag, ltag))
    def wait_all(self, vm=True, lgkm=True): self.items.append(('waitall', vm, lgkm))
    def skip_begin(self): self.items.append(('skipb',))
    def skip_end(self, label): self.items.append(('skipe', label))
    def raw(self, text): self.items.append(('raw', text))
    prof = None
    def stamp(self, n):
        if self.prof is not None:
            import os
            op = 's_memtime' if os.environ.get('CYC') else 's_memrealtime'
            self.items.append(('raw', f'  {op} s[{84+2*n}:{85+2*n}]'))

    def finalize(self):
        out = []
        t = 0
        vmq = []; lgq = []; smem = set()
        lastw = {}
        cread = {}
        sdata = {}
        skip_stack = []
        self.nnops = 0; self.nwaits = 0
        def emit(s):
            out.append('  ' + s)
        def do_wait(vm=None, lg=None):
            nonlocal t, vmq, lgq, smem
            parts = []
            if vm is not None:
                n = sum(1 for e in vmq[vm + 1:] if not e[2])
                parts.append(f'vmcnt({min(n, 63)})')
                vmq = vmq[vm + 1:]
            if lg is not None:
                if lg == 'all' or smem:
                    parts.append('lgkmcnt(0)'); lgq = []; smem = set()
                else:
                    n = sum(1 for e in lgq[lg + 1:] if not e[2])
                    parts.append(f'lgkmcnt({min(n, 15)})')
                    lgq = lgq[lg + 1:]
            if parts:
                emit('s_waitcnt ' + ' '.join(parts)); t += 1; self.nwaits += 1
        pend_wait = None
        for it in self.items:
            if isinstance(it, tuple):
                k = it[0]
                if k == 'label':
                    out.append(f'{it[1]}:')
                    if it[2]:
                        vmq = []; lgq = []; smem = set(); lastw = {}; cread = {}; sdata = {}
                elif k == 'waitvm':
                    idx = [i for i, e in enumerate(vmq) if e[1] == it[1]]
                    if idx: do_wait(vm=idx[-1])
                elif k == 'waitlg':
                    idx = [i for i, e in enumerate(lgq) if e[1] == it[1]]
                    if idx: do_wait(lg=idx[-1])
                elif k == 'waitboth':
                    idx = [i for i, e in enumerate(vmq) if e[1] in it[1]]
                    do_wait(vm=(idx[-1] if idx else None), lg=('all' if (lgq or smem) else None))
                elif k == 'waitall':
                    do_wait(vm=(len(vmq) - 1 if (it[1] and vmq) else None), lg=('all' if (it[2] and (lgq or smem)) else None))
                elif k == 'skipb':
                    skip_stack.append((t, list(vmq), list(lgq), set(smem)))
                elif k == 'skipe':
                    t0, sv, sl, ss = skip_stack.pop()
                    d = t - t0
                    for r in list(lastw):
                        if lastw[r][0] < t0: lastw[r] = (lastw[r][0] + d,) + lastw[r][1:]
                    for dd in (cread, sdata):
                        for r in list(dd):
                            if dd[r] < t0: dd[r] += d
                    nv = [e for e in vmq if not any(e is x for x in sv)]
                    nl = [e for e in lgq if not any(e is x for x in sl)]
                    for e in nv + nl: e[2] = True
                    vmq = sv + nv; lgq = sl + nl; smem = smem | ss
                    out.append(f'{it[1]}:')
                elif k == 'raw':
                    out.append(it[1])
                continue
            I = it
            touched = set(I.rd) | set(I.wr)
            vm = None; lg = None
            for i, e in enumerate(vmq):
                if e[0] & touched: vm = i
            for i, e in enumerate(lgq):
                if e[0] & touched: lg = i
            if smem & touched: lg = 'all'
            if vm is not None or lg is not None: do_wait(vm, lg)
            need = 0
            def req(tp, n):
                nonlocal need
                need = max(need, n - (t - tp - 1))
            isvalu = I.cls in ('valu', 'trans', 'dot')
            for r in I.rd:
                if r in lastw:
                    tp, pc, P = lastw[r]
                    pv = pc in ('valu', 'trans', 'dot')
                    if pc == 'mfma':
                        if I.cls == 'mfma':
                            if r in I.srcab: req(tp, 8)
                            elif P.wr == I.srcc: pass
                            else: req(tp, 6)
                        else: req(tp, 8)
                    if pv and r[0] in 'va':
                        if I.cls == 'mfma': req(tp, 2)
                        if I.dpp: req(tp, 2)
                        if I.op.startswith('v_permlane'): req(tp, 2)
                        if I.op.startswith('v_readlane') or I.op.startswith('v_readfirstlane'): req(tp, 1)
                        if pc == 'trans' and (I.cls != 'trans'): req(tp, 1)
                        if pc == 'dot' and P.op != I.op: req(tp, 3)
                        if 'op_sel' in P.text or 'sdwa' in P.text: req(tp, 1)
                    if pv and r[0] in ('s', 'vcc', 'exec'):
                        if I.cls == 'vmem': req(tp, 5)
                        if isvalu or I.cls == 'mfma': req(tp, 5 if (r[0] == 'exec') else 2)
                        if I.cls in ('salu', 'smem', 'ds'): req(tp, 2)
                    if r[0] == 'm0' and pc == 'salu' and I.lds_dma: req(tp, 1)
            for r in I.wr:
                if r in lastw and lastw[r][1] == 'mfma' and not (I.cls == 'mfma' and lastw[r][2].wr == I.wr):
                    req(lastw[r][0], 8)
                if r in lastw and lastw[r][1] == 'dot' and I.op != lastw[r][2].op: req(lastw[r][0], 3)
                if isvalu and r in cread: req(cread[r], 3)
                if r in sdata: req(sdata[r], 2)
            if need > 0:
                while need > 0:
                    n = min(need, 16); emit(f's_nop {n - 1}'); t += n; need -= n; self.nnops += 1
            emit(I.text)
            if I.op == 's_nop': t += int(I.text.split()[1]) + 1
            else: t += 1
            tt = t - 1
            if I.op == 's_waitcnt':
                m = re.search(r'vmcnt\((\d+)\)', I.text)
                if m and int(m.group(1)) == 0: vmq = []
                m = re.search(r'lgkmcnt\((\d+)\)', I.text)
                if m and int(m.group(1)) == 0: lgq = []; smem = set()
            for r in I.wr: lastw[r] = (tt, I.cls, I)
            if I.cls == 'mfma':
                for r in I.srcc: cread[r] = tt
            if I.wide_store:
                for r in I.data: sdata[r] = tt
            if I.cls == 'vmem': vmq.append([set(I.wr), I.tag, False])
            elif I.cls == 'ds': lgq.append([set(I.wr), I.tag, False])
            elif I.cls == 'smem': smem |= set(I.wr)
        return out

    def align(self, body):
        mode = os.environ.get('ALIGN', '0')
        if mode == '0': return body
        import subprocess
        idx = [i for i, l in enumerate(body) if l.startswith('  ')]
        src = "\n".join(re.sub(r'[A-Za-z_][A-Za-z_0-9]*_(kernel|codeend|pc_\w+)\S*', '0x12345', body[i]) if ('_kernel' in body[i] and 'branch' not in body[i]) else re.sub(r'(s_c?branch\w*)\s+\S+', r'\1 4', body[i]) for i in idx)
        r = subprocess.run(['llvm-mc', '-triple=amdgcn-amd-amdhsa', '-mcpu=gfx950', '-show-encoding'], input=src, capture_output=True, text=True)
        assert r.returncode == 0, r.stderr[:2000]
        enc = [l for l in r.stdout.split('\n') if 'encoding:' in l]
        assert len(enc) == len(idx), (len(enc), len(idx))
        size = {i: e.split('encoding:')[1].count(',') + 1 for i, e in zip(idx, enc)}
        e32 = {i: e.split()[0].endswith('_e32') for i, e in zip(idx, enc)}
        out = []; off = 4 if mode == '-1' else 0; run = []; self.nal = [0, 0, 0]
        for i, l in enumerate(body):
            if i not in size:
                out.append(l); continue
            if size[i] == 4:
                if e32[i] and not re.search(r'_e32|_e64', l.split()[0]): run.append(len(out))
                out.append(l); off += 4; continue
            if off % 8:
                if run:
                    j = run[-1]; t = out[j].split(None, 1); out[j] = f"  {t[0]}_e64 {t[1]}"; off += 4; self.nal[0] += 1
                elif mode in ('1', '-1') or (mode == '2' and 'mfma' in l):
                    out.append('  s_nop 0'); off += 4; self.nal[1] += 1
                else: self.nal[2] += 1
            run = []
            out.append(l); off += size[i]
        print(self.name, 'align: widened, nops, left', self.nal)
        return out

    pads = None
    def add_pads(self, body):
        PADB, S = self.pads
        import subprocess
        lines = []
        for l in body: lines += l.split('\n')
        body = lines
        idx = [i for i, l in enumerate(body) if l.startswith('  ') and l.strip()]
        src = "\n".join(re.sub(r'[A-Za-z_][A-Za-z_0-9]*_(kernel|codeend|pc_\w+)\S*', '0x12345', body[i]) if ('_kernel' in body[i] and 'branch' not in body[i]) else re.sub(r'(s_c?branch\w*)\s+\S+', r'\1 4', body[i]) for i in idx)
        r = subprocess.run(['llvm-mc', '-triple=amdgcn-amd-amdhsa', '-mcpu=gfx950', '-show-encoding'], input=src, capture_output=True, text=True)
        assert r.returncode == 0, r.stderr[:2000]
        enc = [l for l in r.stdout.split('\n') if 'encoding:' in l]
        assert len(enc) == len(idx), (len(enc), len(idx))
        size = {i: e.split('encoding:')[1].count(',') + 1 for i, e in zip(idx, enc)}
        def load(i):
            if 'v_mfma' not in body[i]: return 9
            n = 0; j = i + 1
            while j < len(body) and 'v_mfma' not in body[j] and n < 9:
                n += 2 if re.search(r'v_exp|v_rcp|v_sqrt|s_barrier|s_waitcnt|buffer_', body[j]) else 1; j += 1
            return n
        out = []; off = 0; pos = []; i = 0; n = len(body)
        while i < n:
            blk = off // PADB; j = i; o = off; cand = []
            while j < n:
                o2 = o + size.get(j, 0)
                if o2 + 4 <= (blk + 1) * PADB and j in size and not re.search(r's_getpc|s_endpgm|s_branch', body[j]): cand.append((load(j), j))
                if o2 >= (blk + 1) * PADB - 4: break
                o = o2; j += 1
            best = min(cand)[1] if cand else None
            while i < n:
                out.append(body[i]); off += size.get(i, 0)
                if i == best: pos.append(len(out)); out.append(None); off += 4
                i += 1
                if off // PADB != blk: break
        N = len(pos); self.npads = N
        starts = [c * N // S for c in range(S)]
        for q, p in enumerate(pos):
            tgt = f"{self.name}_wend" if (q + 1 == N or q + 1 in starts) else f"{self.name}_pad{q+1}"
            out[p] = (f"{self.name}_ws{starts.index(q)}:\n" if q in starts else "") + f"{self.name}_pad{q}:\n  s_cbranch_execz {tgt}"
        return out + [f"{self.name}_wend:", "  s_endpgm"]
    def text(self):
        body = self.finalize()
        for spec in os.environ.get('LMOD', '').split(','):
            if spec and spec.split(':')[0] == self.name.split('_')[0]:
                body = [l + ' ' + spec.split(':')[1] if l.strip().startswith('buffer_load_dwordx4') and 'sc1' not in l else l for l in body]
        for spec in os.environ.get('STM', '').split(','):
            if spec and spec.split(':')[0] == self.name.split('_')[0]:
                body = [l + ' ' + spec.split(':')[1] if l.strip().startswith('buffer_store') and 'sc1' not in l else l for l in body]
        if self.name.split('_')[0] in os.environ.get('SC1', '').split(','):
            body = [(l + ' sc1' if ('buffer_store' in l and 'sc1' not in l) else l) for l in body]
        if self.prof is not None:
            body = ['  s_mov_b64 s[%d:%d], 0' % (86+2*i, 87+2*i) for i in range(6)] + ['  %s s[84:85]' % ('s_memtime' if os.environ.get('CYC') else 's_memrealtime')] + [(f'  s_branch {self.name}_prof' if l.strip() == 's_endpgm' else l) for l in body]
            body += [f'{self.name}_prof:', '  s_waitcnt vmcnt(0) lgkmcnt(0)', '  %s s[98:99]' % ('s_memtime' if os.environ.get('CYC') else 's_memrealtime'), '  s_load_dwordx2 s[76:77], s[0:1], 80', '  s_mov_b64 exec, 1',
                     '  v_lshrrev_b32 v1, 6, v0', '  v_lshlrev_b32 v1, 6, v1', '  s_lshl_b32 s80, s2, 10', f'  s_add_u32 s80, s80, {self.prof}', '  s_mov_b32 s78, 0x10000000', '  s_mov_b32 s79, 0x20000', '  s_waitcnt lgkmcnt(0)']
            for i in range(8):
                body += [f'  v_mov_b32 v2, s{84+2*i}', f'  v_mov_b32 v3, s{85+2*i}', f'  buffer_store_dwordx2 v[2:3], v1, s[76:79], s80 offen offset:{8*i}', '  s_nop 1']
            body += ['  s_endpgm']
        body = self.align(body)
        if self.pads: body = self.add_pads(body); print(self.name, 'pads', self.npads)
        hdr = f".globl {self.name}\n.p2align 8\n.type {self.name},@function\n{self.name}:\n"
        nv = self.vgpr + self.agpr
        kd = f""".section .rodata,"a"
.p2align 6
.amdhsa_kernel {self.name}
  .amdhsa_next_free_vgpr {nv}
  .amdhsa_next_free_sgpr 102
  .amdhsa_accum_offset {self.vgpr}
  .amdhsa_group_segment_fixed_size 0
  .amdhsa_kernarg_size 88
  .amdhsa_user_sgpr_count 2
  .amdhsa_user_sgpr_kernarg_segment_ptr 1
  .amdhsa_system_sgpr_workgroup_id_x 1
.end_amdhsa_kernel
.text
"""
        return hdr + '\n'.join(body) + f'\n{self.name}_codeend:\n' + kd
    def launch_line(self):
        return f"; @launch kernel={self.name} grid=({self.grid},1,1) block=({self.block},1,1) lds={self.lds}"

def build_file(kerns, path, header=''):
    s = header + '\n'.join(k.launch_line() for k in kerns) + '\n'
    s += '.amdgcn_target "amdgcn-amd-amdhsa--gfx950"\n.text\n'
    seen = set()
    for k in kerns:
        if k.name in seen: continue
        seen.add(k.name); s += k.text()
    open(path, 'w').write(s)
    return s
```

```python
import sys
sys.path.insert(0, 'dev')
from asmlib import *

from wsmap import *
from gen3 import k3, k4
from genf import af
import os
OPT = set(os.environ.get('OPT', '').split(','))
L0 = [int(c) for c in os.environ.get('L0', '0156')]
L1 = [int(c) for c in os.environ.get('L1', '23478')]
LA2, LA2W, LA3, LA3W = [[int(c) for c in os.environ.get(n, '')] for n in ('LA2', 'LA2W', 'LA3', 'LA3W')]

def k0():
    BS = 288; RAW = 128*BS; IS = 1056; DUM = RAW + 24*IS
    AF = 'af' in OPT
    NG = int(os.environ.get('NG', 256))
    NT = int(os.environ.get('NT', 0)); LT0 = [int(c) for c in os.environ.get('LT0', '012345678')]
    k = Kern("prep_kernel", vgpr=256, lds=DUM + 16, block=256, grid=NG + NT if AF else 248)
    FN = dict(zip('woix', [int(c) for c in os.environ.get('FILL', '0,0,1,0' if 'sf' in OPT else '2,2,4,1' if 'so' in OPT else '3,3,4,3' if 'kh' in OPT else '4,4,4,4').split(',')]))
    NIDLE = 6 + NG - 248
    assert 96*FN['w'] + 18*FN['o'] + NIDLE*FN['i'] + 128*FN['x'] >= (2 if 'sf' in OPT else 401 if 'so' in OPT else 776 if 'kh' in OPT else 1024)
    FMOD = os.environ.get('FMOD', 'sc1')
    def fill(job):
        n = FN[job]
        if not AF or not n: return
        base = dict(w=0, o=96*FN['w'] - 96*n, i=96*FN['w'] + 18*FN['o'] - 114*n, x=96*FN['w'] + 18*FN['o'] + NIDLE*FN['i'] - 120*n)[job]
        if job == 'i': k("s_sub_u32 s65, s2, 128\ns_cmp_lt_u32 s2, 120\ns_cselect_b32 s65, s2, s65")
        else: k("s_mov_b32 s65, s2")
        k(f"s_mul_i32 s64, s65, {n*4096}\ns_add_u32 s64, s64, {(base*4096) & 0xffffffff}\nv_lshlrev_b32 v243, 4, v0")
        k(f"s_add_u32 s60, s12, {FL0 if 'sf' in OPT else KVP - 4096 if 'so' in OPT else KVH if 'kh' in OPT else KVP}\ns_addc_u32 s61, s13, 0\ns_mov_b32 s62, {0x10000 if 'sf' in OPT else 0x191000 if 'so' in OPT else 0x308000 if 'kh' in OPT else 0x400000}\ns_mov_b32 s63, 0x20000")
        for j in range(4): k(f"v_mov_b32 v{244+j}, -1")
        for j in range(n): k(f"buffer_store_dwordx4 v[244:247], v243, s[60:63], s64 offen {FMOD}\ns_add_u32 s64, s64, 4096")
    if AF: k(f"s_cmp_ge_u32 s2, {NG}\ns_cbranch_scc1 " + ("prep_touch" if NT else "prep_end"))
    k("s_load_dwordx8 s[4:11], s[0:1], 0\ns_load_dwordx2 s[12:13], s[0:1], 80")
    k("s_getpc_b64 s[40:41]\nv_lshlrev_b32 v250, 5, v0\nv_min_u32 v250, prep_kernel_codeend-prep_kernel-64, v250\nglobal_load_dword v252, v250, s[40:41]")
    k("v_and_b32 v1, 63, v0\nv_lshrrev_b32 v2, 6, v0\nv_readfirstlane_b32 s3, v2")
    k("v_and_b32 v3, 15, v1\nv_lshrrev_b32 v4, 4, v1")
    k("v_lshlrev_b32 v5, 4, v1")
    k("v_mov_b32 v6, 0x40000000")
    if AF and 'pc' in OPT: pf_code(k, "attn_kernel", 248, 66)
    GA = [int(c) for c in os.environ.get('GA', '')]
    if GA:
        k("s_load_dwordx4 s[44:47], s[0:1], 40")
        pf13_addr(k, 240, "v0", 241, GA, 18, "v6")
        k(f"s_and_b32 s52, s2, 7\ns_mul_i32 s52, s52, 1152\ns_lshr_b32 s53, s2, 3\ns_mul_i32 s53, s53, {18*9216}\ns_add_u32 s52, s52, s53")
    def gt(job, pos):
        if GA and int(os.environ.get('GP' + job, 0)) == pos:
            k("s_mov_b32 s48, s46\ns_mov_b32 s49, s47\ns_mov_b32 s46, 5308416\ns_mov_b32 s47, 0x20000\ns_mov_b32 s50, 5308416\ns_mov_b32 s51, 0x20000")
            k("buffer_load_dword v241, v240, s[44:47], s52 offen\nbuffer_load_dword v242, v240, s[48:51], s52 offen")
    k("s_cmp_ge_u32 s2, 96\ns_cbranch_scc1 prep_notw")
    k("s_lshr_b32 s29, s2, 4\ns_bfe_u32 s28, s2, 0x10003\ns_and_b32 s30, s2, 3\ns_lshl_b32 s30, s30, 1\ns_add_u32 s28, s28, s30\ns_and_b32 s30, s2, 4\ns_lshl_b32 s30, s30, 1\ns_add_u32 s28, s28, s30")
    k("v_mul_u32_u24 v7, 13108, v1\nv_lshrrev_b32 v7, 16, v7")
    k("v_mul_u32_u24 v8, 5, v7\nv_sub_u32 v8, v1, v8")
    k("v_mul_u32_u24 v9, 21846, v7\nv_lshrrev_b32 v9, 16, v9")
    k("v_mul_u32_u24 v10, 3, v9\nv_sub_u32 v10, v7, v10")
    k("v_mul_u32_u24 v9, 3456, v9\nv_mul_u32_u24 v10, 1152, v10\nv_lshlrev_b32 v8, 4, v8\nv_add3_u32 v7, v9, v10, v8")
    k("s_mul_i32 s30, s28, 72\ns_and_b32 s30, s30, 0xfffffff0\ns_mul_i32 s31, s29, 331776\ns_add_u32 s30, s30, s31\ns_mul_i32 s31, s3, 13824\ns_add_u32 s30, s30, s31")
    k(f"s_mul_i32 s32, s3, {IS}\ns_add_u32 s32, s32, {RAW}")
    k("v_lshlrev_b32 v8, 2, v0\ns_mul_i32 s33, s28, 1296")
    k("v_mov_b32 v20, 0\nv_mov_b32 v21, 0\nv_mov_b32 v22, 0\nv_mov_b32 v23, 0\nv_lshlrev_b32 v9, 4, v0")
    for i in range(9): k(f"ds_write_b128 v9, v[20:23] offset:{4096*i}")
    srd(k, 24, 8, 20736); srd(k, 20, 6, 1990656)
    k("buffer_load_dword v16, v8, s[24:27], s33 offen\nbuffer_load_dword v17, v8, s[24:27], s33 offen offset:1024")
    for i in range(6):
        k(f"s_add_u32 m0, s32, {4*IS*i}\nbuffer_load_dwordx4 v7, s[20:23], s30 offen lds\ns_add_u32 s30, s30, {16*3456}")
    srd(k, 16, 12, WSSZ)
    k("s_and_b32 s34, s28, 1\ns_lshl_b32 s34, s34, 2")
    k(f"v_mov_b32 v24, {DUM}")
    for rnd, (e, ad) in enumerate((("v0", 26), ("v25", 27))):
        if rnd: k("v_add_u32 v25, 256, v0")
        k(f"v_cmp_lt_u32 vcc, 161, {e}\nv_cndmask_b32_e64 v10, 0, 1, vcc")
        k(f"v_mul_u32_u24 v11, 162, v10\nv_sub_u32 v11, {e}, v11")
        k("v_mul_u32_u24 v12, 7282, v11\nv_lshrrev_b32 v12, 16, v12")
        k("v_mul_u32_u24 v13, 9, v12\nv_sub_u32 v13, v11, v13")
        k("v_mul_u32_u24 v14, 18, v10\nv_add3_u32 v14, v14, v12, s34")
        k("v_lshrrev_b32 v15, 1, v13\nv_lshlrev_b32 v15, 5, v15\nv_and_b32 v13, 1, v13\nv_lshl_add_u32 v15, v13, 2, v15\nv_lshl_add_u32 v15, v10, 3, v15")
        k(f"v_mul_u32_u24 v14, {BS}, v14\nv_add_u32 v{ad}, v14, v15\nv_add_u32 v{ad+2}, {40*BS+16}, v{ad}")
        if rnd: k(f"v_cmp_gt_u32 vcc, 324, v25\nv_cndmask_b32 v{ad}, v24, v{ad}, vcc\nv_cndmask_b32 v{ad+2}, v24, v{ad+2}, vcc")
    k("v_cmp_lt_u32 vcc, 17, v0\nv_cndmask_b32_e64 v10, 0, 1, vcc\nv_mul_u32_u24 v11, 18, v10\nv_sub_u32 v11, v0, v11")
    k("v_lshl_add_u32 v12, v10, 4, v11\nv_add_u32 v12, 80, v12\nv_lshl_add_u32 v13, v10, 2, v11\nv_add_u32 v13, 50, v13")
    k("v_cmp_gt_u32 vcc, 16, v11\nv_cndmask_b32 v12, v13, v12, vcc")
    k(f"v_add_u32 v13, s34, v0\nv_add_u32 v13, 80, v13\nv_mul_u32_u24 v13, {BS}, v13\nv_lshl_add_u32 v30, v12, 1, v13")
    k("v_cmp_gt_u32 vcc, 36, v0\nv_cndmask_b32 v30, v24, v30, vcc\nv_mov_b32 v31, 0x3f80")
    k.stamp(1)
    k.wait_all(vm=False); k("s_barrier")
    k("ds_write_b16 v30, v31\nds_write_b32 v26, v16\nds_write_b32 v28, v16\nds_write_b32 v27, v17\nds_write_b32 v29, v17")
    k("v_lshrrev_b32 v10, 2, v3\nv_and_b32 v11, 3, v3")
    k(f"v_lshl_add_u32 v12, v4, 3, v10\nv_mul_u32_u24 v12, {BS}, v12\nv_lshl_add_u32 v12, v11, 3, v12\ns_lshl_b32 s35, s3, 5\nv_add_u32 v12, s35, v12")
    k(f"v_mul_u32_u24 v13, 240, v11\nv_mul_u32_u24 v14, {2*IS}, v10\nv_lshl_add_u32 v13, v4, 4, v13\nv_add_u32 v13, v13, v14\nv_add_u32 v13, {RAW}, v13")
    k(f"s_mul_i32 s36, s28, 18\ns_mul_i32 s37, s29, 3\ns_add_u32 s36, s36, s37\ns_mul_i32 s36, s36, 7\ns_add_u32 s36, s36, s3\ns_lshl_b32 s36, s36, 10\ns_add_u32 s36, s36, {WF}")
    k(f"s_add_u32 s37, s36, 4096\ns_cmp_lt_u32 s3, 3\ns_cselect_b32 s37, s37, {INV}")
    k.stamp(2)
    k.wait_all(); k("s_barrier")
    k.stamp(3)
    gt('W', 0)
    def rdB(s):
        for ts in range(2):
            for h in range(2):
                k(f"ds_read_b64_tr_b16 {V(32+16*ts+4*s+2*h,2)}, v12 offset:{(32*s+4*h)*BS+128*ts}")
    def rdA(db, s):
        for hf in range(2): k(f"ds_read_b128 {V(64+32*db+16*hf+4*s,4)}, v13 offset:{db*8*IS+hf*IS+s*64}")
    for s in range(4): rdB(s); rdA(0, s)
    for db in range(1, 3):
        for s in range(4): rdA(db, s)
    fill('w')
    gt('W', 1)
    for db in range(3):
        for s in range(4):
            for hf in range(2):
                for ts in range(2):
                    c = V(160+16*db+8*ts+4*hf, 4)
                    k(MF(c, V(64+32*db+16*hf+4*s,4), V(32+16*ts+4*s,4), c if s else "0"))
        if db:
            for ts in range(2):
                c = 160+16*(db-1)+8*ts; o = 208+8*(db-1)+4*ts
                for j in range(4): k(f"v_cvt_pk_bf16_f32 v{o+j}, v{c+2*j}, v{c+2*j+1}")
                k(f"buffer_store_dwordx4 {V(o,4)}, v5, s[16:19], s{36+ts} offen")
            k("s_add_u32 s36, s36, 7168\ns_add_u32 s37, s37, 7168")
    k.stamp(4)
    for ts in range(2):
        c = 160+32+8*ts; o = 208+16+4*ts
        for j in range(4): k(f"v_cvt_pk_bf16_f32 v{o+j}, v{c+2*j}, v{c+2*j+1}")
        k(f"buffer_store_dwordx4 {V(o,4)}, v5, s[16:19], s{36+ts} offen")
    k("s_endpgm")
    k.label("prep_notw")
    k("s_cmp_lt_u32 s2, 120\ns_cbranch_scc1 prep_wo\ns_cmp_ge_u32 s2, 248\ns_cbranch_scc1 " + ("prep_fill" if AF else "prep_end"))
    k("s_sub_u32 s35, s2, 120\ns_lshr_b32 s36, s35, 3\ns_and_b32 s37, s35, 3\ns_lshl_b32 s37, s37, 1\ns_bfe_u32 s38, s35, 0x10002\ns_add_u32 s37, s37, s38\ns_lshl_b32 s37, s37, 4\ns_add_u32 s37, s37, s36")
    k("v_lshrrev_b32 v7, 4, v0")
    k("v_mul_u32_u24 v8, 1152, v7\nv_lshl_add_u32 v8, v3, 4, v8")
    k("v_add_u32 v9, 1024, v8\nv_cmp_gt_u32 vcc, 8, v3\nv_cndmask_b32 v9, v6, v9, vcc")
    k("s_mul_i32 s28, s37, 18432")
    k("s_waitcnt lgkmcnt(0)")
    srd(k, 20, 4, 2359296)
    for j in range(4): k(f"buffer_load_dwordx4 {V(16+4*j,4)}, v8, s[20:23], s28 offen offset:{256*j}")
    k(f"buffer_load_dwordx4 v[32:35], v9, s[20:23], s28 offen")
    srd(k, 16, 12, WSSZ)
    if 'pc' in OPT and not AF: pf_code(k, "attn1_kernel", 250, 40)
    fill('x')
    k("v_xor_b32 v10, v7, v3\nv_lshlrev_b32 v10, 4, v10\nv_lshl_add_u32 v10, v3, 8, v10")
    k("s_lshl_b32 s29, s3, 2\nv_add_u32 v11, s29, v4\nv_xor_b32 v12, v3, v11\nv_lshlrev_b32 v12, 4, v12\nv_lshl_add_u32 v11, v11, 8, v12")
    k("s_mov_b32 s30, 0xffff0000")
    if 'k0w' in OPT:
        k("s_load_dwordx4 s[44:47], s[0:1], 40")
        pf13_addr(k, 84, "v0", 85, L0, 36, "v6")
        k(f"s_and_b32 s52, s2, 7\ns_mul_i32 s52, s52, 1152\ns_mul_i32 s53, s36, {36*9216}\ns_add_u32 s52, s52, s53")
        k("s_mov_b32 s48, s46\ns_mov_b32 s49, s47\ns_mov_b32 s46, 5308416\ns_mov_b32 s47, 0x20000\ns_mov_b32 s50, 5308416\ns_mov_b32 s51, 0x20000")
    def xt(pos):
        gt('X', pos)
        if 'k0w' in OPT and int(os.environ.get('K0P', 0)) == pos:
            k("buffer_load_dword v87, v84, s[44:47], s52 offen\nbuffer_load_dword v88, v84, s[48:51], s52 offen")
    xt(2)
    k(f"s_lshl_b32 s33, s3, 10\ns_add_u32 s33, s33, s28\ns_add_u32 s34, s33, 16384\ns_cmp_lt_u32 s3, 2\ns_cselect_b32 s34, s34, {INV}")
    k(f"s_lshl_b32 s32, s37, 6\ns_add_u32 s32, s32, {MX}")
    k("v_lshlrev_b32 v13, 2, v7\nv_cmp_eq_u32 vcc, 0, v3\nv_cndmask_b32 v13, v6, v13, vcc")
    k("s_mov_b32 s31, 0x3ae38e39")
    for i in range(20):
        k(f"v_lshlrev_b32 v{40+2*i}, 16, v{16+i}\nv_and_b32 v{41+2*i}, s30, v{16+i}")
        if i == 1: k("v_add_f32 v80, v40, v41\nv_mul_f32 v82, v40, v40\nv_mul_f32 v83, v41, v41\nv_add_f32 v81, v42, v43\nv_fmac_f32 v82, v42, v42\nv_fmac_f32 v83, v43, v43")
        if i >= 2:
            a = 80 + (i % 2)
            k(f"v_add_f32 v{a}, v{a}, v{40+2*i}\nv_fmac_f32 v82, v{40+2*i}, v{40+2*i}\nv_add_f32 v{a^1}, v{a^1}, v{41+2*i}\nv_fmac_f32 v83, v{41+2*i}, v{41+2*i}")
    k("v_add_f32 v80, v80, v81\nv_add_f32 v82, v82, v83")
    for r in (8, 4, 2, 1):
        k(f"v_add_f32_dpp v80, v80, v80 row_ror:{r} row_mask:0xf bank_mask:0xf\nv_add_f32_dpp v82, v82, v82 row_ror:{r} row_mask:0xf bank_mask:0xf")
    k("v_mul_f32 v80, s31, v80\nv_mul_f32 v82, s31, v82\nv_fma_f32 v82, -v80, v80, v82\nv_max_f32 v82, 0, v82")
    k.stamp(1)
    xt(1)
    bf16r(k, "v81", "v80"); bf16r(k, "v82", "v82")
    k("v_add_f32 v82, 0x3727c5ac, v82"); bf16r(k, "v82", "v82")
    k("v_sqrt_f32 v82, v82"); bf16r(k, "v82", "v82")
    k("v_rcp_f32 v82, v82\nv_mul_f32 v81, v81, v82")
    for i in range(20):
        k(f"v_fma_f32 v{40+2*i}, v{40+2*i}, v82, -v81\nv_fma_f32 v{41+2*i}, v{41+2*i}, v82, -v81\nv_cvt_pk_bf16_f32 v{16+i}, v{40+2*i}, v{41+2*i}")
        if i % 4 == 3: k(f"ds_write_b128 v10, {V(13+i,4)} offset:{4096*(i//4)}")
    k("buffer_store_dword v80, v13, s[16:19], s32 offen")
    k.stamp(2)
    xt(3)
    k.wait_all(vm=False); k("s_barrier")
    for i in range(5): k(f"ds_read_b128 {V(16+4*i,4)}, v11 offset:{4096*i}")
    for i in range(4):
        k(f"buffer_store_dwordx4 {V(16+4*i,4)}, v5, s[16:19], s33 offen")
        k("s_add_u32 s33, s33, 4096")
    k("buffer_store_dwordx4 v[32:35], v5, s[16:19], s34 offen")
    xt(0)
    k("s_endpgm")
    RS = 1056; TB = 32*RS
    k.label("prep_wo")
    k("s_cmp_ge_u32 s2, 114\ns_cbranch_scc1 prep_zero")
    k("s_sub_u32 s28, s2, 96")
    k("s_mul_i32 s29, s28, 36\ns_sub_u32 s30, s28, 16\ns_mul_i32 s30, s30, 288\ns_add_u32 s30, s30, 16")
    k("s_cmp_lt_u32 s28, 16\ns_cselect_b32 s29, s29, s30\ns_cselect_b32 s30, 18, 36\ns_cselect_b32 s31, 4, 72\ns_cselect_b32 s32, 2, 18")
    k("s_lshr_b32 s33, s3, 1\ns_mul_i32 s33, s33, s30\ns_add_u32 s29, s29, s33\ns_and_b32 s33, s3, 1\ns_mul_i32 s33, s33, s31\ns_lshl_b32 s33, s33, 1\ns_add_u32 s29, s29, s33")
    k("s_mul_i32 s29, s29, 1152\ns_mul_i32 s31, s31, 1152\ns_mul_i32 s32, s32, 1152")
    k(f"s_mul_i32 s34, s3, {8*RS}")
    k("s_waitcnt lgkmcnt(0)")
    srd(k, 20, 10, 663552)
    for kk in range(8):
        k("s_mov_b32 s35, s29")
        if kk >> 2: k("s_add_u32 s35, s35, s31")
        if (kk & 3) >> 1: k("s_add_u32 s35, s35, s32")
        if kk & 1: k("s_add_u32 s35, s35, 1152")
        k(f"s_add_u32 m0, s34, {kk*RS}\nbuffer_load_dwordx4 v5, s[20:23], s35 offen lds")
    k("v_lshrrev_b32 v7, 5, v1\nv_mul_lo_u32 v7, v7, s31\nv_bfe_u32 v8, v1, 4, 1\nv_mul_lo_u32 v8, v8, s32\nv_bfe_u32 v9, v1, 3, 1\nv_mul_u32_u24 v9, 1152, v9")
    k("v_add3_u32 v7, v7, v8, v9\nv_and_b32 v8, 7, v1\nv_lshl_add_u32 v7, v8, 4, v7")
    k(f"s_lshl_b32 s34, s3, 10\ns_add_u32 m0, s34, {TB-1024}\nbuffer_load_dwordx4 v7, s[20:23], s29 offen offset:1024 lds")
    srd(k, 16, 12, WSSZ)
    k("v_lshrrev_b32 v10, 2, v3\nv_and_b32 v11, 3, v3\nv_lshl_add_u32 v12, v4, 2, v10\ns_lshl_b32 s35, s3, 5")
    k(f"v_lshlrev_b32 v13, 3, v11\nv_add_u32 v13, s35, v13\nv_mul_u32_u24 v14, {RS}, v12\nv_add_u32 v14, v14, v13\nv_lshl_add_u32 v15, v12, 7, v13\nv_add_u32 v15, {TB}, v15")
    k(f"s_and_b32 s36, s3, 1\ns_lshl_b32 s37, s36, 4\nv_add_u32 v16, s37, v3\nv_lshlrev_b32 v17, 4, v4\nv_mul_u32_u24 v18, {RS}, v16\nv_add_u32 v18, v18, v17\nv_lshl_add_u32 v19, v16, 7, v17\nv_add_u32 v19, {TB}, v19")
    for j in range(4): k(f"v_mov_b32 v{20+j}, 0x3f803f80")
    k("v_lshl_add_u32 v24, v10, 4, v4\nv_lshlrev_b32 v24, 4, v24\nv_lshl_add_u32 v24, v11, 1, v24\ns_lshl_b32 s37, s36, 3\nv_add_u32 v24, s37, v24\nv_cmp_gt_u32 vcc, 2, v4\nv_cndmask_b32 v24, v6, v24, vcc")
    k(f"s_mul_i32 s38, s3, 18\ns_add_u32 s38, s38, s28\ns_lshl_b32 s38, s38, 10\ns_add_u32 s38, s38, {WOF}")
    k.stamp(1)
    k.wait_all(); k("s_barrier")
    k.stamp(2)
    gt('O', 0)
    for i in range(9):
        for h in range(2):
            if i < 8: k(f"ds_read_b64_tr_b16 {V(32+4*i+2*h,2)}, v14 offset:{h*16*RS+128*i}")
            else: k(f"ds_read_b64_tr_b16 {V(32+4*i+2*h,2)}, v15 offset:{h*2048}")
    for s in range(18):
        if s < 16: k(f"ds_read_b128 {V(72+4*s,4)}, v18 offset:{64*s}")
        else: k(f"ds_read_b128 {V(72+4*s,4)}, v19 offset:{64*(s-16)}")
    fill('o')
    for i in range(9):
        k(f"buffer_store_dwordx4 {V(32+4*i,4)}, v5, s[16:19], s38 offen\ns_add_u32 s38, s38, {4*18*1024}")
    for s in range(18): k(MF(V(28 if s % 2 else 20+4+0, 4) if False else "v[28:31]", "v[20:23]", V(72+4*s,4), "v[28:31]" if s else "0"))
    k("s_mov_b32 s31, 0x3ae38e39\nv_mul_f32 v28, s31, v28")
    bf16r(k, "v29", "v28")
    k("v_sub_f32 v28, v28, v29\nv_cmp_eq_u32 vcc, 0, v4\nv_cndmask_b32 v28, v28, v29, vcc\nv_cvt_pk_bf16_f32 v28, v28, v28")
    k(f"s_lshl_b32 s38, s28, 10\ns_add_u32 s38, s38, {WOF + 36*18*1024}\nbuffer_store_short v28, v24, s[16:19], s38 offen")
    k("s_endpgm")
    k.label("prep_zero")
    if AF:
        k.label("prep_fill")
        k("s_waitcnt lgkmcnt(0)")
        gt('I', 0)
        fill('i')
        k("s_endpgm")
    k("s_cmp_ge_u32 s2, 116\ns_cbranch_scc1 prep_end")
    k(f"s_sub_u32 s28, s2, 114\ns_lshl_b32 s28, s28, 12\ns_add_u32 s28, s28, {FLG}\nv_lshlrev_b32 v7, 4, v0\nv_mov_b32 v8, 0\nv_mov_b32 v9, 0\nv_mov_b32 v10, 0\nv_mov_b32 v11, 0\ns_waitcnt lgkmcnt(0)")
    srd(k, 16, 12, WSSZ)
    k("buffer_store_dwordx4 v[8:11], v7, s[16:19], s28 offen")
    k.label("prep_end")
    k("s_endpgm")
    if NT:
        rows = 576 * 8 // NT; n = (rows * len(LT0) + 255) // 256
        k.label("prep_touch")
        k(f"s_cmp_ge_u32 s2, {NG + NT}\ns_cbranch_scc1 prep_end")
        k("s_load_dwordx4 s[44:47], s[0:1], 40\ns_load_dwordx2 s[52:53], s[0:1], 56\nv_mov_b32 v6, 0x40000000")
        for j in range(n):
            k(f"v_add_u32 v7, {256*j}, v0")
            pf13_addr(k, 16 + j, "v7", 8, LT0, rows, "v6")
        k(f"s_and_b32 s14, s2, 7\ns_sub_u32 s15, s2, {NG}\ns_lshr_b32 s15, s15, 3\ns_mul_i32 s16, s14, 1152\ns_mul_i32 s17, s15, {rows*9216}\ns_add_u32 s16, s16, s17")
        k("s_mov_b32 s48, s46\ns_mov_b32 s49, s47\ns_mov_b32 s46, 5308416\ns_mov_b32 s47, 0x20000\ns_mov_b32 s50, 5308416\ns_mov_b32 s51, 0x20000\ns_mov_b32 s54, 5308416\ns_mov_b32 s55, 0x20000")
        if os.environ.get('TD'): k(f"s_sleep {os.environ['TD']}")
        for j in range(n): k(f"buffer_load_dword v{32+2*j}, v{16+j}, s[44:47], s16 offen\nbuffer_load_dword v{33+2*j}, v{16+j}, s[48:51], s16 offen")
        n2 = int(os.environ.get('NW2', 0))
        if n2:
            k(f"s_mul_i32 s16, s14, 663552\ns_mul_i32 s17, s15, {n2*256*128}\ns_add_u32 s16, s16, s17\nv_lshlrev_b32 v7, 7, v0")
            for j in range(n2): k(f"buffer_load_dword v{64+j}, v7, s[52:55], s16 offen\ns_add_u32 s16, s16, 32768")
        k("s_endpgm")
    return k


def a1():
    ROWS = 129024
    XR = 16; NX = 6; WB = 40; AC = 96; EP = 40; PK = 60; VV = 78
    TW = 'tw' in OPT
    k = Kern("attn1_kernel", vgpr=128, lds=159744, block=576 if TW else 512, grid=256)
    k("s_cmp_ge_u32 s2, 256\ns_cbranch_scc1 a1_end")
    k("s_load_dwordx2 s[12:13], s[0:1], 80")
    if TW or 'a1t' in OPT: k("s_load_dwordx4 s[44:47], s[0:1], 40\ns_load_dwordx2 s[52:53], s[0:1], 56")
    k("v_and_b32 v1, 63, v0\nv_lshrrev_b32 v2, 6, v0\nv_readfirstlane_b32 s3, v2")
    k("v_lshlrev_b32 v5, 4, v1")
    k("s_and_b32 s4, s2, 7\ns_lshr_b32 s5, s2, 3")
    if TW: k("s_cmp_eq_u32 s3, 8\ns_cbranch_scc1 a1_tw")
    k("s_and_b32 s6, s4, 3\ns_lshl_b32 s6, s6, 2\ns_and_b32 s7, s5, 3\ns_add_u32 s6, s6, s7")
    k("s_lshr_b32 s7, s4, 2\ns_lshl_b32 s7, s7, 3\ns_lshr_b32 s5, s5, 2\ns_add_u32 s7, s7, s5")
    k("s_lshl_b32 s8, s6, 3\ns_add_u32 s8, s8, s3")
    k(f"s_lshl_b32 s9, s3, 10\ns_mul_i32 s10, s7, 129024\ns_add_u32 s10, s10, {WF}")
    k(f"s_mul_i32 s11, s8, 18432")
    ROT = 'rot' in OPT
    if ROT:
        k("s_and_b32 s14, s6, 3\ns_mul_i32 s14, s14, 9\ns_lshr_b32 s14, s14, 1\ns_mul_i32 s15, s5, 9\ns_lshr_b32 s15, s15, 2\ns_add_u32 s14, s14, s15\ns_sub_u32 s15, s14, 18\ns_cmp_ge_u32 s14, 18\ns_cselect_b32 s14, s15, s14")
        k("s_add_u32 s33, s10, 129024\ns_add_u32 s34, s11, 18432\ns_mul_i32 s15, s14, 7168\ns_add_u32 s10, s10, s15\ns_lshl_b32 s15, s14, 10\ns_add_u32 s11, s11, s15")
    k("s_add_u32 s10, s10, s9")
    wrapw = "\ns_sub_u32 s14, s10, 129024\ns_cmp_ge_u32 s10, s33\ns_cselect_b32 s10, s14, s10" if ROT else ""
    if ROT: k(wrapw)
    srd(k, 16, 12, WSSZ)
    LA = int(os.environ.get('A1LA', 4)); GB = int(os.environ.get('A1GB', 2))
    assert LA < NX
    st = dict(di=0, xi=0)
    def ld(upto):
        ops = []
        while st['xi'] <= min(upto, 17):
            ks = st['xi']
            while st['di'] <= (7*min(ks + 1, 17) + 6) // 8:
                di = st['di']
                ops.append((f"s_add_u32 m0, s9, {8192*di}\nbuffer_load_dwordx4 v5, s[16:19], s10 offen lds\ns_add_u32 s10, s10, 8192" + wrapw, f"D{di}")); st['di'] += 1
            if ROT: ops.append((f"buffer_load_dwordx4 {V(XR+4*(ks%NX),4)}, v5, s[16:19], s11 offen\ns_add_u32 s11, s11, 1024\ns_sub_u32 s15, s11, 18432\ns_cmp_ge_u32 s11, s34\ns_cselect_b32 s11, s15, s11", None))
            else: ops.append((f"buffer_load_dwordx4 {V(XR+4*(ks%NX),4)}, v5, s[16:19], s11 offen offset:{1024*(ks%4)}" + ("\ns_add_u32 s11, s11, 4096" if ks % 4 == 3 else ""), None))
            st['xi'] += 1
        return ops
    for o, t in ld(LA - 1): k(o, tag=t)
    if 'pc' in OPT and not TW: pf_code(k, "attn2_kernel", 124, 40)
    if 'a1t' in OPT:
        k("s_and_b32 s48, s3, 3\nv_lshl_add_u32 v123, v1, 2, s48\nv_mov_b32 v122, 0x40000000")
        pf13_addr(k, 127, "v123", 120, L1, 18, "v122")
        k(f"s_mul_i32 s48, s4, 1152\ns_lshr_b32 s49, s2, 3\ns_mul_i32 s49, s49, {18*9216}\ns_add_u32 s48, s48, s49")
        k("s_cmp_lt_u32 s3, 4\ns_cselect_b32 s44, s44, s46\ns_cselect_b32 s45, s45, s47\ns_mov_b32 s46, 5308416\ns_mov_b32 s47, 0x20000")
    k("v_and_b32 v3, 15, v1\nv_lshrrev_b32 v4, 4, v1\nv_mov_b32 v6, 0x40000000")
    k("v_lshlrev_b32 v7, 4, v3\nv_lshl_add_u32 v8, v4, 10, v7\nv_lshl_add_u32 v9, v4, 3, v7\nv_cmp_gt_u32 vcc, 2, v4\nv_cndmask_b32 v8, v6, v8, vcc\nv_cndmask_b32 v9, v6, v9, vcc")
    k(f"s_lshl_b32 s20, s8, 5\ns_lshl_b32 s21, s7, 1\ns_add_u32 s20, s20, s21\ns_lshl_b32 s20, s20, 10\ns_add_u32 s20, s20, {PQ}")
    k(f"s_lshl_b32 s21, s8, 4\ns_add_u32 s21, s21, s7\ns_lshl_b32 s21, s21, 8\ns_add_u32 s21, s21, {PQL}")
    k(f"s_mul_i32 s22, s3, 3840\ns_add_u32 s22, s22, {ROWS}\nv_mul_u32_u24 v10, 240, v3\nv_add_u32 v10, s22, v10")
    k("v_mul_u32_u24 v11, 80, v4\nv_add_u32 v11, v11, v10\nv_subrev_u32 v11, 160, v11")
    k("v_lshl_add_u32 v12, v4, 3, v10\nv_mul_u32_u24 v13, 40, v4\nv_add_u32 v13, v13, v10")
    k(f"s_mov_b32 s24, {LOG2E}\ns_mov_b32 s25, {LOG2E | 0x80000000}")
    k("s_cmp_ge_u32 s3, 3\ns_cselect_b32 s26, 1, 0\ns_mul_i32 s27, s26, 3\ns_sub_u32 s27, s3, s27")
    k(f"s_mul_i32 s28, s26, 80\ns_lshl_b32 s29, s27, 3\ns_cmp_lt_u32 s27, 2\ns_cselect_b32 s29, s29, 64\ns_cselect_b32 s30, 16, 0\ns_add_u32 s28, s28, s29\ns_add_u32 s28, s28, {ROWS}")
    k(f"s_mul_i32 s29, s26, 40\ns_add_u32 s29, s29, {ROWS+160}")
    k("v_lshrrev_b32 v7, 2, v3\nv_and_b32 v10, 3, v3\nv_lshl_add_u32 v7, v4, 3, v7\nv_mul_u32_u24 v7, 240, v7")
    k("v_mul_u32_u24 v124, s30, v10\nv_add3_u32 v124, v124, v7, s28")
    k("v_add_u32 v126, s29, v7\nv_lshl_add_u32 v125, v10, 3, v126")
    k(f"s_lshl_b32 s31, s7, 4\ns_add_u32 s31, s31, s6\ns_mul_i32 s31, s31, 6400\ns_mul_i32 s32, s26, 3200\ns_add_u32 s31, s31, s32\ns_add_u32 s31, s31, {KVP}")
    def reads(ks):
        out = []
        for t in range(7):
            off = (ks*7 + t) * 1024
            base = "v5" if off < 65536 else "v14"
            out.append(f"ds_read_b128 {V(WB+28*(ks%2)+4*t,4)}, {base} offset:{off % 65536}")
        return out
    def mfmas(ks):
        return [MF(V(AC+4*t, 4), V(WB+28*(ks%2)+4*t,4), V(XR+4*(ks%NX),4), V(AC+4*t, 4) if ks else "0") for t in range(7)]
    k("v_add_u32 v14, 0x10000, v5")
    nbar = 0
    def bar(upto):
        nonlocal nbar
        k.wait_vm(f"D{(7*min(upto, 17) + 6) // 8}"); k("s_barrier"); nbar += 1
    bar(0)
    k.stamp(1)
    for o in reads(0): k(o)
    for ks in range(18):
        if ks % GB == 0 and ks + 1 < 18: bar(ks + GB)
        if ks == 8: k.stamp(2)
        if ks == int(os.environ.get('A1T', 16)) and 'a1t' in OPT: k("buffer_load_dword v15, v127, s[44:47], s48 offen")
        R = reads(ks + 1) if ks + 1 < 18 else []
        L = ld(ks + LA)
        M = mfmas(ks)
        for o in R[:2]: k(o)
        R = R[2:]
        for i, m in enumerate(M):
            k(m)
            if R: k(R.pop(0))
            if L and i >= 2: o, t = L.pop(0); k(o, tag=t)
        for o, t in L: k(o, tag=t)
    k.stamp(3)
    A = lambda i: f"v{AC+i}"
    k(f"v_cvt_pk_bf16_f32 v{VV}, {A(20)}, {A(21)}\nv_cvt_pk_bf16_f32 v{VV+1}, {A(22)}, {A(23)}\nv_cvt_pk_bf16_f32 v{VV+2}, {A(24)}, {A(25)}\nv_cvt_pk_bf16_f32 v{VV+3}, {A(26)}, {A(27)}")
    k(f"v_cvt_pk_bf16_f32 v{VV+4}, {A(18)}, {A(19)}\nv_mov_b32 v{VV+5}, 0x3f80")
    k(f"ds_write_b64 v12, {V(VV,2)} offset:160\nds_write_b64 v12, {V(VV+2,2)} offset:200")
    k(f"s_mov_b64 exec, 0xffffffff\nds_write_b64 v13, {V(VV+4,2)} offset:192\ns_mov_b64 exec, -1")
    k(f"v_max3_f32 v84, {A(0)}, {A(1)}, {A(2)}\nv_min3_f32 v85, {A(0)}, {A(1)}, {A(2)}")
    for j in range(7): k(f"v_max3_f32 v84, v84, {A(3+2*j)}, {A(4+2*j)}\nv_min3_f32 v85, v85, {A(3+2*j)}, {A(4+2*j)}")
    k(f"v_max_f32 v84, v84, {A(17)}\nv_min_f32 v85, v85, {A(17)}")
    k("v_mul_f32 v86, s25, v84\nv_mul_f32 v87, s24, v85")
    for f in range(18):
        k(f"v_fma_f32 v{EP+f}, {A(f)}, s24, v86\nv_fma_f32 {A(f)}, {A(f)}, s25, v87")
        k(f"v_exp_f32 v{EP+f}, v{EP+f}\nv_exp_f32 {A(f)}, {A(f)}")
        if f == 1: k(f"v_add_f32 v84, v{EP}, v{EP+1}\nv_add_f32 v85, {A(0)}, {A(1)}")
        if f >= 2: k(f"v_add_f32 v84, v84, v{EP+f}\nv_add_f32 v85, v85, {A(f)}")
    k("v_rcp_f32 v84, v84\nv_rcp_f32 v85, v85")
    for j in range(9):
        k(f"v_mul_f32 v{EP+2*j}, v{EP+2*j}, v84\nv_mul_f32 v{EP+1+2*j}, v{EP+1+2*j}, v84\nv_cvt_pk_bf16_f32 v{PK+j}, v{EP+2*j}, v{EP+1+2*j}")
    for j in range(9):
        k(f"v_mul_f32 {A(2*j)}, {A(2*j)}, v85\nv_mul_f32 {A(2*j+1)}, {A(2*j+1)}, v85\nv_cvt_pk_bf16_f32 v{PK+9+j}, {A(2*j)}, {A(2*j+1)}")
    k("s_mov_b32 exec_lo, 0")
    for j in range(4): k(f"ds_write_b128 v11, {V(PK+4*j,4)} offset:{16*j}")
    k(f"ds_write_b64 v11, {V(PK+16,2)} offset:64")
    k("s_mov_b32 exec_lo, -1")
    for j in range(4): k(f"buffer_store_dwordx4 {V(PK+4*j,4)}, v8, s[16:19], s20 offen offset:{256*j}")
    k(f"buffer_store_dwordx2 {V(PK+16,2)}, v9, s[16:19], s21 offen")
    k.stamp(4)
    k.wait_all(vm=False); k("s_barrier"); nbar += 1
    k.stamp(5)
    k("s_cmp_ge_u32 s3, 6\ns_cbranch_scc1 a1_end")
    FA, FB, FX, C0 = 16, 80, 96, 112
    for s in range(4):
        for h in range(2):
            o = (32*s + 4*h) * 240
            k(f"ds_read_b64_tr_b16 {V(FA+4*s+2*h,2)}, v124 offset:{o}\nds_read_b64_tr_b16 {V(FB+4*s+2*h,2)}, v125 offset:{o}\nds_read_b64_tr_b16 {V(FX+4*s+2*h,2)}, v126 offset:{o+32}")
    for s in range(4):
        k(MF("v[112:115]", V(FA+4*s,4), V(FB+4*s,4), "v[112:115]" if s else "0"))
        k(MF("v[116:119]", V(FA+4*s,4), V(FX+4*s,4), "v[116:119]" if s else "0"))
    k("s_cmp_eq_u32 s27, 2\ns_cbranch_scc1 a1_mt2")
    k("s_lshl_b32 s32, s27, 4\nv_lshl_add_u32 v41, v1, 5, s32")
    k("v_lshl_add_u32 v42, v3, 2, v4\nv_lshl_add_u32 v42, v42, 5, s32\nv_add_u32 v42, 2560, v42\nv_cmp_gt_u32 vcc, 4, v3\nv_cndmask_b32 v42, v6, v42, vcc")
    k("buffer_store_dwordx4 v[112:115], v41, s[16:19], s31 offen\nbuffer_store_dwordx4 v[116:119], v42, s[16:19], s31 offen")
    k("s_endpgm")
    k.label("a1_mt2")
    k("v_xor_b32 v43, s26, v4\nv_lshl_add_u32 v43, v3, 1, v43\nv_lshlrev_b32 v43, 4, v43")
    k("v_add_u32 v41, 2048, v43\nv_add_u32 v42, 3072, v43\nv_cmp_gt_u32 vcc, 2, v4\nv_cndmask_b32 v41, v6, v41, vcc\nv_cndmask_b32 v42, v6, v42, vcc")
    k("v_cmp_gt_u32 vcc, 4, v3\nv_cndmask_b32 v42, v6, v42, vcc")
    k("v_cmp_eq_u32 vcc, 0, v4\ns_nop 7")
    for j in range(8): k(f"v_cndmask_b32 v{112+j}, 0, v{112+j}, vcc")
    k("buffer_store_dwordx4 v[112:115], v41, s[16:19], s31 offen\nbuffer_store_dwordx4 v[116:119], v42, s[16:19], s31 offen")
    k("s_endpgm")
    if TW:
        k.label("a1_tw")
        T = []
        k("v_mov_b32 v6, 0x40000000\nv_add_u32 v7, 64, v1\nv_add_u32 v8, 128, v1\nv_lshlrev_b32 v9, 7, v1")
        n1 = (18*len(L1) + 63) // 64
        for j in range(n1): pf13_addr(k, 16 + j, ["v1", "v7", "v8"][j], 20, L1, 18, "v6")
        k(f"s_mul_i32 s54, s4, 1152\ns_mul_i32 s55, s5, {18*9216}\ns_add_u32 s54, s54, s55")
        k(f"s_mul_i32 s55, s4, 663552\ns_mul_i32 s56, s5, {162*128}\ns_add_u32 s55, s55, s56\ns_add_u32 s56, s55, 8192\ns_add_u32 s57, s55, 16384")
        k("v_cmp_gt_u32 vcc, 34, v1\nv_cndmask_b32 v10, v6, v9, vcc")
        k(f"s_mul_i32 s58, s5, {168*128}\ns_add_u32 s58, s58, {WOF}\ns_add_u32 s59, s58, 8192\ns_add_u32 s60, s58, 16384\nv_cmp_gt_u32 vcc, 40, v1\nv_cndmask_b32 v11, v6, v9, vcc")
        k("s_waitcnt lgkmcnt(0)")
        srd(k, 16, 12, WSSZ); srd(k, 48, 46, 5308416); srd(k, 20, 44, 5308416); srd(k, 24, 52, 5308416)
        for j in range(n1): T += [f"v{16+j}, s[20:23], s54", f"v{16+j}, s[48:51], s54"]
        if 'tw2' in OPT: T += ["v9, s[24:27], s55", "v9, s[24:27], s56", "v10, s[24:27], s57"]
        if 'wof' in OPT: T += ["v9, s[16:19], s58", "v9, s[16:19], s59", "v11, s[16:19], s60"]
        T0 = int(os.environ.get('TW0', 1))
        for b in range(nbar):
            if b == nbar - 1 and 'pc' in OPT: pf_code(k, "attn2_kernel", 124, 40)
            k("s_barrier")
            n = 0 if b < T0 else -(-len(T) // (nbar - 1 - b)) if b < nbar - 1 else len(T)
            for j in range(n): k(f"buffer_load_dword v{32 + len(T)}, {T.pop(0)} offen")
        assert not T
    k.label("a1_end")
    k("s_endpgm")
    return k

def a2():
    k = Kern("attn2_kernel", vgpr=128, lds=4096, block=512, grid=256)
    k("s_cmp_ge_u32 s2, 256\ns_cbranch_scc1 a2_end")
    k("s_load_dwordx2 s[12:13], s[0:1], 80")
    if LA2 or LA2W: touch_load(k, 44)
    k("v_and_b32 v1, 63, v0\nv_lshrrev_b32 v2, 6, v0\nv_readfirstlane_b32 s3, v2")
    k("s_and_b32 s4, s2, 7\ns_lshr_b32 s5, s2, 3\ns_and_b32 s6, s4, 3\ns_lshl_b32 s6, s6, 2\ns_and_b32 s7, s5, 3\ns_add_u32 s6, s6, s7")
    k("s_lshr_b32 s7, s4, 2\ns_lshl_b32 s7, s7, 3\ns_lshr_b32 s5, s5, 2\ns_add_u32 s7, s7, s5")
    k("s_lshl_b32 s8, s6, 3\ns_add_u32 s8, s8, s3")
    k("v_mov_b32 v6, 0x40000000\nv_lshlrev_b32 v7, 4, v0\nv_cmp_gt_u32 vcc, 400, v0\nv_cndmask_b32 v7, v6, v7, vcc")
    k(f"s_mul_i32 s9, s7, 102400\ns_add_u32 s9, s9, {KVP}")
    srd(k, 16, 12, WSSZ)
    for j in range(16):
        k(f"buffer_load_dwordx4 {V(32+4*j,4)}, v7, s[16:19], s9 offen\ns_add_u32 s9, s9, 6400")
    k("v_and_b32 v3, 15, v1\nv_lshrrev_b32 v4, 4, v1\nv_lshlrev_b32 v5, 4, v1")
    k("v_cmp_eq_u32 vcc, 0, v4\nv_cndmask_b32 v8, v6, v5, vcc")
    k(f"s_lshl_b32 s20, s8, 5\ns_lshl_b32 s21, s7, 1\ns_add_u32 s20, s20, s21\ns_lshl_b32 s20, s20, 10\ns_add_u32 s20, s20, {PQ}")
    k(f"s_lshl_b32 s21, s8, 4\ns_add_u32 s21, s21, s7\ns_lshl_b32 s21, s21, 8\ns_add_u32 s21, s21, {PQL}")
    k("buffer_load_dwordx4 v[96:99], v5, s[16:19], s20 offen\nbuffer_load_dwordx4 v[100:103], v5, s[16:19], s20 offen offset:1024\nbuffer_load_dwordx4 v[104:107], v8, s[16:19], s21 offen")
    if 'pc' in OPT: pf_code(k, "attn3_kernel", 110, 40)
    if LA2 or LA2W: touch_setup(k, LA2, LA2W, 112, 44); touch_issue(k, LA2, LA2W, 112, 44); k("v_cmp_eq_u32 vcc, 0, v4")
    for o in OPT:
        if o.startswith('a2w'): pf_w(k, o[3:], 112, 44); k("v_cmp_eq_u32 vcc, 0, v4")
    k("v_mov_b32 v9, 1472\nv_add_u32 v10, 1024, v5\nv_cndmask_b32 v10, v9, v10, vcc")
    k("v_and_b32 v11, 3, v3\nv_lshl_add_u32 v12, v11, 2, v4\nv_lshlrev_b32 v12, 4, v12\nv_lshlrev_b32 v11, 4, v11\nv_add_u32 v11, 1536, v11\nv_cndmask_b32 v11, v9, v11, vcc")
    k("v_lshlrev_b32 v13, 3, v0")
    k(f"s_mul_i32 s22, s8, 18\ns_add_u32 s23, s22, s7\ns_lshl_b32 s23, s23, 10\ns_add_u32 s23, s23, {OF}")
    k(f"s_lshr_b32 s24, s7, 3\ns_add_u32 s22, s22, s24\ns_lshl_b32 s22, s22, 10\ns_bfe_u32 s24, s7, 0x20001\ns_lshl_b32 s24, s24, 8\ns_add_u32 s22, s22, s24\ns_and_b32 s24, s7, 1\ns_lshl_b32 s24, s24, 3\ns_add_u32 s22, s22, s24\ns_add_u32 s22, s22, {OF + 16384}")
    for c in range(4): k(f"v_add_f32 v{32+c}, v{32+c}, v{36+c}")
    for j in range(2, 16):
        for c in range(4): k(f"v_add_f32 v{32+c}, v{32+c}, v{32+4*j+c}")
    k("v_cvt_pk_bf16_f32 v32, v32, v33\nv_cvt_pk_bf16_f32 v33, v34, v35\nds_write_b64 v13, v[32:33]")
    k.stamp(1)
    k.wait_all(vm=False); k("s_barrier")
    k.stamp(2)
    for hh in range(2):
        b = 40 + 16*hh; o = 1600*hh
        k(f"ds_read_b128 {V(b,4)}, v5 offset:{o}\nds_read_b128 {V(b+4,4)}, v12 offset:{o+1280}\nds_read_b128 {V(b+8,4)}, v10 offset:{o}\nds_read_b128 {V(b+12,4)}, v11 offset:{o}")
    for hh in range(2):
        b = 40 + 16*hh; c = 72 + 8*hh; pq = V(96+4*hh, 4)
        k(MF(V(c,4), V(b,4), pq, "0")); k(MF(V(c+4,4), V(b+4,4), pq, "0"))
    for hh in range(2):
        b = 40 + 16*hh; c = 72 + 8*hh
        k(MF(V(c,4), V(b+8,4), "v[104:107]", V(c,4))); k(MF(V(c+4,4), V(b+12,4), "v[104:107]", V(c+4,4)))
    for hh in range(2):
        c = 72 + 8*hh
        bf16r(k, f"v{c+6}", f"v{c+6}")
        k(f"v_add_f32 v{c+6}, 0x358637bd, v{c+6}")
        bf16r(k, f"v{c+6}", f"v{c+6}")
        k(f"v_rcp_f32 v{c+6}, v{c+6}")
    for hh in range(2):
        c = 72 + 8*hh
        for j in range(6): k(f"v_mul_f32 v{c+j}, v{c+j}, v{c+6}")
        k(f"v_cvt_pk_bf16_f32 v{88+2*hh}, v{c}, v{c+1}\nv_cvt_pk_bf16_f32 v{89+2*hh}, v{c+2}, v{c+3}\nv_cvt_pk_bf16_f32 v{92+hh}, v{c+4}, v{c+5}")
    k("buffer_store_dwordx4 v[88:91], v5, s[16:19], s23 offen\nbuffer_store_dwordx2 v[92:93], v8, s[16:19], s22 offen")
    k.label("a2_end")
    k("s_endpgm")
    return k

def a3():
    XO = 40960; MO = XO + 10240
    LA = int(os.environ.get('A3LA', 4))
    k = Kern("attn3_kernel", vgpr=256, lds=MO + 128, block=320, grid=256)
    k("s_cmp_ge_u32 s2, 256\ns_cbranch_scc1 a3_end")
    k("s_load_dwordx2 s[12:13], s[0:1], 80\ns_load_dwordx2 s[4:5], s[0:1], 0")
    if LA3 or LA3W: touch_load(k, 44)
    k("v_and_b32 v1, 63, v0\nv_lshrrev_b32 v2, 6, v0\nv_readfirstlane_b32 s3, v2")
    k("v_lshlrev_b32 v5, 4, v1")
    k("s_bfe_u32 s7, s2, 0x20003\ns_and_b32 s6, s2, 3\ns_lshl_b32 s6, s6, 1\ns_bfe_u32 s38, s2, 0x10002\ns_add_u32 s6, s6, s38\ns_lshl_b32 s6, s6, 3\ns_lshr_b32 s8, s2, 5\ns_add_u32 s6, s6, s8")
    k(f"s_lshl_b32 s9, s3, 10\ns_mul_i32 s10, s6, 36864\ns_add_u32 s10, s10, s9\ns_add_u32 s10, s10, {OF}")
    k("v_and_b32 v3, 15, v1\nv_lshrrev_b32 v4, 4, v1\nv_mov_b32 v6, 0x40000000")
    k("s_and_b32 s14, s7, 1\ns_lshl_b32 s15, s3, 1\ns_add_u32 s15, s15, s14")
    k("s_xor_b32 s24, s14, 1\ns_lshl_b32 s24, s24, 3\ns_cmp_lt_u32 s3, 4\ns_cselect_b32 s15, s15, s24")
    k("s_mul_i32 s24, s7, 9\ns_add_u32 s24, s24, s15\ns_add_u32 s25, s24, 1\ns_cmp_lt_u32 s3, 4\ns_cselect_b32 s25, s25, 36")
    k(f"s_mul_i32 s26, s24, 18432\ns_add_u32 s26, s26, {WOF}\ns_mul_i32 s27, s25, 18432\ns_add_u32 s27, s27, {WOF}")
    k("s_cmp_lt_u32 s3, 4\ns_cselect_b32 s28, 16, 2\nv_cmp_gt_u32 vcc, s28, v3\nv_cndmask_b32 v10, v6, v5, vcc")
    srd(k, 16, 12, WSSZ)
    for i in (0, 4, 1, 3, 5, 2, 6, 7):
        k(f"s_add_u32 m0, s9, {5120*i}\ns_add_u32 s8, s10, {5120*i}\nbuffer_load_dwordx4 v5, s[16:19], s8 offen lds", tag="DO")
    st = dict(w=0)
    def ldw(upto):
        while st['w'] <= min(upto, 17):
            ks = st['w']
            k(f"buffer_load_dwordx4 {V(64+8*ks,4)}, v5, s[16:19], s26 offen offset:{1024*(ks%4)}\nbuffer_load_dwordx4 {V(68+8*ks,4)}, v10, s[16:19], s27 offen offset:{1024*(ks%4)}")
            if ks % 4 == 3: k("s_add_u32 s26, s26, 4096\ns_add_u32 s27, s27, 4096")
            st['w'] += 1
    ldw(LA - 1)
    srd(k, 20, 4, 2359296)
    k("s_mul_i32 s11, s6, 36864\ns_mul_i32 s14, s7, 288\ns_add_u32 s11, s11, s14")
    for r in range(2):
        k(f"v_add_u32 v7, {320*r}, v0\nv_mul_u32_u24 v8, 3641, v7\nv_lshrrev_b32 v8, 16, v8\nv_mul_u32_u24 v9, 18, v8\nv_sub_u32 v9, v7, v9\nv_mul_u32_u24 v8, 1152, v8\nv_lshl_add_u32 v{232+r}, v9, 4, v8")
    k(f"v_lshlrev_b32 v11, 2, v3\ns_lshl_b32 s29, s6, 7\ns_add_u32 s29, s29, {MX}")
    def ldx():
        for r in range(2): k(f"s_add_u32 m0, s9, {XO + 5120*r}\nbuffer_load_dwordx4 v{232+r}, s[20:23], s11 offen lds", tag="DX")
        k("buffer_load_dword v12, v11, s[16:19], s29 offen\nbuffer_load_dword v13, v11, s[16:19], s29 offen offset:64")
    k(f"v_mul_u32_u24 v14, 288, v3\nv_lshl_add_u32 v14, v4, 3, v14\ns_lshl_b32 s30, s15, 5\ns_add_u32 s30, s30, {XO}\nv_add_u32 v14, s30, v14")
    k(f"v_add_u32 v15, {MO}, v11")
    k(f"s_lshl_b32 s32, s6, 1\ns_mul_i32 s32, s32, 18\ns_lshr_b32 s33, s24, 1\ns_add_u32 s32, s32, s33\ns_lshl_b32 s32, s32, 10\ns_add_u32 s33, s32, {HR}\ns_add_u32 s32, s32, {HC}")
    k("s_add_u32 s34, s32, 18432\ns_add_u32 s35, s33, 18432")
    k("s_mov_b32 s31, 0xffff0000")
    if LA3 or LA3W: touch_setup(k, LA3, LA3W, 244, 44)
    k.stamp(1)
    k.wait_vm("DO"); k("s_barrier")
    k.stamp(2)
    def rd(ks):
        k(f"ds_read_b128 {V(16+8*(ks%3),4)}, v5 offset:{ks*1024}\nds_read_b128 {V(20+8*(ks%3),4)}, v5 offset:{(18+ks)*1024}")
    rd(0); rd(1)
    XS = int(os.environ.get('A3XS', 6))
    for ks in range(18):
        if ks + 2 < 18: rd(ks + 2)
        ldw(ks + LA)
        if ks == XS: ldx()
        if ks == 14 and 'pc' in OPT: pf_code(k, "ffn_kernel", 240, 40)
        if ks == int(os.environ.get('A3T', 14)) and (LA3 or LA3W): touch_issue(k, LA3, LA3W, 244, 44)
        for t in (1, 0):
            for tt in range(2):
                c = V(40 + 8*tt + 4*t, 4)
                k(MF(c, V(64+8*ks+4*t,4), V(16+8*(ks%3)+4*tt,4), c if ks else "0"))
    k.stamp(3)
    k("s_cmp_lt_u32 s3, 4\ns_cbranch_scc1 a3_nomean")
    k.skip_begin()
    for tt in range(2):
        k(f"v_add_f32 v{44+8*tt}, v{44+8*tt}, v{45+8*tt}\nv_add_f32 v{44+8*tt}, v{44+8*tt}, v{12+tt}")
        bf16r(k, f"v{44+8*tt}", f"v{44+8*tt}")
    k("s_mov_b64 exec, 0xffff\nds_write_b32 v15, v44\nds_write_b32 v15, v52 offset:64\ns_mov_b64 exec, -1")
    k.wait_all(vm=False)
    k.skip_end("a3_nomean")
    k.wait_vm("DX")
    k("s_barrier")
    k.stamp(4)
    for tt in range(2):
        for t in range(2): k(f"ds_read_b64 {V(208+4*tt+2*t,2)}, v14 offset:{tt*4608+32*t}")
    k("ds_read_b32 v12, v15\nds_read_b32 v13, v15 offset:64")
    for tt in range(2):
        for t in range(2):
            for hf in range(2):
                c = 40 + 8*tt + 4*t + 2*hf
                k(f"v_cvt_pk_bf16_f32 v{c+1}, v{c}, v{c+1}\nv_lshlrev_b32 v{c}, 16, v{c+1}\nv_and_b32 v{c+1}, s31, v{c+1}")
    for tt in range(2):
        for t in range(2):
            for hf in range(2):
                c = 40 + 8*tt + 4*t + 2*hf; xr = 208 + 4*tt + 2*t + hf; ho = 216 + 4*tt + 2*t + hf; co = 224 + 4*tt + 2*t + hf
                k(f"v_lshlrev_b32 v58, 16, v{xr}\nv_and_b32 v59, s31, v{xr}\nv_add_f32 v{c}, v{c}, v58\nv_add_f32 v{c+1}, v{c+1}, v59")
                k(f"v_cvt_pk_bf16_f32 v{ho}, v{c}, v{c+1}\nv_lshlrev_b32 v57, 16, v{ho}\nv_and_b32 v56, s31, v{ho}")
                k(f"v_sub_f32 v57, v57, v{12+tt}\nv_sub_f32 v56, v56, v{12+tt}\nv_cvt_pk_bf16_f32 v{co}, v57, v56")
    k.stamp(5)
    k("s_cmp_lt_u32 s3, 4\ns_cbranch_scc0 a3_single")
    k("buffer_store_dwordx4 v[224:227], v5, s[16:19], s32 offen\nbuffer_store_dwordx4 v[228:231], v5, s[16:19], s34 offen")
    k("buffer_store_dwordx4 v[216:219], v5, s[16:19], s33 offen\nbuffer_store_dwordx4 v[220:223], v5, s[16:19], s35 offen")
    k("s_endpgm")
    k.label("a3_single")
    k("s_and_b32 s37, s24, 1\ns_lshl_b32 s37, s37, 3\nv_add_u32 v10, s37, v5\ns_nop 1")
    k("buffer_store_dwordx2 v[224:225], v10, s[16:19], s32 offen\nbuffer_store_dwordx2 v[228:229], v10, s[16:19], s34 offen")
    k("buffer_store_dwordx2 v[216:217], v10, s[16:19], s33 offen\nbuffer_store_dwordx2 v[220:221], v10, s[16:19], s35 offen")
    k.label("a3_end")
    k("s_endpgm")
    return k

def warm(S):
    k = Kern("warm_kernel", vgpr=8, lds=0, block=64*S, grid=256)
    k.prof = None
    k("v_lshrrev_b32 v2, 6, v0\nv_readfirstlane_b32 s3, v2\ns_mov_b64 exec, 0")
    for c in range(S): k(f"s_cmp_eq_u32 s3, {c}\ns_cbranch_scc1 ffn_kernel_ws{c}")
    k("s_endpgm")
    return k

AF_ = 'af' in OPT
def kernels():
    if 'PADB' in os.environ:
        S = int(os.environ.get('PADS', 16)); f = k3(); f.pads = (int(os.environ['PADB']), S)
        if 'nowarm' in OPT: return [k0(), a1(), a2(), a3(), f, k4()]
        return [k0(), a1(), a2(), a3(), warm(S), f, k4()]
    if AF_: return [k0(), af(), k3(), k4()]
    if 'fuse' in OPT: return [k0(), a1(), a2(), a3(), k3()]
    return [k0(), a1(), a2(), a3(), k3(), k4()]

if __name__ == "__main__":
    if len(sys.argv) > 2: Kern.prof = 0
    ks = kernels()
    print([k for k in ks if k.name == 'ffn_kernel'][0].log)
    out = sys.argv[1] if len(sys.argv) > 1 else "cur.s"
    if len(sys.argv) > 2:
        for i, k in enumerate(ks): k.prof = PROF + i * 0x100000 if k.name != 'warm_kernel' else None
    build_file(ks, out)
    for k in ks: print(k.name, "nops", k.nnops, "waits", k.nwaits)
```

```python
import sys, os
sys.path.insert(0, 'dev')
from asmlib import *
from wsmap import *
OPT = set(os.environ.get('OPT', '').split(','))
L1 = [int(c) for c in os.environ.get('L1', '23478')]
E = lambda n, d: int(os.environ.get(n, d))

def af():
    ROWS = 129024
    XR = 16; NX = 6; WB = 40; AC = 96; EP = 40; PK = 60; VV = 78
    KVS = 20480; OFL = 24576; XO = 61440; MO = XO + 10240
    SPIN = E('SPIN', 4000)
    KH = 'kh' in OPT; KB = 3200 if KH else 6400; KVB = KVH if KH else KVP
    W3 = lambda ks: 128 + 8*ks if ks < 16 else 88 + 16*(ks - 16)
    KR = lambda j: 32 + 4*j if j < 14 else 96 + 4*(j - 14)
    k = Kern("attn_kernel", vgpr=256, lds=159744, block=512, grid=256)
    SM = [int(c) if c != '-' else None for c in os.environ.get('SM', '-12-3-45-6')]
    def stamp(i):
        if SM[i] is not None: k.stamp(SM[i])
    def cnt(i):
        if SM[i] is not None and k.prof is not None:
            n = 84 + 2*SM[i]
            k(f"s_waitcnt lgkmcnt(0)\ns_sub_u32 s{n}, {SPIN}, s33\ns_mul_i32 s{n}, s{n}, 100\ns_add_u32 s{n}, s{n}, s84\ns_addc_u32 s{n+1}, s85, 0")
    k("s_cmp_ge_u32 s2, 256\ns_cbranch_scc1 af_end")
    k("s_load_dwordx2 s[12:13], s[0:1], 80\ns_load_dwordx2 s[56:57], s[0:1], 0")
    if 'a1t' in OPT: k("s_load_dwordx4 s[44:47], s[0:1], 40")
    k("v_and_b32 v1, 63, v0\nv_lshrrev_b32 v2, 6, v0\nv_readfirstlane_b32 s3, v2")
    k("v_lshlrev_b32 v5, 4, v1")
    k("s_and_b32 s4, s2, 7\ns_lshr_b32 s5, s2, 3")
    XM = E('XM', 0)
    if XM == 0:
        k("s_and_b32 s6, s4, 3\ns_lshl_b32 s6, s6, 2\ns_and_b32 s7, s5, 3\ns_add_u32 s6, s6, s7")
        k("s_lshr_b32 s7, s4, 2\ns_lshl_b32 s7, s7, 3\ns_lshr_b32 s5, s5, 2\ns_add_u32 s7, s7, s5")
    else:
        a, b = (6, 7) if XM == 1 else (7, 6)
        k(f"s_lshl_b32 s{a}, s4, 1\ns_and_b32 s{b}, s5, 1\ns_add_u32 s{a}, s{a}, s{b}\ns_lshr_b32 s{b}, s5, 1")
    k("s_lshl_b32 s8, s6, 3\ns_add_u32 s8, s8, s3")
    k(f"s_lshl_b32 s9, s3, 10\ns_mul_i32 s10, s7, 129024\ns_add_u32 s10, s10, {WF}")
    k(f"s_mul_i32 s11, s8, 18432")
    k("s_add_u32 s10, s10, s9")
    srd(k, 16, 12, WSSZ)
    LA = E('A1LA', 4); GB = E('A1GB', 2)
    st = dict(di=0, xi=0)
    def ld(upto):
        ops = []
        while st['xi'] <= min(upto, 17):
            ks = st['xi']
            while st['di'] <= (7*min(ks + 1, 17) + 6) // 8:
                di = st['di']
                ops.append((f"s_add_u32 m0, s9, {8192*di}\nbuffer_load_dwordx4 v5, s[16:19], s10 offen lds\ns_add_u32 s10, s10, 8192", f"D{di}")); st['di'] += 1
            ops.append((f"buffer_load_dwordx4 {V(XR+4*(ks%NX),4)}, v5, s[16:19], s11 offen offset:{1024*(ks%4)}" + ("\ns_add_u32 s11, s11, 4096" if ks % 4 == 3 else ""), None))
            st['xi'] += 1
        return ops
    for o, t in ld(LA - 1): k(o, tag=t)
    PRE = len(k.items)
    LT = 'lt' in OPT
    if 'a1t' in OPT and not LT:
        k("s_and_b32 s48, s3, 3\nv_lshl_add_u32 v123, v1, 2, s48\nv_mov_b32 v122, 0x40000000")
        pf13_addr(k, 127, "v123", 120, L1, 18, "v122")
        k(f"s_mul_i32 s48, s4, 1152\ns_lshr_b32 s49, s2, 3\ns_mul_i32 s49, s49, {18*9216}\ns_add_u32 s48, s48, s49")
        k("s_cmp_lt_u32 s3, 4\ns_cselect_b32 s44, s44, s46\ns_cselect_b32 s45, s45, s47\ns_mov_b32 s46, 5308416\ns_mov_b32 s47, 0x20000")
    LTP = E('LTP', 99)
    def late_touch():
        k("v_lshrrev_b32 v143, 4, v5\nv_mul_u32_u24 v140, 3, v143\nv_add_u32 v140, s3, v140\nv_subrev_u32 v140, 5, v140")
        if 'pc' in OPT: pf_code(k, "ffn_kernel", 146, 42, s3=14, vl="v143")
        if not L1: return
        pf13_addr(k, 141, "v140", 142, L1, 18, "v6")
        k(f"s_mul_i32 s14, s4, 1152\ns_lshr_b32 s15, s2, 3\ns_mul_i32 s15, s15, {18*9216}\ns_add_u32 s15, s15, s14")
        k("s_mov_b32 s76, s46\ns_mov_b32 s77, s47\ns_mov_b32 s46, 5308416\ns_mov_b32 s47, 0x20000\ns_mov_b32 s78, 5308416\ns_mov_b32 s79, 0x20000")
        k("buffer_load_dword v144, v141, s[44:47], s15 offen\nbuffer_load_dword v145, v141, s[76:79], s15 offen")
    def wt_at(pos):
        if 'wt' in OPT and E('WTS', 0) == pos:
            k(f"s_lshr_b32 s14, s2, 3\ns_mul_i32 s14, s14, {168*128}\ns_mul_i32 s36, s3, {56*128}\ns_add_u32 s14, s14, s36\ns_add_u32 s14, s14, {WOF - 5*56*128}\ns_cmp_lt_u32 s3, 5\ns_cselect_b32 s14, {INV}, s14")
            k("v_min_u32 v136, 880, v5\nv_lshlrev_b32 v136, 3, v136\nbuffer_load_dword v137, v136, s[16:19], s14 offen")
    def lt_at(pos):
        if LT and LTP == pos:
            k("s_cmp_lt_u32 s3, 5\ns_cbranch_scc1 af_nolt")
            k.skip_begin(); late_touch(); k.skip_end("af_nolt")
    wt_at(-1)
    k("v_and_b32 v3, 15, v1\nv_lshrrev_b32 v4, 4, v1\nv_mov_b32 v6, 0x40000000")
    k("s_mul_i32 s20, s3, 2304\nv_lshlrev_b32 v7, 4, v3\nv_add_u32 v7, s20, v7\nv_lshl_add_u32 v8, v4, 10, v7\nv_lshl_add_u32 v9, v4, 3, v7")
    k(f"s_mul_i32 s22, s3, 3840\ns_add_u32 s22, s22, {ROWS}\nv_mul_u32_u24 v10, 240, v3\nv_add_u32 v10, s22, v10")
    k("v_mul_u32_u24 v11, 80, v4\nv_add_u32 v11, v11, v10\nv_subrev_u32 v11, 160, v11")
    k("v_lshl_add_u32 v12, v4, 3, v10\nv_mul_u32_u24 v13, 40, v4\nv_add_u32 v13, v13, v10")
    k(f"s_mov_b32 s24, {LOG2E}\ns_mov_b32 s25, {LOG2E | 0x80000000}")
    k("s_cmp_ge_u32 s3, 3\ns_cselect_b32 s26, 1, 0\ns_mul_i32 s27, s26, 3\ns_sub_u32 s27, s3, s27")
    k(f"s_mul_i32 s28, s26, 80\ns_lshl_b32 s29, s27, 3\ns_cmp_lt_u32 s27, 2\ns_cselect_b32 s29, s29, 64\ns_cselect_b32 s30, 16, 0\ns_add_u32 s28, s28, s29\ns_add_u32 s28, s28, {ROWS}")
    k(f"s_mul_i32 s29, s26, 40\ns_add_u32 s29, s29, {ROWS+160}")
    k("v_lshrrev_b32 v7, 2, v3\nv_and_b32 v10, 3, v3\nv_lshl_add_u32 v7, v4, 3, v7\nv_mul_u32_u24 v7, 240, v7")
    k("v_mul_u32_u24 v124, s30, v10\nv_add3_u32 v124, v124, v7, s28")
    k("v_add_u32 v126, s29, v7\nv_lshl_add_u32 v125, v10, 3, v126")
    k(f"s_lshl_b32 s31, s7, 4\ns_add_u32 s31, s31, s6\ns_mul_i32 s31, s31, {KB}\ns_mul_i32 s32, s26, {KB//2}\ns_add_u32 s31, s31, s32\ns_add_u32 s31, s31, {KVB}")
    k("s_lshl_b32 s32, s27, 4\nv_lshl_add_u32 v2, v1, 5, s32")
    k("v_lshl_add_u32 v7, v3, 2, v4\nv_lshl_add_u32 v7, v7, 5, s32\nv_add_u32 v7, 2560, v7")
    k("v_xor_b32 v10, s26, v4\nv_lshl_add_u32 v10, v3, 1, v10\nv_lshlrev_b32 v10, 4, v10\nv_cmp_gt_u32 vcc, 2, v4\nv_cndmask_b32 v10, v6, v10, vcc")
    k("s_cmp_eq_u32 s27, 2\ns_cselect_b64 vcc, -1, 0\nv_add_u32 v14, 2048, v10\nv_cndmask_b32 v2, v2, v14, vcc\nv_add_u32 v14, 3072, v10\nv_cndmask_b32 v7, v7, v14, vcc")
    k("v_cmp_gt_u32 vcc, 4, v3\nv_cndmask_b32 v7, v6, v7, vcc")
    if KH: k("v_lshrrev_b32 v2, 1, v2\nv_lshrrev_b32 v7, 1, v7")
    k("s_cmp_eq_u32 s27, 2\ns_cselect_b32 s34, 0xffff, -1\ns_cselect_b32 s35, 0, -1")
    k(f"s_mul_i32 s60, s7, {16*KB}\ns_add_u32 s60, s60, {KVB}")
    if 'rot' in OPT:
        k("s_mov_b32 s59, s60")
        for j in range(16): k(f"s_add_u32 s14, s6, {j+1}\ns_and_b32 s14, s14, 15\ns_mul_i32 s14, s14, 6400\ns_add_u32 s{60+j}, s59, s14")
    else:
        for j in range(1, 16): k(f"s_add_u32 s{60+j}, s{59+j}, {KB}")
    k(f"s_mul_i32 s22, s8, 18\ns_add_u32 s23, s22, s7\ns_lshl_b32 s23, s23, 10\ns_add_u32 s23, s23, {OF}")
    k(f"s_lshr_b32 s14, s7, 3\ns_add_u32 s22, s22, s14\ns_lshl_b32 s22, s22, 10\ns_bfe_u32 s14, s7, 0x20001\ns_lshl_b32 s14, s14, 8\ns_add_u32 s22, s22, s14\ns_and_b32 s14, s7, 1\ns_lshl_b32 s14, s14, 3\ns_add_u32 s22, s22, s14\ns_add_u32 s22, s22, {OF + 16384}")
    k("s_lshl_b32 s37, s6, 2\ns_lshr_b32 s14, s7, 2\ns_add_u32 s37, s37, s14\ns_and_b32 s38, s7, 3")
    k("s_and_b32 s14, s38, 1\ns_lshl_b32 s15, s3, 1\ns_add_u32 s15, s15, s14")
    k("s_xor_b32 s39, s14, 1\ns_lshl_b32 s39, s39, 3\ns_cmp_lt_u32 s3, 4\ns_cselect_b32 s15, s15, s39")
    k("s_mul_i32 s39, s38, 9\ns_add_u32 s39, s39, s15\ns_add_u32 s40, s39, 1\ns_cmp_lt_u32 s3, 4\ns_cselect_b32 s40, s40, 36")
    k(f"s_mul_i32 s50, s39, 18432\ns_add_u32 s50, s50, {WOF}\ns_mul_i32 s51, s40, 18432\ns_add_u32 s51, s51, {WOF}")
    k(f"s_mul_i32 s52, s37, 36864\ns_mul_i32 s14, s38, 288\ns_add_u32 s53, s52, s14\ns_add_u32 s52, s52, s9\ns_add_u32 s52, s52, {OF}")
    k("s_mov_b32 s58, 2359296\ns_mov_b32 s59, 0x20000")
    FLAGS = 'fl' in OPT
    k(f"s_lshl_b32 s80, s7, 11\ns_add_u32 s80, s80, {FL0}\ns_lshl_b32 s14, s6, 7\ns_add_u32 s81, s80, s14\ns_lshl_b32 s36, s3, 2\ns_add_u32 s81, s81, s36")
    k(f"s_lshl_b32 s82, s6, 11\ns_add_u32 s82, s82, {FL1}\ns_lshl_b32 s14, s7, 7\ns_add_u32 s83, s82, s14\ns_add_u32 s83, s83, s36\ns_lshr_b32 s14, s7, 2\ns_lshl_b32 s14, s14, 3\ns_add_u32 s82, s82, s14")
    AT = 'at' in OPT
    if AT: k(f"s_lshl_b32 s80, s7, 7\ns_add_u32 s80, s80, {FL0}\ns_lshl_b32 s82, s6, 7\ns_add_u32 s82, s82, {FL1}")
    def apoll(ph, s):
        k("s_barrier")
        k(f"s_cmp_lg_u32 s3, 7\ns_cbranch_scc1 af_pd{ph}")
        k.skip_begin()
        k(f"s_mov_b64 exec, 1\nv_mov_b32 v132, 1\ns_mov_b32 s33, {SPIN}\ns_mov_b32 s14, 14")
        k.label(f"af_pl{ph}", reset=False)
        k(f"buffer_atomic_add v132, v5, s[16:19], s{s} offen sc0 sc1")
        k("v_readfirstlane_b32 s54, v132\nv_mov_b32 v132, 0\ns_cmp_ge_i32 s54, s14\ns_mov_b32 s14, 15")
        k(f"s_cbranch_scc1 af_px{ph}")
        if E('PSL', 0): k(f"s_sleep {E('PSL', 0)}")
        k(f"s_sub_u32 s33, s33, 1\ns_cmp_lt_i32 s33, 0\ns_cbranch_scc0 af_pl{ph}")
        k.label(f"af_px{ph}", reset=False)
        k("s_mov_b64 exec, -1")
        cnt(5 if ph == 0 else 8)
        k.skip_end(f"af_pd{ph}")
        k("s_barrier")
    def flag(s):
        if FLAGS: k(f"s_mov_b64 exec, 1\nbuffer_store_dword v5, v5, s[16:19], s{s} offen sc1\ns_mov_b64 exec, -1")
    def poll(ph, s):
        if AT: return apoll(ph, s)
        if not FLAGS: return
        k(f"s_cmp_lg_u32 s3, 7\ns_cbranch_scc1 af_pd{ph}")
        k.skip_begin()
        if ph == 0: k("v_lshrrev_b32 v128, 5, v5\nv_lshlrev_b32 v128, 7, v128\nv_and_b32 v129, 16, v5\nv_add_u32 v128, v128, v129\nv_cmp_gt_u32 vcc, 512, v5")
        else: k("v_lshlrev_b32 v128, 3, v5\nv_cmp_gt_u32 vcc, 256, v5\nv_mov_b32 v134, 0\nv_mov_b32 v135, 0")
        k(f"v_cndmask_b32 v128, v6, v128, vcc\ns_mov_b32 s33, {SPIN}")
        k.label(f"af_pl{ph}", reset=False)
        if E('PSL', 0): k(f"s_sleep {E('PSL', 0)}")
        k(f"buffer_load_dwordx{4 if ph == 0 else 2} {V(132, 4 if ph == 0 else 2)}, v128, s[16:19], s{s} offen sc1")
        k("v_cmp_u_f32 vcc, v132, v133\nv_cmp_u_f32_e64 s[54:55], v134, v135\ns_or_b64 vcc, vcc, s[54:55]")
        k(f"s_cbranch_scc0 af_pd{ph}\ns_sub_u32 s33, s33, 1\ns_cmp_lt_i32 s33, 0\ns_cbranch_scc0 af_pl{ph}")
        k.skip_end(f"af_pd{ph}")
        k("s_barrier")
    def reads(ks):
        out = []
        for t in range(7):
            off = (ks*7 + t) * 1024
            base = "v5" if off < 65536 else "v14"
            out.append(f"ds_read_b128 {V(WB+28*(ks%2)+4*t,4)}, {base} offset:{off % 65536}")
        return out
    def mfmas(ks):
        return [MF(V(AC+4*t, 4), V(WB+28*(ks%2)+4*t,4), V(XR+4*(ks%NX),4), V(AC+4*t, 4) if ks else "0") for t in range(7)]
    k("v_add_u32 v14, 0x10000, v5")
    def bar(upto):
        k.wait_vm(f"D{(7*min(upto, 17) + 6) // 8}"); k("s_barrier")
    wst = dict(w=0)
    def ldw(upto):
        ops = []
        while wst['w'] <= min(upto, 17):
            ks = wst['w']
            ops.append(f"buffer_load_dwordx4 {V(W3(ks),4)}, v5, s[16:19], s50 offen offset:{1024*(ks%4)}")
            ops.append(f"buffer_load_dwordx4 {V(W3(ks)+4,4)}, v5, s[16:19], s51 offen offset:{1024*(ks%4)}" + ("\ns_add_u32 s50, s50, 4096\ns_add_u32 s51, s51, 4096" if ks % 4 == 3 else ""))
            wst['w'] += 1
        return ops
    k(f"s_cmp_lt_u32 s3, 5\ns_cselect_b32 s50, s50, {INV}\ns_cselect_b32 s51, s51, {INV}")
    k(f"v_lshlrev_b32 v15, 2, v3\ns_lshl_b32 s29, s37, 7\ns_add_u32 s29, s29, {MX}")
    k("s_sub_u32 s21, s9, 5120\ns_lshr_b32 s14, s21, 4")
    for r in range(3):
        k(f"v_add_u32 v131, s14, v1\nv_add_u32 v131, {192*r}, v131\nv_mul_u32_u24 v132, 3641, v131\nv_lshrrev_b32 v132, 16, v132\nv_mul_u32_u24 v133, 18, v132\nv_sub_u32 v133, v131, v133\nv_mul_u32_u24 v132, 1152, v132\nv_lshl_add_u32 v{128+r}, v133, 4, v132")
    SF = 'sf' in OPT
    def sfill():
        for j in range(4): k(f"v_mov_b32 v{240+j}, -1")
        k(f"s_mul_i32 s14, s26, 3200\ns_sub_u32 s14, s31, s14\nv_lshlrev_b32 v244, 4, v0\nv_cmp_gt_u32 vcc, 400, v0\nv_cndmask_b32 v244, v6, v244, vcc\nv_cmp_eq_u32 vcc, 0, v4\nv_cndmask_b32 v245, v6, v5, vcc")
        k("buffer_store_dwordx4 v[240:243], v244, s[16:19], s14 offen sc1\nbuffer_store_dwordx4 v[240:243], v5, s[16:19], s23 offen sc1")
        k("buffer_store_dwordx2 v[240:241], v245, s[16:19], s22 offen sc1", tag="SF")
    if SF:
        k(f"s_cmp_eq_u32 s3, 7\ns_cselect_b32 s80, {FL0}, {INV}")
        k("s_lshl_b32 s14, s6, 7\ns_lshl_b32 s36, s7, 7\ns_add_u32 s36, s36, 4096")
        k("v_lshl_add_u32 v127, v3, 2, s14\nv_lshl_add_u32 v246, v3, 2, s36\nv_cmp_eq_u32 vcc, 1, v4\nv_cndmask_b32 v127, v127, v246, vcc\nv_cmp_gt_u32 vcc, 2, v4\nv_cndmask_b32 v127, v6, v127, vcc")
        k("s_lshl_b32 s81, s7, 2\ns_add_u32 s14, s14, s81\ns_lshl_b32 s81, s6, 2\ns_add_u32 s36, s36, s81")
        k("v_mov_b32 v246, s14\nv_mov_b32 v247, s36\nv_cmp_eq_u32 vcc, 1, v1\nv_cndmask_b32 v246, v246, v247, vcc\nv_cmp_gt_u32 vcc, 2, v1\nv_cndmask_b32 v246, v6, v246, vcc")
        if E('SFP', -1) == -1: sfill()
    SO = 'so' in OPT
    if SO:
        k(f"s_lshl_b32 s80, s6, 7\ns_add_u32 s80, s80, {KVP - 4096}\ns_lshl_b32 s81, s7, 2\ns_add_u32 s81, s81, s80\ns_cmp_eq_u32 s3, {E('SOW', 7)}\ns_cselect_b32 s81, s81, {INV}")
        k("v_lshlrev_b32 v127, 2, v1\nv_cmp_gt_u32 vcc, 16, v1\nv_cndmask_b32 v127, v6, v127, vcc")
        k("v_cmp_eq_u32 vcc, 0, v4\nv_cndmask_b32 v245, v6, v5, vcc")
        for j in range(4): k(f"v_mov_b32 v{240+j}, -1")
    k("buffer_load_dword v1, v15, s[16:19], s29 offen\nbuffer_load_dword v15, v15, s[16:19], s29 offen offset:64")
    bar(0)
    stamp(0)
    for o in reads(0): k(o)
    WS = E('W3S', 14)
    for ks in range(18):
        if SF and ks == E('SFF', 2): k.wait_vm("SF")
        if ks % GB == 0 and ks + 1 < 18: bar(ks + GB)
        if SF and ks == E('SFF', 2):
            assert ks % GB == 0 and ks > E('SFP', -1)
            k("buffer_store_dword v246, v246, s[16:19], s80 offen sc1")
        if SF and ks == E('SFP', -1): sfill()
        if SO and ks == E('SOP', 14):
            k("buffer_store_dwordx4 v[240:243], v5, s[16:19], s23 offen sc1")
            k("buffer_store_dwordx2 v[240:241], v245, s[16:19], s22 offen sc1", tag="SF")
        if ks == E('A1T', 16) and 'a1t' in OPT and not LT: k("buffer_load_dword v255, v127, s[44:47], s48 offen")
        if ks == E('PCS', 15) and 'pc' in OPT and not LT: pf_code(k, "ffn_kernel", 253, 42, s3=14)
        if ks == E('XS', 14):
            k("s_cmp_lt_u32 s3, 5\ns_cbranch_scc1 af_nox")
            k.skip_begin()
            for r in range(3): k(f"s_add_u32 m0, s21, {XO + 3072*r}\nbuffer_load_dwordx4 v{128+r}, s[56:59], s53 offen lds")
            k.skip_end("af_nox")
        lt_at(ks); wt_at(ks)
        R = reads(ks + 1) if ks + 1 < 18 else []
        L = ld(ks + LA)
        if ks >= WS: L += [(o, None) for o in ldw(min(15, (ks - WS + 1) * E('W3N', 2) - 1))]
        M = mfmas(ks)
        for o in R[:2]: k(o)
        R = R[2:]
        for i, m in enumerate(M):
            k(m)
            if R: k(R.pop(0))
            if L and i >= 2: o, t = L.pop(0); k(o, tag=t)
        for o, t in L: k(o, tag=t)
    stamp(1)
    sfl = "buffer_load_dword v14, v127, s[16:19], s80 offen sc1"
    if SF: k(sfl)
    WL = ldw(17)
    done = 36 - len(WL)
    WA = E('W3A', 34); WBn = E('W3B', 36)
    na = WA - done; slot = [0, 0]
    def wdrip():
        slot[0] += 1
        while slot[1] < na and slot[1] * 43 < slot[0] * na: k(WL.pop(0)); slot[1] += 1
    A = lambda i: f"v{AC+i}"
    k(f"v_cvt_pk_bf16_f32 v{VV}, {A(20)}, {A(21)}\nv_cvt_pk_bf16_f32 v{VV+1}, {A(22)}, {A(23)}\nv_cvt_pk_bf16_f32 v{VV+2}, {A(24)}, {A(25)}\nv_cvt_pk_bf16_f32 v{VV+3}, {A(26)}, {A(27)}")
    k(f"v_cvt_pk_bf16_f32 v{VV+4}, {A(18)}, {A(19)}\nv_mov_b32 v{VV+5}, 0x3f80")
    k(f"ds_write_b64 v12, {V(VV,2)} offset:160\nds_write_b64 v12, {V(VV+2,2)} offset:200")
    k(f"s_mov_b64 exec, 0xffffffff\nds_write_b64 v13, {V(VV+4,2)} offset:192\ns_mov_b64 exec, -1")
    k(f"v_max3_f32 v84, {A(0)}, {A(1)}, {A(2)}\nv_min3_f32 v85, {A(0)}, {A(1)}, {A(2)}")
    for j in range(7): k(f"v_max3_f32 v84, v84, {A(3+2*j)}, {A(4+2*j)}\nv_min3_f32 v85, v85, {A(3+2*j)}, {A(4+2*j)}"); wdrip()
    k(f"v_max_f32 v84, v84, {A(17)}\nv_min_f32 v85, v85, {A(17)}")
    k("v_mul_f32 v86, s25, v84\nv_mul_f32 v87, s24, v85")
    for f in range(18):
        k(f"v_fma_f32 v{EP+f}, {A(f)}, s24, v86\nv_fma_f32 {A(f)}, {A(f)}, s25, v87")
        k(f"v_exp_f32 v{EP+f}, v{EP+f}\nv_exp_f32 {A(f)}, {A(f)}")
        if f == 1: k(f"v_add_f32 v84, v{EP}, v{EP+1}\nv_add_f32 v85, {A(0)}, {A(1)}")
        if f >= 2: k(f"v_add_f32 v84, v84, v{EP+f}\nv_add_f32 v85, v85, {A(f)}")
        wdrip()
    k("v_rcp_f32 v84, v84\nv_rcp_f32 v85, v85")
    for j in range(9):
        k(f"v_mul_f32 v{EP+2*j}, v{EP+2*j}, v84\nv_mul_f32 v{EP+1+2*j}, v{EP+1+2*j}, v84\nv_cvt_pk_bf16_f32 v{PK+j}, v{EP+2*j}, v{EP+1+2*j}"); wdrip()
    for j in range(9):
        k(f"v_mul_f32 {A(2*j)}, {A(2*j)}, v85\nv_mul_f32 {A(2*j+1)}, {A(2*j+1)}, v85\nv_cvt_pk_bf16_f32 v{PK+9+j}, {A(2*j)}, {A(2*j+1)}"); wdrip()
    assert slot[1] == max(na, 0) and WA <= 34
    k("s_mov_b32 exec_lo, 0")
    for j in range(4): k(f"ds_write_b128 v11, {V(PK+4*j,4)} offset:{16*j}")
    k(f"ds_write_b64 v11, {V(PK+16,2)} offset:64")
    k("s_mov_b32 exec_lo, -1\ns_mov_b32 exec_hi, 0")
    if SO: k.wait_vm("SF")
    k.wait_all(vm=False); k("s_barrier")
    if SO: k("s_mov_b32 exec_lo, 1\nbuffer_store_dword v5, v5, s[16:19], s81 offen sc1\ns_mov_b32 exec_lo, -1")
    for j in range(4): k(f"ds_write_b128 v8, {V(PK+4*j,4)} offset:{256*j}")
    k(f"ds_write_b64 v9, {V(PK+16,2)} offset:2048")
    k("s_mov_b64 exec, -1")
    stamp(2)
    k("s_cmp_ge_u32 s3, 6\ns_cbranch_scc1 af_nokv")
    k.skip_begin()
    FA, FB, FX, C0 = 16, 40, 56, 32
    for s in range(4):
        for h in range(2):
            o = (32*s + 4*h) * 240
            k(f"ds_read_b64_tr_b16 {V(FA+4*s+2*h,2)}, v124 offset:{o}\nds_read_b64_tr_b16 {V(FB+4*s+2*h,2)}, v125 offset:{o}\nds_read_b64_tr_b16 {V(FX+4*s+2*h,2)}, v126 offset:{o+32}")
    for s in range(4):
        k(MF(V(C0,4), V(FA+4*s,4), V(FB+4*s,4), V(C0,4) if s else "0"))
        k(MF(V(C0+4,4), V(FA+4*s,4), V(FX+4*s,4), V(C0+4,4) if s else "0"))
    for j in range(4): k(f"v_cndmask_b32_e64 v{C0+j}, 0, v{C0+j}, s[34:35]")
    pk = lambda c: f"v_cvt_pk_bf16_f32 v{c}, v{c}, v{c+1}\nv_cvt_pk_bf16_f32 v{c+1}, v{c+2}, v{c+3}\n"
    if KH: k(pk(C0) + f"buffer_store_dwordx2 {V(C0,2)}, v2, s[16:19], s31 offen sc1")
    else: k(f"buffer_store_dwordx4 {V(C0,4)}, v2, s[16:19], s31 offen sc1")
    for j in range(4, 8): k(f"v_cndmask_b32_e64 v{C0+j}, 0, v{C0+j}, s[34:35]")
    if KH: k(pk(C0+4) + f"buffer_store_dwordx2 {V(C0+4,2)}, v7, s[16:19], s31 offen sc1")
    else: k(f"buffer_store_dwordx4 {V(C0+4,4)}, v7, s[16:19], s31 offen sc1")
    k.skip_end("af_nokv")
    k.wait_all(vm=False)
    k(f"v_lshlrev_b32 v7, {3 if KH else 4}, v0\nv_cmp_gt_u32 vcc, 400, v0\nv_cndmask_b32 v7, v6, v7, vcc")
    flag(81)
    while 36 - len(WL) < WBn: k(WL.pop(0))
    poll(0, 80)
    if SF:
        assert 'kb' in OPT and LT
        k(f"s_mov_b32 s33, {SPIN}\nv_cmp_eq_u32 vcc, -1, v14\ns_cmp_lg_u64 vcc, 0\ns_cbranch_scc1 af_sfslow")
        k.label("af_sfgo", reset=False)
    if 'kb' in OPT: k('s_barrier')
    if E('KVD', 0): k(f"s_sleep {E('KVD', 0)}")
    kvl = lambda j: f"buffer_load_dwordx{2 if KH else 4} {V(KR(j),2 if KH else 4)}, v7, s[16:19], s{60+j} offen sc1"
    for j in range(16): k(kvl(j).replace(" sc1", os.environ.get('KVM', ' sc1')))
    k("v_add_u32 v10, s20, v5\nv_lshlrev_b32 v11, 4, v3\nv_add_u32 v11, s20, v11")
    k("ds_read_b128 v[16:19], v10\nds_read_b128 v[20:23], v10 offset:1024\nds_read_b128 v[24:27], v11 offset:2048")
    k("v_cmp_eq_u32 vcc, 0, v4\nv_cndmask_b32 v8, v6, v5, vcc")
    k("v_mov_b32 v9, 1472\nv_add_u32 v10, 1024, v5\nv_cndmask_b32 v10, v9, v10, vcc")
    k("v_and_b32 v11, 3, v3\nv_lshl_add_u32 v12, v11, 2, v4\nv_lshlrev_b32 v12, 4, v12\nv_lshlrev_b32 v11, 4, v11\nv_add_u32 v11, 1536, v11\nv_cndmask_b32 v11, v9, v11, vcc")
    k("v_lshlrev_b32 v13, 3, v0")
    k(f"s_mov_b32 s33, {SPIN}")
    def ksum():
        if KH:
            k("s_mov_b32 s54, 0x3f80\ns_mov_b32 s55, 0x3f800000")
            for j in range(16):
                for i in range(4): k(f"v_dot2_f32_bf16 v{28+i}, v{KR(j)+i//2}, s{54+i%2}, " + (f"v{28+i}" if j else "0"))
            k("s_nop 2\nv_cmp_u_f32 vcc, v28, v30\ns_cmp_lg_u64 vcc, 0")
            return
        k("v_pk_add_f32 v[28:29], v[32:33], v[36:37]\nv_pk_add_f32 v[30:31], v[34:35], v[38:39]")
        for j in range(2, 16): k(f"v_pk_add_f32 v[28:29], v[28:29], {V(KR(j),2)}\nv_pk_add_f32 v[30:31], v[30:31], {V(KR(j)+2,2)}")
        k("v_cmp_u_f32 vcc, v28, v29\nv_cmp_u_f32_e64 s[54:55], v30, v31\ns_or_b64 vcc, vcc, s[54:55]")
    ksum()
    stamp(3)
    k("s_cbranch_scc1 af_kvslow")
    k.label("af_kvgo", reset=False)
    sol = "buffer_load_dword v14, v127, s[16:19], s80 offen sc1"
    if SO: k(sol)
    k(f"v_cvt_pk_bf16_f32 v28, v28, v29\nv_cvt_pk_bf16_f32 v29, v30, v31\nds_write_b64 v13, v[28:29] offset:{KVS}")
    stamp(4)
    if not AT: cnt(5)
    k.wait_all(vm=False); k("s_barrier")
    for hh in range(2):
        b = 40 + 16*hh; o = 1600*hh + KVS
        k(f"ds_read_b128 {V(b,4)}, v5 offset:{o}\nds_read_b128 {V(b+4,4)}, v12 offset:{o+1280}\nds_read_b128 {V(b+8,4)}, v10 offset:{o}\nds_read_b128 {V(b+12,4)}, v11 offset:{o}")
    for hh in range(2):
        b = 40 + 16*hh; c = 72 + 8*hh; pq = V(16+4*hh, 4)
        k(MF(V(c,4), V(b,4), pq, "0")); k(MF(V(c+4,4), V(b+4,4), pq, "0"))
    for hh in range(2):
        b = 40 + 16*hh; c = 72 + 8*hh
        k(MF(V(c+4,4), V(b+12,4), "v[24:27]", V(c+4,4))); k(MF(V(c,4), V(b+8,4), "v[24:27]", V(c,4)))
    for hh in range(2):
        c = 72 + 8*hh
        bf16r(k, f"v{c+6}", f"v{c+6}")
        k(f"v_add_f32 v{c+6}, 0x358637bd, v{c+6}")
        bf16r(k, f"v{c+6}", f"v{c+6}")
        k(f"v_rcp_f32 v{c+6}, v{c+6}")
    for hh in range(2):
        c = 72 + 8*hh
        for j in range(6): k(f"v_mul_f32 v{c+j}, v{c+j}, v{c+6}")
        k(f"v_cvt_pk_bf16_f32 v{96+2*hh}, v{c}, v{c+1}\nv_cvt_pk_bf16_f32 v{97+2*hh}, v{c+2}, v{c+3}\nv_cvt_pk_bf16_f32 v{100+hh}, v{c+4}, v{c+5}")
    k("buffer_store_dwordx4 v[96:99], v5, s[16:19], s23 offen sc1\nbuffer_store_dwordx2 v[100:101], v8, s[16:19], s22 offen sc1")
    flag(83)
    for i in range(1, 5): k(f"s_add_u32 s{60+i}, s52, {8192*i}")
    k(f"s_mov_b32 s60, s52\ns_cmp_lt_u32 s3, 4\ns_cselect_b32 s64, s64, {INV}")
    while WL: k(WL.pop(0))
    poll(1, 82)
    if 'ob' in OPT: k('s_barrier')
    if E('OFD', 0): k(f"s_sleep {E('OFD', 0)}")
    if SO:
        k(f"s_mov_b32 s33, {SPIN}\nv_cmp_eq_u32 vcc, -1, v14\ns_cmp_lg_u64 vcc, 0\ns_cbranch_scc1 af_soslow")
        k.label("af_sogo", reset=False)
    ofl = lambda i: f"buffer_load_dwordx4 {V(56+4*i,4)}, v5, s[16:19], s{60+i} offen sc1"
    for i in range(5): k(ofl(i).replace(" sc1", os.environ.get('OFM', ' sc1')))
    k(f"v_add_u32 v10, s9, v5")
    k(f"v_mul_u32_u24 v14, 288, v3\nv_lshl_add_u32 v14, v4, 3, v14\ns_lshl_b32 s30, s15, 5\ns_add_u32 s30, s30, {XO}\nv_add_u32 v14, s30, v14")
    k(f"v_lshlrev_b32 v11, 2, v3\nv_add_u32 v9, {MO}, v11")
    k(f"s_mul_i32 s32, s37, 36\ns_lshr_b32 s14, s39, 1\ns_add_u32 s32, s32, s14\ns_lshl_b32 s32, s32, 10\ns_add_u32 s28, s32, {HR}\ns_add_u32 s32, s32, {HC}")
    k("s_add_u32 s34, s32, 18432\ns_add_u32 s35, s28, 18432")
    k(f"s_mov_b32 s31, 0xffff0000\ns_mov_b32 s33, {SPIN}")
    def ochk():
        for i in range(5):
            k(f"v_cmp_u_f32_e64 s[{66+2*i}:{67+2*i}], v{56+4*i}, v{57+4*i}\nv_cmp_u_f32 vcc, v{58+4*i}, v{59+4*i}\ns_or_b64 s[{66+2*i}:{67+2*i}], s[{66+2*i}:{67+2*i}], vcc")
        k("s_or_b64 vcc, s[66:67], s[68:69]\ns_or_b64 s[54:55], s[70:71], s[72:73]\ns_or_b64 vcc, vcc, s[74:75]\ns_or_b64 vcc, vcc, s[54:55]")
    ochk()
    stamp(6)
    k("s_cbranch_scc1 af_ofslow")
    k.label("af_ofgo", reset=False)
    for i in range(4): k(f"ds_write_b128 v10, {V(56+4*i,4)} offset:{OFL + 8192*i}")
    k("s_cmp_ge_u32 s3, 4\ns_cbranch_scc1 af_no5")
    k(f"ds_write_b128 v10, v[72:75] offset:{OFL + 32768}")
    k.label("af_no5", reset=False)
    stamp(7)
    if not AT: cnt(8)
    k("s_waitcnt vmcnt(0) lgkmcnt(0)\ns_barrier")
    k("s_cmp_ge_u32 s3, 5\ns_cbranch_scc1 " + ("af_lt" if LT and LTP == 99 else "af_end"))
    def rd(ks):
        k(f"ds_read_b128 {V(16+8*(ks%3),4)}, v5 offset:{OFL + ks*1024}\nds_read_b128 {V(20+8*(ks%3),4)}, v5 offset:{OFL + (18+ks)*1024}")
    rd(0); rd(1)
    for ks in range(18):
        if ks + 2 < 18: rd(ks + 2)
        if ks == 16:
            for tt in range(2):
                for t in range(2): k(f"ds_read_b64 {V(76+4*tt+2*t,2)}, v14 offset:{tt*4608+32*t}")
        for t in (1, 0):
            for tt in range(2):
                c = V(40 + 8*tt + 4*t, 4)
                k(MF(c, V(W3(ks)+4*t,4), V(16+8*(ks%3)+4*tt,4), c if ks else "0"))
    stamp(9)
    k("s_cmp_lt_u32 s3, 4\ns_cbranch_scc1 af_nomean")
    k.skip_begin()
    for tt in range(2):
        k(f"v_add_f32 v{44+8*tt}, v{44+8*tt}, v{45+8*tt}\nv_add_f32 v{44+8*tt}, v{44+8*tt}, v{(1, 15)[tt]}")
        bf16r(k, f"v{44+8*tt}", f"v{44+8*tt}")
    k("s_mov_b64 exec, 0xffff\nds_write_b32 v9, v44\nds_write_b32 v9, v52 offset:64\ns_mov_b64 exec, -1")
    k.wait_all(vm=False)
    k.skip_end("af_nomean")
    for tt in range(2):
        for t in range(2):
            for hf in range(2):
                c = 40 + 8*tt + 4*t + 2*hf; xr = 76 + 4*tt + 2*t + hf; ho = 96 + 4*tt + 2*t + hf
                k(f"v_cvt_pk_bf16_f32 v{c+1}, v{c}, v{c+1}\nv_lshlrev_b32 v{c}, 16, v{c+1}\nv_and_b32 v{c+1}, s31, v{c+1}")
                k(f"v_lshlrev_b32 v120, 16, v{xr}\nv_and_b32 v121, s31, v{xr}\nv_add_f32 v{c}, v{c}, v120\nv_add_f32 v{c+1}, v{c+1}, v121")
                k(f"v_cvt_pk_bf16_f32 v{ho}, v{c}, v{c+1}\nv_lshlrev_b32 v{c}, 16, v{ho}\nv_and_b32 v{c+1}, s31, v{ho}")
    k("s_barrier")
    k("ds_read_b32 v12, v9\nds_read_b32 v13, v9 offset:64")
    k("s_cmp_lt_u32 s3, 4\ns_cbranch_scc0 af_single")
    k.skip_begin()
    k("buffer_store_dwordx4 v[96:99], v5, s[16:19], s28 offen\nbuffer_store_dwordx4 v[100:103], v5, s[16:19], s35 offen")
    def hc(tt, ts):
        for t in ts:
            for hf in range(2):
                c = 40 + 8*tt + 4*t + 2*hf; co = 112 + 4*tt + 2*t + hf
                k(f"v_sub_f32 v{c}, v{c}, v{12+tt}\nv_sub_f32 v{c+1}, v{c+1}, v{12+tt}\nv_cvt_pk_bf16_f32 v{co}, v{c}, v{c+1}")
    hc(0, (0, 1)); k("buffer_store_dwordx4 v[112:115], v5, s[16:19], s32 offen")
    hc(1, (0, 1)); k("buffer_store_dwordx4 v[116:119], v5, s[16:19], s34 offen")
    k("s_endpgm")
    k.skip_end("af_single")
    k("s_and_b32 s14, s39, 1\ns_lshl_b32 s14, s14, 3\nv_add_u32 v10, s14, v5\ns_nop 1")
    k("buffer_store_dwordx2 v[96:97], v10, s[16:19], s28 offen\nbuffer_store_dwordx2 v[100:101], v10, s[16:19], s35 offen")
    hc(0, (0,)); hc(1, (0,))
    k("buffer_store_dwordx2 v[112:113], v10, s[16:19], s32 offen\nbuffer_store_dwordx2 v[116:117], v10, s[16:19], s34 offen")
    k.label("af_end")
    k("s_endpgm")
    if LT and LTP == 99:
        k.label("af_lt")
        late_touch()
        k("s_endpgm 0")
    if SF:
        k.label("af_sfslow")
        k("s_sub_u32 s33, s33, 1\ns_cmp_lt_i32 s33, 0\ns_cbranch_scc1 af_sfgo\ns_sleep 4")
        k(sfl + "\ns_waitcnt vmcnt(0)\nv_cmp_eq_u32 vcc, -1, v14\ns_cmp_lg_u64 vcc, 0\ns_cbranch_scc1 af_sfslow\ns_branch af_sfgo")
    if SO:
        k.label("af_soslow")
        k("s_sub_u32 s33, s33, 1\ns_cmp_lt_i32 s33, 0\ns_cbranch_scc1 af_sogo\ns_sleep 4")
        k(sol + "\ns_waitcnt vmcnt(0)\nv_cmp_eq_u32 vcc, -1, v14\ns_cmp_lg_u64 vcc, 0\ns_cbranch_scc1 af_soslow\ns_branch af_sogo")
    k.label("af_kvslow")
    k("s_sub_u32 s33, s33, 1\ns_cmp_lt_i32 s33, 0\ns_cbranch_scc1 af_kvgo")
    for j in range(16):
        if KH: k(f"v_cmp_u_f32 vcc, v{KR(j)}, v{KR(j)+1}\ns_cmp_lg_u64 vcc, 0\ns_cbranch_scc0 af_kv{j}")
        else: k(f"v_cmp_u_f32 vcc, v{KR(j)}, v{KR(j)+1}\nv_cmp_u_f32_e64 s[54:55], v{KR(j)+2}, v{KR(j)+3}\ns_or_b64 vcc, vcc, s[54:55]\ns_cbranch_scc0 af_kv{j}")
        k(kvl(j))
        k.label(f"af_kv{j}")
    k("s_waitcnt vmcnt(0)")
    ksum()
    k("s_cbranch_scc1 af_kvslow\ns_branch af_kvgo")
    k.label("af_ofslow")
    k("s_sub_u32 s33, s33, 1\ns_cmp_lt_i32 s33, 0\ns_cbranch_scc1 af_ofgo")
    for i in range(5):
        k(f"s_cmp_eq_u64 s[{66+2*i}:{67+2*i}], 0\ns_cbranch_scc1 af_of{i}")
        k(ofl(i))
        k.label(f"af_of{i}")
    k("s_waitcnt vmcnt(0)")
    ochk()
    k("s_cbranch_scc1 af_ofslow\ns_branch af_ofgo")
    return k
```

```python
import sys, os
sys.path.insert(0, 'dev')
from asmlib import *
from wsmap import *
OPT = set(os.environ.get('OPT', '').split(','))
L1 = [int(c) for c in os.environ.get('L1', '23478')]
E = lambda n, d: int(os.environ.get(n, d))

def af():
    ROWS = 129024
    XR = 16; NX = 6; WB = 40; AC = 96; EP = 40; PK = 60; VV = 78
    KVS = 20480; OFL = 24576; XO = 61440; MO = XO + 10240
    SPIN = E('SPIN', 4000)
    KH = 'kh' in OPT; KB = 3200 if KH else 6400; KVB = KVH if KH else KVP
    W3 = lambda ks: 128 + 8*ks if ks < 16 else 88 + 16*(ks - 16)
    KR = lambda j: 32 + 4*j if j < 14 else 96 + 4*(j - 14)
    k = Kern("attn_kernel", vgpr=256, lds=159744, block=512, grid=256)
    SM = [int(c) if c != '-' else None for c in os.environ.get('SM', '-12-3-45-6')]
    def stamp(i):
        if SM[i] is not None: k.stamp(SM[i])
    def cnt(i):
        if SM[i] is not None and k.prof is not None:
            n = 84 + 2*SM[i]
            k(f"s_waitcnt lgkmcnt(0)\ns_sub_u32 s{n}, {SPIN}, s33\ns_mul_i32 s{n}, s{n}, 100\ns_add_u32 s{n}, s{n}, s84\ns_addc_u32 s{n+1}, s85, 0")
    k("s_cmp_ge_u32 s2, 256\ns_cbranch_scc1 af_end")
    k("s_load_dwordx2 s[12:13], s[0:1], 80\ns_load_dwordx2 s[56:57], s[0:1], 0")
    if 'a1t' in OPT: k("s_load_dwordx4 s[44:47], s[0:1], 40")
    k("v_and_b32 v1, 63, v0\nv_lshrrev_b32 v2, 6, v0\nv_readfirstlane_b32 s3, v2")
    k("v_lshlrev_b32 v5, 4, v1")
    k("s_and_b32 s4, s2, 7\ns_lshr_b32 s5, s2, 3")
    XM = E('XM', 0)
    if XM == 0:
        k("s_and_b32 s6, s4, 3\ns_lshl_b32 s6, s6, 2\ns_and_b32 s7, s5, 3\ns_add_u32 s6, s6, s7")
        k("s_lshr_b32 s7, s4, 2\ns_lshl_b32 s7, s7, 3\ns_lshr_b32 s5, s5, 2\ns_add_u32 s7, s7, s5")
    else:
        a, b = (6, 7) if XM == 1 else (7, 6)
        k(f"s_lshl_b32 s{a}, s4, 1\ns_and_b32 s{b}, s5, 1\ns_add_u32 s{a}, s{a}, s{b}\ns_lshr_b32 s{b}, s5, 1")
    k("s_lshl_b32 s8, s6, 3\ns_add_u32 s8, s8, s3")
    k(f"s_lshl_b32 s9, s3, 10\ns_mul_i32 s10, s7, 129024\ns_add_u32 s10, s10, {WF}")
    k(f"s_mul_i32 s11, s8, 18432")
    k("s_add_u32 s10, s10, s9")
    srd(k, 16, 12, WSSZ)
    LA = E('A1LA', 4); GB = E('A1GB', 2)
    st = dict(di=0, xi=0)
    def ld(upto):
        ops = []
        while st['xi'] <= min(upto, 17):
            ks = st['xi']
            while st['di'] <= (7*min(ks + 1, 17) + 6) // 8:
                di = st['di']
                ops.append((f"s_add_u32 m0, s9, {8192*di}\nbuffer_load_dwordx4 v5, s[16:19], s10 offen lds\ns_add_u32 s10, s10, 8192", f"D{di}")); st['di'] += 1
            ops.append((f"buffer_load_dwordx4 {V(XR+4*(ks%NX),4)}, v5, s[16:19], s11 offen offset:{1024*(ks%4)}" + ("\ns_add_u32 s11, s11, 4096" if ks % 4 == 3 else ""), None))
            st['xi'] += 1
        return ops
    for o, t in ld(LA - 1): k(o, tag=t)
    PRE = len(k.items)
    LT = 'lt' in OPT
    if 'a1t' in OPT and not LT:
        k("s_and_b32 s48, s3, 3\nv_lshl_add_u32 v123, v1, 2, s48\nv_mov_b32 v122, 0x40000000")
        pf13_addr(k, 127, "v123", 120, L1, 18, "v122")
        k(f"s_mul_i32 s48, s4, 1152\ns_lshr_b32 s49, s2, 3\ns_mul_i32 s49, s49, {18*9216}\ns_add_u32 s48, s48, s49")
        k("s_cmp_lt_u32 s3, 4\ns_cselect_b32 s44, s44, s46\ns_cselect_b32 s45, s45, s47\ns_mov_b32 s46, 5308416\ns_mov_b32 s47, 0x20000")
    LTP = E('LTP', 99)
    def late_touch():
        k("v_lshrrev_b32 v143, 4, v5\nv_mul_u32_u24 v140, 3, v143\nv_add_u32 v140, s3, v140\nv_subrev_u32 v140, 5, v140")
        if 'pc' in OPT: pf_code(k, "ffn_kernel", 146, 42, s3=14, vl="v143")
        if not L1: return
        pf13_addr(k, 141, "v140", 142, L1, 18, "v6")
        k(f"s_mul_i32 s14, s4, 1152\ns_lshr_b32 s15, s2, 3\ns_mul_i32 s15, s15, {18*9216}\ns_add_u32 s15, s15, s14")
        k("s_mov_b32 s76, s46\ns_mov_b32 s77, s47\ns_mov_b32 s46, 5308416\ns_mov_b32 s47, 0x20000\ns_mov_b32 s78, 5308416\ns_mov_b32 s79, 0x20000")
        k("buffer_load_dword v144, v141, s[44:47], s15 offen\nbuffer_load_dword v145, v141, s[76:79], s15 offen")
    def wt_at(pos):
        if 'wt' in OPT and E('WTS', 0) == pos:
            k(f"s_lshr_b32 s14, s2, 3\ns_mul_i32 s14, s14, {168*128}\ns_mul_i32 s36, s3, {56*128}\ns_add_u32 s14, s14, s36\ns_add_u32 s14, s14, {WOF - 5*56*128}\ns_cmp_lt_u32 s3, 5\ns_cselect_b32 s14, {INV}, s14")
            k("v_min_u32 v136, 880, v5\nv_lshlrev_b32 v136, 3, v136\nbuffer_load_dword v137, v136, s[16:19], s14 offen")
    def lt_at(pos):
        if LT and LTP == pos:
            k("s_cmp_lt_u32 s3, 5\ns_cbranch_scc1 af_nolt")
            k.skip_begin(); late_touch(); k.skip_end("af_nolt")
    wt_at(-1)
    k("v_and_b32 v3, 15, v1\nv_lshrrev_b32 v4, 4, v1\nv_mov_b32 v6, 0x40000000")
    k("s_mul_i32 s20, s3, 2304\nv_lshlrev_b32 v7, 4, v3\nv_add_u32 v7, s20, v7\nv_lshl_add_u32 v8, v4, 10, v7\nv_lshl_add_u32 v9, v4, 3, v7")
    k(f"s_mul_i32 s22, s3, 3840\ns_add_u32 s22, s22, {ROWS}\nv_mul_u32_u24 v10, 240, v3\nv_add_u32 v10, s22, v10")
    k("v_mul_u32_u24 v11, 80, v4\nv_add_u32 v11, v11, v10\nv_subrev_u32 v11, 160, v11")
    k("v_lshl_add_u32 v12, v4, 3, v10\nv_mul_u32_u24 v13, 40, v4\nv_add_u32 v13, v13, v10")
    k(f"s_mov_b32 s24, {LOG2E}\ns_mov_b32 s25, {LOG2E | 0x80000000}")
    k("s_cmp_ge_u32 s3, 3\ns_cselect_b32 s26, 1, 0\ns_mul_i32 s27, s26, 3\ns_sub_u32 s27, s3, s27")
    k(f"s_mul_i32 s28, s26, 80\ns_lshl_b32 s29, s27, 3\ns_cmp_lt_u32 s27, 2\ns_cselect_b32 s29, s29, 64\ns_cselect_b32 s30, 16, 0\ns_add_u32 s28, s28, s29\ns_add_u32 s28, s28, {ROWS}")
    k(f"s_mul_i32 s29, s26, 40\ns_add_u32 s29, s29, {ROWS+160}")
    k("v_lshrrev_b32 v7, 2, v3\nv_and_b32 v10, 3, v3\nv_lshl_add_u32 v7, v4, 3, v7\nv_mul_u32_u24 v7, 240, v7")
    k("v_mul_u32_u24 v124, s30, v10\nv_add3_u32 v124, v124, v7, s28")
    k("v_add_u32 v126, s29, v7\nv_lshl_add_u32 v125, v10, 3, v126")
    k(f"s_lshl_b32 s31, s7, 4\ns_add_u32 s31, s31, s6\ns_mul_i32 s31, s31, {KB}\ns_mul_i32 s32, s26, {KB//2}\ns_add_u32 s31, s31, s32\ns_add_u32 s31, s31, {KVB}")
    KC = 'kc' in OPT; OC = 'oc' in OPT
    if KC:
        k("s_lshl_b32 s32, s27, 10\nv_lshl_add_u32 v2, v1, 4, s32")
        k("s_lshl_b32 s32, s27, 8\nv_lshl_add_u32 v7, v3, 2, v4\nv_lshl_add_u32 v7, v7, 4, s32\nv_add_u32 v7, 2560, v7")
    else:
        k("s_lshl_b32 s32, s27, 4\nv_lshl_add_u32 v2, v1, 5, s32")
        k("v_lshl_add_u32 v7, v3, 2, v4\nv_lshl_add_u32 v7, v7, 5, s32\nv_add_u32 v7, 2560, v7")
    k("v_xor_b32 v10, s26, v4\nv_lshl_add_u32 v10, v3, 1, v10\nv_lshlrev_b32 v10, 4, v10\nv_cmp_gt_u32 vcc, 2, v4\nv_cndmask_b32 v10, v6, v10, vcc")
    k("s_cmp_eq_u32 s27, 2\ns_cselect_b64 vcc, -1, 0\nv_add_u32 v14, 2048, v10\nv_cndmask_b32 v2, v2, v14, vcc\nv_add_u32 v14, 3072, v10\nv_cndmask_b32 v7, v7, v14, vcc")
    k("v_cmp_gt_u32 vcc, 4, v3\nv_cndmask_b32 v7, v6, v7, vcc")
    if KH: k("v_lshrrev_b32 v2, 1, v2\nv_lshrrev_b32 v7, 1, v7")
    k("s_cmp_eq_u32 s27, 2\ns_cselect_b32 s34, 0xffff, -1\ns_cselect_b32 s35, 0, -1")
    k(f"s_mul_i32 s60, s7, {16*KB}\ns_add_u32 s60, s60, {KVB}")
    if 'rot' in OPT:
        k("s_mov_b32 s59, s60")
        for j in range(16): k(f"s_add_u32 s14, s6, {j+1}\ns_and_b32 s14, s14, 15\ns_mul_i32 s14, s14, 6400\ns_add_u32 s{60+j}, s59, s14")
    else:
        for j in range(1, 16): k(f"s_add_u32 s{60+j}, s{59+j}, {KB}")
    k(f"s_mul_i32 s22, s8, 18\ns_add_u32 s23, s22, s7\ns_lshl_b32 s23, s23, 10\ns_add_u32 s23, s23, {OF}")
    k(f"s_lshr_b32 s14, s7, 3\ns_add_u32 s22, s22, s14\ns_lshl_b32 s22, s22, 10\ns_bfe_u32 s14, s7, 0x20001\ns_lshl_b32 s14, s14, 8\ns_add_u32 s22, s22, s14\ns_and_b32 s14, s7, 1\ns_lshl_b32 s14, s14, {7 if OC else 3}\ns_add_u32 s22, s22, s14\ns_add_u32 s22, s22, {OF + 16384}")
    k("s_lshl_b32 s37, s6, 2\ns_lshr_b32 s14, s7, 2\ns_add_u32 s37, s37, s14\ns_and_b32 s38, s7, 3")
    k("s_and_b32 s14, s38, 1\ns_lshl_b32 s15, s3, 1\ns_add_u32 s15, s15, s14")
    k("s_xor_b32 s39, s14, 1\ns_lshl_b32 s39, s39, 3\ns_cmp_lt_u32 s3, 4\ns_cselect_b32 s15, s15, s39")
    k("s_mul_i32 s39, s38, 9\ns_add_u32 s39, s39, s15\ns_add_u32 s40, s39, 1\ns_cmp_lt_u32 s3, 4\ns_cselect_b32 s40, s40, 36")
    k(f"s_mul_i32 s50, s39, 18432\ns_add_u32 s50, s50, {WOF}\ns_mul_i32 s51, s40, 18432\ns_add_u32 s51, s51, {WOF}")
    k(f"s_mul_i32 s52, s37, 36864\ns_mul_i32 s14, s38, 288\ns_add_u32 s53, s52, s14\ns_add_u32 s52, s52, s9\ns_add_u32 s52, s52, {OF}")
    k("s_mov_b32 s58, 2359296\ns_mov_b32 s59, 0x20000")
    FLAGS = 'fl' in OPT
    k(f"s_lshl_b32 s80, s7, 11\ns_add_u32 s80, s80, {FL0}\ns_lshl_b32 s14, s6, 7\ns_add_u32 s81, s80, s14\ns_lshl_b32 s36, s3, 2\ns_add_u32 s81, s81, s36")
    k(f"s_lshl_b32 s82, s6, 11\ns_add_u32 s82, s82, {FL1}\ns_lshl_b32 s14, s7, 7\ns_add_u32 s83, s82, s14\ns_add_u32 s83, s83, s36\ns_lshr_b32 s14, s7, 2\ns_lshl_b32 s14, s14, 3\ns_add_u32 s82, s82, s14")
    AT = 'at' in OPT
    if AT: k(f"s_lshl_b32 s80, s7, 7\ns_add_u32 s80, s80, {FL0}\ns_lshl_b32 s82, s6, 7\ns_add_u32 s82, s82, {FL1}")
    def apoll(ph, s):
        k("s_barrier")
        k(f"s_cmp_lg_u32 s3, 7\ns_cbranch_scc1 af_pd{ph}")
        k.skip_begin()
        k(f"s_mov_b64 exec, 1\nv_mov_b32 v132, 1\ns_mov_b32 s33, {SPIN}\ns_mov_b32 s14, 14")
        k.label(f"af_pl{ph}", reset=False)
        k(f"buffer_atomic_add v132, v5, s[16:19], s{s} offen sc0 sc1")
        k("v_readfirstlane_b32 s54, v132\nv_mov_b32 v132, 0\ns_cmp_ge_i32 s54, s14\ns_mov_b32 s14, 15")
        k(f"s_cbranch_scc1 af_px{ph}")
        if E('PSL', 0): k(f"s_sleep {E('PSL', 0)}")
        k(f"s_sub_u32 s33, s33, 1\ns_cmp_lt_i32 s33, 0\ns_cbranch_scc0 af_pl{ph}")
        k.label(f"af_px{ph}", reset=False)
        k("s_mov_b64 exec, -1")
        cnt(5 if ph == 0 else 8)
        k.skip_end(f"af_pd{ph}")
        k("s_barrier")
    def flag(s):
        if FLAGS: k(f"s_mov_b64 exec, 1\nbuffer_store_dword v5, v5, s[16:19], s{s} offen sc1\ns_mov_b64 exec, -1")
    def poll(ph, s):
        if AT: return apoll(ph, s)
        if not FLAGS: return
        k(f"s_cmp_lg_u32 s3, 7\ns_cbranch_scc1 af_pd{ph}")
        k.skip_begin()
        if ph == 0: k("v_lshrrev_b32 v128, 5, v5\nv_lshlrev_b32 v128, 7, v128\nv_and_b32 v129, 16, v5\nv_add_u32 v128, v128, v129\nv_cmp_gt_u32 vcc, 512, v5")
        else: k("v_lshlrev_b32 v128, 3, v5\nv_cmp_gt_u32 vcc, 256, v5\nv_mov_b32 v134, 0\nv_mov_b32 v135, 0")
        k(f"v_cndmask_b32 v128, v6, v128, vcc\ns_mov_b32 s33, {SPIN}")
        k.label(f"af_pl{ph}", reset=False)
        if E('PSL', 0): k(f"s_sleep {E('PSL', 0)}")
        k(f"buffer_load_dwordx{4 if ph == 0 else 2} {V(132, 4 if ph == 0 else 2)}, v128, s[16:19], s{s} offen sc1")
        k("v_cmp_u_f32 vcc, v132, v133\nv_cmp_u_f32_e64 s[54:55], v134, v135\ns_or_b64 vcc, vcc, s[54:55]")
        k(f"s_cbranch_scc0 af_pd{ph}\ns_sub_u32 s33, s33, 1\ns_cmp_lt_i32 s33, 0\ns_cbranch_scc0 af_pl{ph}")
        k.skip_end(f"af_pd{ph}")
        k("s_barrier")
    def reads(ks):
        out = []
        for t in range(7):
            off = (ks*7 + t) * 1024
            base = "v5" if off < 65536 else "v14"
            out.append(f"ds_read_b128 {V(WB+28*(ks%2)+4*t,4)}, {base} offset:{off % 65536}")
        return out
    def mfmas(ks):
        return [MF(V(AC+4*t, 4), V(WB+28*(ks%2)+4*t,4), V(XR+4*(ks%NX),4), V(AC+4*t, 4) if ks else "0") for t in range(7)]
    k("v_add_u32 v14, 0x10000, v5")
    def bar(upto):
        k.wait_vm(f"D{(7*min(upto, 17) + 6) // 8}"); k("s_barrier")
    wst = dict(w=0)
    def ldw(upto):
        ops = []
        while wst['w'] <= min(upto, 17):
            ks = wst['w']
            ops.append(f"buffer_load_dwordx4 {V(W3(ks),4)}, v5, s[16:19], s50 offen offset:{1024*(ks%4)}")
            ops.append(f"buffer_load_dwordx4 {V(W3(ks)+4,4)}, v5, s[16:19], s51 offen offset:{1024*(ks%4)}" + ("\ns_add_u32 s50, s50, 4096\ns_add_u32 s51, s51, 4096" if ks % 4 == 3 else ""))
            wst['w'] += 1
        return ops
    k(f"s_cmp_lt_u32 s3, 5\ns_cselect_b32 s50, s50, {INV}\ns_cselect_b32 s51, s51, {INV}")
    k(f"v_lshlrev_b32 v15, 2, v3\ns_lshl_b32 s29, s37, 7\ns_add_u32 s29, s29, {MX}")
    k("s_sub_u32 s21, s9, 5120\ns_lshr_b32 s14, s21, 4")
    for r in range(3):
        k(f"v_add_u32 v131, s14, v1\nv_add_u32 v131, {192*r}, v131\nv_mul_u32_u24 v132, 3641, v131\nv_lshrrev_b32 v132, 16, v132\nv_mul_u32_u24 v133, 18, v132\nv_sub_u32 v133, v131, v133\nv_mul_u32_u24 v132, 1152, v132\nv_lshl_add_u32 v{128+r}, v133, 4, v132")
    SF = 'sf' in OPT
    def sfill():
        for j in range(4): k(f"v_mov_b32 v{240+j}, -1")
        k(f"s_mul_i32 s14, s26, 3200\ns_sub_u32 s14, s31, s14\nv_lshlrev_b32 v244, 4, v0\nv_cmp_gt_u32 vcc, 400, v0\nv_cndmask_b32 v244, v6, v244, vcc\nv_cmp_eq_u32 vcc, 0, v4\nv_cndmask_b32 v245, v6, v5, vcc")
        k("buffer_store_dwordx4 v[240:243], v244, s[16:19], s14 offen sc1\nbuffer_store_dwordx4 v[240:243], v5, s[16:19], s23 offen sc1")
        k("buffer_store_dwordx2 v[240:241], v245, s[16:19], s22 offen sc1", tag="SF")
    if SF:
        k(f"s_cmp_eq_u32 s3, 7\ns_cselect_b32 s80, {FL0}, {INV}")
        k("s_lshl_b32 s14, s6, 7\ns_lshl_b32 s36, s7, 7\ns_add_u32 s36, s36, 4096")
        k("v_lshl_add_u32 v127, v3, 2, s14\nv_lshl_add_u32 v246, v3, 2, s36\nv_cmp_eq_u32 vcc, 1, v4\nv_cndmask_b32 v127, v127, v246, vcc\nv_cmp_gt_u32 vcc, 2, v4\nv_cndmask_b32 v127, v6, v127, vcc")
        k("s_lshl_b32 s81, s7, 2\ns_add_u32 s14, s14, s81\ns_lshl_b32 s81, s6, 2\ns_add_u32 s36, s36, s81")
        k("v_mov_b32 v246, s14\nv_mov_b32 v247, s36\nv_cmp_eq_u32 vcc, 1, v1\nv_cndmask_b32 v246, v246, v247, vcc\nv_cmp_gt_u32 vcc, 2, v1\nv_cndmask_b32 v246, v6, v246, vcc")
        if E('SFP', -1) == -1: sfill()
    SO = 'so' in OPT
    if SO:
        k(f"s_lshl_b32 s80, s6, 7\ns_add_u32 s80, s80, {KVP - 4096}\ns_lshl_b32 s81, s7, 2\ns_add_u32 s81, s81, s80\ns_cmp_eq_u32 s3, {E('SOW', 7)}\ns_cselect_b32 s81, s81, {INV}")
        k("v_lshlrev_b32 v127, 2, v1\nv_cmp_gt_u32 vcc, 16, v1\nv_cndmask_b32 v127, v6, v127, vcc")
        k("v_cmp_eq_u32 vcc, 0, v4\nv_cndmask_b32 v245, v6, v5, vcc")
        for j in range(4): k(f"v_mov_b32 v{240+j}, -1")
    k("buffer_load_dword v1, v15, s[16:19], s29 offen\nbuffer_load_dword v15, v15, s[16:19], s29 offen offset:64")
    bar(0)
    stamp(0)
    for o in reads(0): k(o)
    WS = E('W3S', 14)
    for ks in range(18):
        if SF and ks == E('SFF', 2): k.wait_vm("SF")
        if ks % GB == 0 and ks + 1 < 18: bar(ks + GB)
        if SF and ks == E('SFF', 2):
            assert ks % GB == 0 and ks > E('SFP', -1)
            k("buffer_store_dword v246, v246, s[16:19], s80 offen sc1")
        if SF and ks == E('SFP', -1): sfill()
        if SO and ks == E('SOP', 14):
            k("buffer_store_dwordx4 v[240:243], v5, s[16:19], s23 offen sc1")
            k("buffer_store_dwordx2 v[240:241], v245, s[16:19], s22 offen sc1", tag="SF")
        if ks == E('A1T', 16) and 'a1t' in OPT and not LT: k("buffer_load_dword v255, v127, s[44:47], s48 offen")
        if ks == E('PCS', 15) and 'pc' in OPT and not LT: pf_code(k, "ffn_kernel", 253, 42, s3=14)
        if ks == E('XS', 14):
            k("s_cmp_lt_u32 s3, 5\ns_cbranch_scc1 af_nox")
            k.skip_begin()
            for r in range(3): k(f"s_add_u32 m0, s21, {XO + 3072*r}\nbuffer_load_dwordx4 v{128+r}, s[56:59], s53 offen lds")
            k.skip_end("af_nox")
        lt_at(ks); wt_at(ks)
        R = reads(ks + 1) if ks + 1 < 18 else []
        L = ld(ks + LA)
        if ks >= WS: L += [(o, None) for o in ldw(min(15, (ks - WS + 1) * E('W3N', 2) - 1))]
        M = mfmas(ks)
        for o in R[:2]: k(o)
        R = R[2:]
        for i, m in enumerate(M):
            k(m)
            if R: k(R.pop(0))
            if L and i >= 2: o, t = L.pop(0); k(o, tag=t)
        for o, t in L: k(o, tag=t)
    stamp(1)
    sfl = "buffer_load_dword v14, v127, s[16:19], s80 offen sc1"
    if SF: k(sfl)
    WL = ldw(17)
    done = 36 - len(WL)
    WA = E('W3A', 34); WBn = E('W3B', 36)
    na = WA - done; slot = [0, 0]
    def wdrip():
        slot[0] += 1
        while slot[1] < na and slot[1] * 43 < slot[0] * na: k(WL.pop(0)); slot[1] += 1
    A = lambda i: f"v{AC+i}"
    k(f"v_cvt_pk_bf16_f32 v{VV}, {A(20)}, {A(21)}\nv_cvt_pk_bf16_f32 v{VV+1}, {A(22)}, {A(23)}\nv_cvt_pk_bf16_f32 v{VV+2}, {A(24)}, {A(25)}\nv_cvt_pk_bf16_f32 v{VV+3}, {A(26)}, {A(27)}")
    k(f"v_cvt_pk_bf16_f32 v{VV+4}, {A(18)}, {A(19)}\nv_mov_b32 v{VV+5}, 0x3f80")
    k(f"ds_write_b64 v12, {V(VV,2)} offset:160\nds_write_b64 v12, {V(VV+2,2)} offset:200")
    k(f"s_mov_b64 exec, 0xffffffff\nds_write_b64 v13, {V(VV+4,2)} offset:192\ns_mov_b64 exec, -1")
    k(f"v_max3_f32 v84, {A(0)}, {A(1)}, {A(2)}\nv_min3_f32 v85, {A(0)}, {A(1)}, {A(2)}")
    for j in range(7): k(f"v_max3_f32 v84, v84, {A(3+2*j)}, {A(4+2*j)}\nv_min3_f32 v85, v85, {A(3+2*j)}, {A(4+2*j)}"); wdrip()
    k(f"v_max_f32 v84, v84, {A(17)}\nv_min_f32 v85, v85, {A(17)}")
    k("v_mul_f32 v86, s25, v84\nv_mul_f32 v87, s24, v85")
    for f in range(18):
        k(f"v_fma_f32 v{EP+f}, {A(f)}, s24, v86\nv_fma_f32 {A(f)}, {A(f)}, s25, v87")
        k(f"v_exp_f32 v{EP+f}, v{EP+f}\nv_exp_f32 {A(f)}, {A(f)}")
        if f == 1: k(f"v_add_f32 v84, v{EP}, v{EP+1}\nv_add_f32 v85, {A(0)}, {A(1)}")
        if f >= 2: k(f"v_add_f32 v84, v84, v{EP+f}\nv_add_f32 v85, v85, {A(f)}")
        wdrip()
    k("v_rcp_f32 v84, v84\nv_rcp_f32 v85, v85")
    for j in range(9):
        k(f"v_mul_f32 v{EP+2*j}, v{EP+2*j}, v84\nv_mul_f32 v{EP+1+2*j}, v{EP+1+2*j}, v84\nv_cvt_pk_bf16_f32 v{PK+j}, v{EP+2*j}, v{EP+1+2*j}"); wdrip()
    for j in range(9):
        k(f"v_mul_f32 {A(2*j)}, {A(2*j)}, v85\nv_mul_f32 {A(2*j+1)}, {A(2*j+1)}, v85\nv_cvt_pk_bf16_f32 v{PK+9+j}, {A(2*j)}, {A(2*j+1)}"); wdrip()
    assert slot[1] == max(na, 0) and WA <= 34
    k("s_mov_b32 exec_lo, 0")
    for j in range(4): k(f"ds_write_b128 v11, {V(PK+4*j,4)} offset:{16*j}")
    k(f"ds_write_b64 v11, {V(PK+16,2)} offset:64")
    k("s_mov_b32 exec_lo, -1\ns_mov_b32 exec_hi, 0")
    if SO: k.wait_vm("SF")
    k.wait_all(vm=False); k("s_barrier")
    if SO: k("s_mov_b32 exec_lo, 1\nbuffer_store_dword v5, v5, s[16:19], s81 offen sc1\ns_mov_b32 exec_lo, -1")
    for j in range(4): k(f"ds_write_b128 v8, {V(PK+4*j,4)} offset:{256*j}")
    k(f"ds_write_b64 v9, {V(PK+16,2)} offset:2048")
    k("s_mov_b64 exec, -1")
    stamp(2)
    k("s_cmp_ge_u32 s3, 6\ns_cbranch_scc1 af_nokv")
    k.skip_begin()
    FA, FB, FX, C0 = 16, 40, 56, 32
    for s in range(4):
        for h in range(2):
            o = (32*s + 4*h) * 240
            k(f"ds_read_b64_tr_b16 {V(FA+4*s+2*h,2)}, v124 offset:{o}\nds_read_b64_tr_b16 {V(FB+4*s+2*h,2)}, v125 offset:{o}\nds_read_b64_tr_b16 {V(FX+4*s+2*h,2)}, v126 offset:{o+32}")
    for s in range(4):
        k(MF(V(C0,4), V(FA+4*s,4), V(FB+4*s,4), V(C0,4) if s else "0"))
        k(MF(V(C0+4,4), V(FA+4*s,4), V(FX+4*s,4), V(C0+4,4) if s else "0"))
    for j in range(4): k(f"v_cndmask_b32_e64 v{C0+j}, 0, v{C0+j}, s[34:35]")
    pk = lambda c: f"v_cvt_pk_bf16_f32 v{c}, v{c}, v{c+1}\nv_cvt_pk_bf16_f32 v{c+1}, v{c+2}, v{c+3}\n"
    if KH: k(pk(C0) + f"buffer_store_dwordx2 {V(C0,2)}, v2, s[16:19], s31 offen sc1")
    else: k(f"buffer_store_dwordx4 {V(C0,4)}, v2, s[16:19], s31 offen sc1")
    for j in range(4, 8): k(f"v_cndmask_b32_e64 v{C0+j}, 0, v{C0+j}, s[34:35]")
    if KH: k(pk(C0+4) + f"buffer_store_dwordx2 {V(C0+4,2)}, v7, s[16:19], s31 offen sc1")
    else: k(f"buffer_store_dwordx4 {V(C0+4,4)}, v7, s[16:19], s31 offen sc1")
    k.skip_end("af_nokv")
    k.wait_all(vm=False)
    k(f"v_lshlrev_b32 v7, {3 if KH else 4}, v0\nv_cmp_gt_u32 vcc, 400, v0\nv_cndmask_b32 v7, v6, v7, vcc")
    flag(81)
    while 36 - len(WL) < WBn: k(WL.pop(0))
    poll(0, 80)
    if SF:
        assert 'kb' in OPT and LT
        k(f"s_mov_b32 s33, {SPIN}\nv_cmp_eq_u32 vcc, -1, v14\ns_cmp_lg_u64 vcc, 0\ns_cbranch_scc1 af_sfslow")
        k.label("af_sfgo", reset=False)
    if 'kb' in OPT: k('s_barrier')
    if E('KVD', 0): k(f"s_sleep {E('KVD', 0)}")
    kvl = lambda j: f"buffer_load_dwordx{2 if KH else 4} {V(KR(j),2 if KH else 4)}, v7, s[16:19], s{60+j} offen sc1"
    for j in range(16): k(kvl(j).replace(" sc1", os.environ.get('KVM', ' sc1')))
    k("v_add_u32 v10, s20, v5\nv_lshlrev_b32 v11, 4, v3\nv_add_u32 v11, s20, v11")
    k("ds_read_b128 v[16:19], v10\nds_read_b128 v[20:23], v10 offset:1024\nds_read_b128 v[24:27], v11 offset:2048")
    k("v_cmp_eq_u32 vcc, 0, v4\nv_cndmask_b32 v8, v6, v5, vcc")
    if OC: k("v_lshrrev_b32 v8, 1, v8")
    k("v_mov_b32 v9, 1472\nv_add_u32 v10, 1024, v5\nv_cndmask_b32 v10, v9, v10, vcc")
    k("v_and_b32 v11, 3, v3\nv_lshl_add_u32 v12, v11, 2, v4\nv_lshlrev_b32 v12, 4, v12\nv_lshlrev_b32 v11, 4, v11\nv_add_u32 v11, 1536, v11\nv_cndmask_b32 v11, v9, v11, vcc")
    if KC:
        k("v_subrev_u32 v28, 200, v0\nv_cmp_gt_u32 vcc, 200, v0\nv_cndmask_b32 v28, v28, v0, vcc\nv_sub_u32 v13, v0, v28")
        k("v_and_b32 v29, 63, v28\nv_lshrrev_b32 v30, 6, v28\nv_lshl_add_u32 v29, v29, 1, v30")
        k("v_and_b32 v30, 15, v28\nv_bfe_u32 v31, v28, 4, 1\nv_lshl_add_u32 v30, v30, 1, v31\nv_add_u32 v30, 160, v30")
        k("v_cmp_gt_u32 vcc, 128, v28\nv_cndmask_b32 v29, v28, v29, vcc\nv_subrev_u32 v31, 160, v28\nv_cmp_gt_u32 vcc, 32, v31\nv_cndmask_b32 v29, v29, v30, vcc")
        k("v_add_lshl_u32 v13, v13, v29, 3")
    else: k("v_lshlrev_b32 v13, 3, v0")
    k(f"s_mov_b32 s33, {SPIN}")
    def ksum():
        if KH:
            k("s_mov_b32 s54, 0x3f80\ns_mov_b32 s55, 0x3f800000")
            for j in range(16):
                for i in range(4): k(f"v_dot2_f32_bf16 v{28+i}, v{KR(j)+i//2}, s{54+i%2}, " + (f"v{28+i}" if j else "0"))
            k("s_nop 2\nv_cmp_u_f32 vcc, v28, v30\ns_cmp_lg_u64 vcc, 0")
            return
        k("v_pk_add_f32 v[28:29], v[32:33], v[36:37]\nv_pk_add_f32 v[30:31], v[34:35], v[38:39]")
        for j in range(2, 16): k(f"v_pk_add_f32 v[28:29], v[28:29], {V(KR(j),2)}\nv_pk_add_f32 v[30:31], v[30:31], {V(KR(j)+2,2)}")
        k("v_cmp_u_f32 vcc, v28, v29\nv_cmp_u_f32_e64 s[54:55], v30, v31\ns_or_b64 vcc, vcc, s[54:55]")
    ksum()
    stamp(3)
    k("s_cbranch_scc1 af_kvslow")
    k.label("af_kvgo", reset=False)
    sol = "buffer_load_dword v14, v127, s[16:19], s80 offen sc1"
    if SO: k(sol)
    k(f"v_cvt_pk_bf16_f32 v28, v28, v29\nv_cvt_pk_bf16_f32 v29, v30, v31\nds_write_b64 v13, v[28:29] offset:{KVS}")
    stamp(4)
    if not AT: cnt(5)
    k.wait_all(vm=False); k("s_barrier")
    for hh in range(2):
        b = 40 + 16*hh; o = 1600*hh + KVS
        k(f"ds_read_b128 {V(b,4)}, v5 offset:{o}\nds_read_b128 {V(b+4,4)}, v12 offset:{o+1280}\nds_read_b128 {V(b+8,4)}, v10 offset:{o}\nds_read_b128 {V(b+12,4)}, v11 offset:{o}")
    for hh in range(2):
        b = 40 + 16*hh; c = 72 + 8*hh; pq = V(16+4*hh, 4)
        k(MF(V(c,4), V(b,4), pq, "0")); k(MF(V(c+4,4), V(b+4,4), pq, "0"))
    for hh in range(2):
        b = 40 + 16*hh; c = 72 + 8*hh
        k(MF(V(c+4,4), V(b+12,4), "v[24:27]", V(c+4,4))); k(MF(V(c,4), V(b+8,4), "v[24:27]", V(c,4)))
    for hh in range(2):
        c = 72 + 8*hh
        bf16r(k, f"v{c+6}", f"v{c+6}")
        k(f"v_add_f32 v{c+6}, 0x358637bd, v{c+6}")
        bf16r(k, f"v{c+6}", f"v{c+6}")
        k(f"v_rcp_f32 v{c+6}, v{c+6}")
    for hh in range(2):
        c = 72 + 8*hh
        for j in range(6): k(f"v_mul_f32 v{c+j}, v{c+j}, v{c+6}")
        k(f"v_cvt_pk_bf16_f32 v{96+2*hh}, v{c}, v{c+1}\nv_cvt_pk_bf16_f32 v{97+2*hh}, v{c+2}, v{c+3}\nv_cvt_pk_bf16_f32 v{100+hh}, v{c+4}, v{c+5}")
    k("buffer_store_dwordx4 v[96:99], v5, s[16:19], s23 offen sc1\nbuffer_store_dwordx2 v[100:101], v8, s[16:19], s22 offen sc1")
    flag(83)
    for i in range(1, 5): k(f"s_add_u32 s{60+i}, s52, {8192*i}")
    k(f"s_mov_b32 s60, s52\ns_cmp_lt_u32 s3, 4\ns_cselect_b32 s64, s64, {INV}")
    while WL: k(WL.pop(0))
    poll(1, 82)
    if 'ob' in OPT: k('s_barrier')
    if E('OFD', 0): k(f"s_sleep {E('OFD', 0)}")
    if SO:
        k(f"s_mov_b32 s33, {SPIN}\nv_cmp_eq_u32 vcc, -1, v14\ns_cmp_lg_u64 vcc, 0\ns_cbranch_scc1 af_soslow")
        k.label("af_sogo", reset=False)
    ofl = lambda i: f"buffer_load_dwordx4 {V(56+4*i,4)}, v5, s[16:19], s{60+i} offen sc1"
    for i in range(5): k(ofl(i).replace(" sc1", os.environ.get('OFM', ' sc1')))
    k(f"v_add_u32 v10, s9, v5")
    if OC:
        k("v_and_b32 v12, 0x70, v5\nv_lshlrev_b32 v12, 1, v12\nv_lshl_add_u32 v12, v4, 8, v12\nv_bfe_u32 v13, v5, 7, 1\nv_lshl_add_u32 v12, v13, 3, v12\nv_add_u32 v12, s9, v12")
        k("v_add_u32 v13, 16, v12\nv_add_u32 v8, 8, v10\ns_cmp_lt_u32 s3, 2\ns_cselect_b64 vcc, -1, 0")
        k("v_cndmask_b32 v7, v12, v10, vcc\nv_cndmask_b32 v12, v10, v12, vcc\nv_cndmask_b32 v2, v13, v8, vcc\nv_cndmask_b32 v13, v8, v13, vcc")
    k(f"v_mul_u32_u24 v14, 288, v3\nv_lshl_add_u32 v14, v4, 3, v14\ns_lshl_b32 s30, s15, 5\ns_add_u32 s30, s30, {XO}\nv_add_u32 v14, s30, v14")
    k(f"v_lshlrev_b32 v11, 2, v3\nv_add_u32 v9, {MO}, v11")
    k(f"s_mul_i32 s32, s37, 36\ns_lshr_b32 s14, s39, 1\ns_add_u32 s32, s32, s14\ns_lshl_b32 s32, s32, 10\ns_add_u32 s28, s32, {HR}\ns_add_u32 s32, s32, {HC}")
    k("s_add_u32 s34, s32, 18432\ns_add_u32 s35, s28, 18432")
    k(f"s_mov_b32 s31, 0xffff0000\ns_mov_b32 s33, {SPIN}")
    def ochk():
        for i in range(5):
            k(f"v_cmp_u_f32_e64 s[{66+2*i}:{67+2*i}], v{56+4*i}, v{57+4*i}\nv_cmp_u_f32 vcc, v{58+4*i}, v{59+4*i}\ns_or_b64 s[{66+2*i}:{67+2*i}], s[{66+2*i}:{67+2*i}], vcc")
        k("s_or_b64 vcc, s[66:67], s[68:69]\ns_or_b64 s[54:55], s[70:71], s[72:73]\ns_or_b64 vcc, vcc, s[74:75]\ns_or_b64 vcc, vcc, s[54:55]")
    ochk()
    stamp(6)
    k("s_cbranch_scc1 af_ofslow")
    k.label("af_ofgo", reset=False)
    for i in range(4):
        if OC and i == 2: k(f"ds_write_b64 v12, v[64:65] offset:{OFL + 16384}\nds_write_b64 v13, v[66:67] offset:{OFL + 16384}")
        else: k(f"ds_write_b128 v10, {V(56+4*i,4)} offset:{OFL + 8192*i}")
    k("s_cmp_ge_u32 s3, 4\ns_cbranch_scc1 af_no5")
    if OC: k(f"ds_write_b64 v7, v[72:73] offset:{OFL + 32768}\nds_write_b64 v2, v[74:75] offset:{OFL + 32768}")
    else: k(f"ds_write_b128 v10, v[72:75] offset:{OFL + 32768}")
    k.label("af_no5", reset=False)
    stamp(7)
    if not AT: cnt(8)
    k("s_waitcnt vmcnt(0) lgkmcnt(0)\ns_barrier")
    k("s_cmp_ge_u32 s3, 5\ns_cbranch_scc1 " + ("af_lt" if LT and LTP == 99 else "af_end"))
    def rd(ks):
        k(f"ds_read_b128 {V(16+8*(ks%3),4)}, v5 offset:{OFL + ks*1024}\nds_read_b128 {V(20+8*(ks%3),4)}, v5 offset:{OFL + (18+ks)*1024}")
    rd(0); rd(1)
    for ks in range(18):
        if ks + 2 < 18: rd(ks + 2)
        if ks == 16:
            for tt in range(2):
                for t in range(2): k(f"ds_read_b64 {V(76+4*tt+2*t,2)}, v14 offset:{tt*4608+32*t}")
        for t in (1, 0):
            for tt in range(2):
                c = V(40 + 8*tt + 4*t, 4)
                k(MF(c, V(W3(ks)+4*t,4), V(16+8*(ks%3)+4*tt,4), c if ks else "0"))
    stamp(9)
    k("s_cmp_lt_u32 s3, 4\ns_cbranch_scc1 af_nomean")
    k.skip_begin()
    for tt in range(2):
        k(f"v_add_f32 v{44+8*tt}, v{44+8*tt}, v{45+8*tt}\nv_add_f32 v{44+8*tt}, v{44+8*tt}, v{(1, 15)[tt]}")
        bf16r(k, f"v{44+8*tt}", f"v{44+8*tt}")
    k("s_mov_b64 exec, 0xffff\nds_write_b32 v9, v44\nds_write_b32 v9, v52 offset:64\ns_mov_b64 exec, -1")
    k.wait_all(vm=False)
    k.skip_end("af_nomean")
    for tt in range(2):
        for t in range(2):
            for hf in range(2):
                c = 40 + 8*tt + 4*t + 2*hf; xr = 76 + 4*tt + 2*t + hf; ho = 96 + 4*tt + 2*t + hf
                k(f"v_cvt_pk_bf16_f32 v{c+1}, v{c}, v{c+1}\nv_lshlrev_b32 v{c}, 16, v{c+1}\nv_and_b32 v{c+1}, s31, v{c+1}")
                k(f"v_lshlrev_b32 v120, 16, v{xr}\nv_and_b32 v121, s31, v{xr}\nv_add_f32 v{c}, v{c}, v120\nv_add_f32 v{c+1}, v{c+1}, v121")
                k(f"v_cvt_pk_bf16_f32 v{ho}, v{c}, v{c+1}\nv_lshlrev_b32 v{c}, 16, v{ho}\nv_and_b32 v{c+1}, s31, v{ho}")
    k("s_barrier")
    k("ds_read_b32 v12, v9\nds_read_b32 v13, v9 offset:64")
    k("s_cmp_lt_u32 s3, 4\ns_cbranch_scc0 af_single")
    k.skip_begin()
    k("buffer_store_dwordx4 v[96:99], v5, s[16:19], s28 offen\nbuffer_store_dwordx4 v[100:103], v5, s[16:19], s35 offen")
    def hc(tt, ts):
        for t in ts:
            for hf in range(2):
                c = 40 + 8*tt + 4*t + 2*hf; co = 112 + 4*tt + 2*t + hf
                k(f"v_sub_f32 v{c}, v{c}, v{12+tt}\nv_sub_f32 v{c+1}, v{c+1}, v{12+tt}\nv_cvt_pk_bf16_f32 v{co}, v{c}, v{c+1}")
    hc(0, (0, 1)); k("buffer_store_dwordx4 v[112:115], v5, s[16:19], s32 offen")
    hc(1, (0, 1)); k("buffer_store_dwordx4 v[116:119], v5, s[16:19], s34 offen")
    k("s_endpgm")
    k.skip_end("af_single")
    k("s_and_b32 s14, s39, 1\ns_lshl_b32 s14, s14, 3\nv_add_u32 v10, s14, v5\ns_nop 1")
    k("buffer_store_dwordx2 v[96:97], v10, s[16:19], s28 offen\nbuffer_store_dwordx2 v[100:101], v10, s[16:19], s35 offen")
    hc(0, (0,)); hc(1, (0,))
    k("buffer_store_dwordx2 v[112:113], v10, s[16:19], s32 offen\nbuffer_store_dwordx2 v[116:117], v10, s[16:19], s34 offen")
    k.label("af_end")
    k("s_endpgm")
    if LT and LTP == 99:
        k.label("af_lt")
        late_touch()
        k("s_endpgm 0")
    if SF:
        k.label("af_sfslow")
        k("s_sub_u32 s33, s33, 1\ns_cmp_lt_i32 s33, 0\ns_cbranch_scc1 af_sfgo\ns_sleep 4")
        k(sfl + "\ns_waitcnt vmcnt(0)\nv_cmp_eq_u32 vcc, -1, v14\ns_cmp_lg_u64 vcc, 0\ns_cbranch_scc1 af_sfslow\ns_branch af_sfgo")
    if SO:
        k.label("af_soslow")
        k("s_sub_u32 s33, s33, 1\ns_cmp_lt_i32 s33, 0\ns_cbranch_scc1 af_sogo\ns_sleep 4")
        k(sol + "\ns_waitcnt vmcnt(0)\nv_cmp_eq_u32 vcc, -1, v14\ns_cmp_lg_u64 vcc, 0\ns_cbranch_scc1 af_soslow\ns_branch af_sogo")
    k.label("af_kvslow")
    k("s_sub_u32 s33, s33, 1\ns_cmp_lt_i32 s33, 0\ns_cbranch_scc1 af_kvgo")
    for j in range(16):
        if KH: k(f"v_cmp_u_f32 vcc, v{KR(j)}, v{KR(j)+1}\ns_cmp_lg_u64 vcc, 0\ns_cbranch_scc0 af_kv{j}")
        else: k(f"v_cmp_u_f32 vcc, v{KR(j)}, v{KR(j)+1}\nv_cmp_u_f32_e64 s[54:55], v{KR(j)+2}, v{KR(j)+3}\ns_or_b64 vcc, vcc, s[54:55]\ns_cbranch_scc0 af_kv{j}")
        k(kvl(j))
        k.label(f"af_kv{j}")
    k("s_waitcnt vmcnt(0)")
    ksum()
    k("s_cbranch_scc1 af_kvslow\ns_branch af_kvgo")
    k.label("af_ofslow")
    k("s_sub_u32 s33, s33, 1\ns_cmp_lt_i32 s33, 0\ns_cbranch_scc1 af_ofgo")
    for i in range(5):
        k(f"s_cmp_eq_u64 s[{66+2*i}:{67+2*i}], 0\ns_cbranch_scc1 af_of{i}")
        k(ofl(i))
        k.label(f"af_of{i}")
    k("s_waitcnt vmcnt(0)")
    ochk()
    k("s_cbranch_scc1 af_ofslow\ns_branch af_ofgo")
    return k
```
